```python
import torch

def _softmax(x, axis=-1):
    return torch.softmax(x, dim=axis)
def _gelu(x):
    return torch.nn.functional.gelu(x, approximate="tanh")
def _silu(x):
    return torch.nn.functional.silu(x)
def _sigmoid(x):
    return torch.sigmoid(x)
def _layernorm(x, axis=-1, eps=1e-5):
    m = x.mean(dim=axis, keepdim=True)
    v = x.var(dim=axis, keepdim=True, unbiased=False)
    return (x - m) / torch.sqrt(v + eps)
def _scatter_add(tgt, idx, src, axis=0):
    return tgt.clone().index_add_(axis, idx, src)
def _segment_sum(src, seg, n):
    out = torch.zeros((n,) + src.shape[1:], dtype=src.dtype)
    return out.index_add_(0, seg, src)
def _pad(x, pw):
    flat = tuple(v for pair in reversed(pw) for v in pair)
    return torch.nn.functional.pad(x, flat)

kernel_name = 'recurrent_scan__sliding_block_cached__mixer_channel_mlp__decode'

def setup_inputs():

    _w = (lambda a: (lambda t: t.to(torch.bfloat16) if t.is_floating_point() else t)(torch.as_tensor(a)))
    def _A_setup():
        B, Sq, D = 1, 1, 512
        Hq, Hkv, Sk, Dh = 32, 8, 32768, 128
        assert Hq % Hkv == 0, (Hq, Hkv)
        return {
            "x": _w((lambda *s: torch.randn(*s, dtype=torch.bfloat16) * 0.1)(B, Sq, D)),
            "k_cache": _w((lambda *s: torch.randn(*s, dtype=torch.bfloat16) * 0.8)(B, Hkv, Sk, Dh)),
            "v_cache": _w((lambda *s: torch.randn(*s, dtype=torch.bfloat16) * 3.2)(B, Hkv, Sk, Dh)),
            "wq": _w((lambda *s: torch.randn(*s, dtype=torch.bfloat16) * 0.8)(D, Hq * Dh) * (D ** -0.5)),
            "wo": _w((lambda *s: torch.randn(*s, dtype=torch.bfloat16) * 3.2)(Hq * Dh, D) * ((Hq * Dh) ** -0.5)),
        }
    _A_in = _A_setup()

    def _B_setup():
        B, S, D, F = 1, 1, 512, 1792
        return {
            "x": _w((lambda *s: torch.randn(*s, dtype=torch.bfloat16) * 0.1)(B, S, D)),
            "w1": _w((lambda *s: torch.randn(*s, dtype=torch.bfloat16) * 3.2)(D, F) * (D ** -0.5)),
            "b1": _w((lambda *s: torch.randn(*s, dtype=torch.bfloat16) * 3.2)(F)),
            "w2": _w((lambda *s: torch.randn(*s, dtype=torch.bfloat16) * 3.2)(F, D) * (F ** -0.5)),
            "b2": _w((lambda *s: torch.randn(*s, dtype=torch.bfloat16) * 3.2)(D)),
        }
    _B_in = _B_setup()

    return {
        "A_x": _A_in["x"],
        "A_k_cache": _A_in["k_cache"],
        "A_v_cache": _A_in["v_cache"],
        "A_wq": _A_in["wq"],
        "A_wo": _A_in["wo"],
        "B_x": _B_in["x"],
        "B_w1": _B_in["w1"],
        "B_b1": _B_in["b1"],
        "B_w2": _B_in["w2"],
        "B_b2": _B_in["b2"],
    }

def reference(A_x, A_k_cache, A_v_cache, A_wq, A_wo, B_x, B_w1, B_b1, B_w2, B_b2):
    def _A_ref(x, k_cache, v_cache, wq, wo):
        B, Sq, D = x.shape
        Hq, Dh = 32, 128
        Hkv, Sk = k_cache.shape[1], k_cache.shape[2]
        W = min(4096, max(256, Sk // 4))
        rep = Hq // Hkv
        q = (lambda x, *d: x.permute(*d))((x @ wq).reshape(B, Sq, Hq, Dh), 0, 2, 1, 3)
        k = (lambda x, n, axis: torch.repeat_interleave(x, n, dim=axis))(k_cache[:, :, Sk - W:, :], rep, axis=1)
        v = (lambda x, n, axis: torch.repeat_interleave(x, n, dim=axis))(v_cache[:, :, Sk - W:, :], rep, axis=1)
        scores = torch.einsum("bhqd,bhkd->bhqk", q, k) * (Dh ** -0.5)
        p = _softmax(scores, axis=-1)
        o = torch.einsum("bhqk,bhkd->bhqd", p, v)
        return (lambda x, *d: x.permute(*d))(o, 0, 2, 1, 3).reshape(B, Sq, Hq * Dh) @ wo

    def _B_ref(x, w1, b1, w2, b2):
        y = _layernorm(x, axis=-1)
        h = _gelu(torch.einsum("bsd,df->bsf", y, w1) + b1)
        return torch.einsum("bsf,fd->bsd", h, w2) + b2

    x = A_x
    xn = _layernorm(x, axis=-1)
    s = _A_ref(xn, A_k_cache, A_v_cache, A_wq, A_wo)
    g = _silu(_B_ref(xn, B_w1, B_b1, B_w2, B_b2))
    return x + s * g
```

```python
import sys
KN = "recurrent_scan__sliding_block_cached__mixer_channel_mlp__decode"
HEADER = open("cdna_kernels/%s.s.ref" % KN).read().split("; Override launch")[0] if __name__ == "__main__" or True else ""

ST = 1088
QB, HB, LB, OB, FB = 0x10000, 0x20000, 0x30000, 0x40000, 0xC0000
TS_OFF = 0x8000000

def gen(W=16, nt="nt", stamps=False, order="q1KVo2", budget=20000):
    L = []
    def a(s):
        for x in s.split("\n"):
            x = x.strip()
            if x: L.append(x)
    cnt = {"q": 16, "1": 8, "K": 32, "V": 32, "o": 16, "2": 8}
    base = {}; p = 0
    for t in order:
        base[t] = p; p += cnt[t] * ST
    END = p
    PROG = END
    FLG = PROG + 256
    XN = FLG + 64
    YN = XN + 1024
    QL = YN + 1024
    SL = QL + 4 * 288
    WL = SL + 4 * 576
    AL = WL + 128
    HL = AL + 8 * 288
    LDS_TOTAL = HL + 128
    assert LDS_TOTAL <= 163840
    nst = [0]
    def stamp():
        if stamps:
            a(f"s_memrealtime s[{64+2*nst[0]}:{65+2*nst[0]}]")
        nst[0] += 1
        assert nst[0] <= 16
    uid = [0]
    def lab(p):
        uid[0] += 1
        return f"L_{p}{uid[0]}"
    def wait_prog(th):
        l = lab("wp"); e = lab("wpe")
        a(f"""{l}:
        ds_read_b32 v4, v3 offset:0
        s_sub_u32 s33, s33, 1
        s_cbranch_scc1 L_fin
        s_waitcnt lgkmcnt(0)
        v_cmp_gt_u32 vcc, {th}, v4
        s_cbranch_vccnz {l}
        {e}:""")
    def wait_flags(off):
        l = lab("wf"); e = lab("wfe")
        a(f"""{l}:
        ds_read_b128 v[4:7], v3 offset:{256+off}
        s_sub_u32 s33, s33, 1
        s_cbranch_scc1 L_fin
        s_waitcnt lgkmcnt(0)
        v_and_b32 v4, v4, v5
        v_and_b32 v6, v6, v7
        v_and_b32 v4, v4, v6
        v_cmp_eq_u32 vcc, 0, v4
        s_cbranch_vccnz {l}
        {e}:""")
    def wave_sum2(x, y):
        for d in ("row_shr:1", "row_shr:2", "row_shr:4", "row_shr:8"):
            a(f"""v_add_f32_dpp v{x}, v{x}, v{x} {d} row_mask:0xf bank_mask:0xf bound_ctrl:1
            v_add_f32_dpp v{y}, v{y}, v{y} {d} row_mask:0xf bank_mask:0xf bound_ctrl:1
            s_nop 0""")
        a(f"""v_add_f32_dpp v{x}, v{x}, v{x} row_bcast:15 row_mask:0xa bank_mask:0xf
        v_add_f32_dpp v{y}, v{y}, v{y} row_bcast:15 row_mask:0xa bank_mask:0xf
        s_nop 0
        v_add_f32_dpp v{x}, v{x}, v{x} row_bcast:31 row_mask:0xc bank_mask:0xf
        v_add_f32_dpp v{y}, v{y}, v{y} row_bcast:31 row_mask:0xc bank_mask:0xf""")

    if stamps: a("s_memrealtime s[62:63]")
    a(f"""
    s_cmp_ge_u32 s2, 256
    s_cbranch_scc1 L_exit
    s_load_dwordx16 s[4:19], s[0:1], 0
    s_load_dwordx8 s[20:27], s[0:1], 64
    s_load_dwordx2 s[28:29], s[0:1], 96
    v_lshrrev_b32 v1, 6, v0
    v_and_b32 v2, 63, v0
    s_and_b32 s30, s2, 7
    v_readfirstlane_b32 s32, v1
    s_lshr_b32 s31, s2, 3
    s_lshr_b32 s34, s31, 3
    s_and_b32 s35, s31, 7
    s_lshl_b32 s36, s30, 2
    s_add_u32 s36, s36, s34
    s_mov_b32 s33, {budget}
    v_mov_b32 v3, {PROG}
    s_cmp_lg_u32 s32, 0
    s_cbranch_scc1 L_notloader
    """)
    a(f"""
    s_setprio 3
    v_lshrrev_b32 v4, 3, v2
    v_and_b32 v5, 7, v2
    v_and_b32 v6, 2, v4
    v_xor_b32 v5, v5, v6
    v_lshlrev_b32 v5, 4, v5
    s_lshl_b32 s37, s34, 20
    s_lshl_b32 s38, s30, 10
    s_lshl_b32 s39, s35, 7
    s_add_u32 s37, s37, s38
    s_add_u32 s37, s37, s39
    v_lshl_add_u32 v10, v4, 13, v5
    v_add_u32 v10, s37, v10
    s_mul_i32 s37, s35, 64*3584
    s_lshl_b32 s38, s36, 7
    s_add_u32 s37, s37, s38
    v_mul_u32_u24 v11, 3584, v4
    v_add3_u32 v11, v11, v5, s37
    v_lshl_add_u32 v14, v4, 10, v5
    s_lshl_b32 s37, s36, 16
    s_add_u32 s37, s37, s39
    v_add_u32 v15, s37, v14
    s_lshl_b32 s37, s36, 17
    s_add_u32 s37, s37, s39
    v_add_u32 v14, s37, v14
    s_lshl_b32 s37, s30, 23
    s_lshl_b32 s38, s31, 15
    s_add_u32 s37, s37, s38
    s_add_u32 s37, s37, 0x700000
    v_lshrrev_b32 v4, 4, v2
    v_and_b32 v5, 15, v2
    v_xor_b32 v6, v5, v4
    v_lshlrev_b32 v6, 4, v6
    v_lshl_add_u32 v12, v4, 8, v6
    v_add_u32 v12, s37, v12
    v_lshlrev_b32 v6, 1, v4
    v_xor_b32 v6, v5, v6
    v_lshlrev_b32 v6, 4, v6
    v_lshl_add_u32 v13, v4, 8, v6
    v_add_u32 v13, s37, v13
    v_lshl_add_u32 v3, v2, 2, v3
    v_mov_b32 v4, 0
    ds_write_b32 v3, v4
    s_mov_b32 s40, 1
    s_waitcnt lgkmcnt(0)
    """)
    stamp()
    info = {"q": (10, 10, 65536), "1": (11, 16, 28672), "K": (12, 6, 1024), "V": (13, 8, 1024), "o": (14, 12, 8192), "2": (15, 20, 8192)}
    issued = 0
    for t in order:
        v, s, step = info[t]
        skip = lab("skip")
        if t in "12":
            a(f"s_cmp_ge_u32 s36, 28\ns_cbranch_scc1 {skip}")
        l = lab("ld")
        a(f"s_mov_b32 m0, {base[t]}")
        a(f"""{l}:
        s_waitcnt vmcnt({W-1})
        v_mov_b32 v4, m0
        global_load_lds_dwordx4 v{v}, s[{s}:{s+1}] {nt}
        ds_write_b32 v3, v4
        v_add_u32 v{v}, {step}, v{v}
        s_add_u32 m0, m0, {ST}
        s_cmp_lt_u32 m0, {base[t] + cnt[t] * ST}
        s_cbranch_scc1 {l}""")
        stamp()
        if t == order[0]:
            a("s_barrier")
        a(f"{skip}:")
    k = W - 1
    while k > 0:
        k = max(0, k - 4)
        a(f"""s_waitcnt vmcnt({k})
        s_add_u32 s37, m0, {(W - 1 - k) * ST}
        v_mov_b32 v4, s37
        ds_write_b32 v3, v4""")
    a("s_waitcnt lgkmcnt(0)")
    stamp()
    a("s_branch L_fin")
    def th(x): return x + (W - 1) * ST

    nst[0] = 0
    a(f"""L_notloader:
    s_waitcnt lgkmcnt(0)
    s_load_dword s37, s[28:29], 0
    s_cmp_eq_u32 s32, 5
    s_cbranch_scc1 L_aux
    """)
    a(f"""
    v_lshlrev_b32 v4, 4, v2
    global_load_dwordx4 v[8:11], v4, s[4:5]
    s_sub_u32 s32, s32, 1
    v_mov_b32 v4, 0
    v_mov_b32 v5, 0
    v_mov_b32 v6, 0
    v_mov_b32 v7, 0
    ds_write_b128 v3, v[4:7] offset:256
    ds_write_b128 v3, v[4:7] offset:272
    ds_write_b128 v3, v[4:7] offset:288
    v_and_b32 v20, 15, v2
    v_lshrrev_b32 v21, 4, v2
    v_lshrrev_b32 v22, 2, v20
    v_and_b32 v23, 3, v2
    """)
    a(f"""
    s_lshl_b32 s38, s32, 1
    v_lshrrev_b32 v4, 1, v23
    v_add_u32 v4, s38, v4
    v_and_b32 v5, 2, v22
    v_xor_b32 v4, v4, v5
    v_lshlrev_b32 v4, 4, v4
    v_and_b32 v5, 1, v23
    v_lshl_add_u32 v5, v5, 3, v4
    v_lshl_add_u32 v5, v22, 7, v5
    v_mul_u32_u24 v6, {ST}, v21
    v_add_u32 v24, v5, v6
    v_add_u32 v25, {base['o']}, v24
    """)
    a(f"""
    s_mul_i32 s38, s32, {8*ST}
    s_add_u32 s38, s38, {base['K']}
    v_xor_b32 v4, v21, v23
    v_lshlrev_b32 v4, 4, v4
    v_lshl_add_u32 v4, v23, 8, v4
    v_mul_u32_u24 v5, {ST}, v22
    v_add3_u32 v26, v4, v5, s38
    """)
    a(f"""
    s_lshl_b32 s38, s32, 2
    v_lshrrev_b32 v4, 1, v23
    v_add_u32 v4, s38, v4
    v_lshlrev_b32 v5, 1, v22
    v_xor_b32 v4, v4, v5
    v_lshlrev_b32 v4, 4, v4
    v_and_b32 v5, 1, v23
    v_lshl_add_u32 v4, v5, 3, v4
    v_lshl_add_u32 v4, v22, 8, v4
    v_xor_b32 v5, 32, v4
    v_mul_u32_u24 v6, {2*ST}, v21
    v_add_u32 v6, {base['V']}, v6
    v_add_u32 v27, v4, v6
    v_add_u32 v28, v5, v6
    s_waitcnt lgkmcnt(0)
    s_add_u32 s37, s37, 1
    s_mul_i32 s40, s37, 0x9E3779B1
    s_lshr_b32 s41, s40, 8
    s_lshr_b32 s42, s40, 16
    s_lshr_b32 s43, s40, 24
    s_barrier
    v_lshlrev_b32 v4, 3, v23
    v_lshrrev_b32 v29, v4, s40
    v_and_b32 v4, 1, v2
    v_lshlrev_b32 v4, 4, v4
    v_lshrrev_b32 v30, v4, s40
    v_lshrrev_b32 v31, 8, v30
    v_mov_b32 v19, 0xff
    """)
    stamp()
    def ln(src):
        a(f"""
        v_add_f32 v4, v{src}, v{src+1}
        v_mul_f32 v5, v{src}, v{src}
        v_fmac_f32 v5, v{src+1}, v{src+1}
        """)
        for i in range(2, 8):
            a(f"v_add_f32 v4, v4, v{src+i}\nv_fmac_f32 v5, v{src+i}, v{src+i}")
        a("s_nop 0")
        wave_sum2(4, 5)
        a(f"""s_nop 0
        v_readlane_b32 s38, v4, 63
        v_readlane_b32 s39, v5, 63
        s_nop 0
        v_mul_f32 v4, s38, v18
        v_mul_f32 v5, s39, v18
        v_fma_f32 v5, -v4, v4, v5
        v_max_f32 v5, 0, v5
        v_cvt_pk_bf16_f32 v4, v4, v5
        v_and_b32 v5, 0xffff0000, v4
        v_lshlrev_b32 v4, 16, v4
        v_add_f32 v5, 0x3727c5ac, v5
        v_cvt_pk_bf16_f32 v5, v5, v5
        v_and_b32 v5, 0xffff0000, v5
        v_sqrt_f32 v5, v5
        """)
        for i in range(8):
            a(f"v_sub_f32 v{src+i}, v{src+i}, v4")
        a(f"""v_cvt_pk_bf16_f32 v5, v5, v5
        v_and_b32 v5, 0xffff0000, v5
        v_rcp_f32 v5, v5""")
        for i in range(4):
            a(f"v_cvt_pk_bf16_f32 v{40+i}, v{src+2*i}, v{src+2*i+1}")
        for i in range(4):
            a(f"v_lshlrev_b32 v{src+2*i}, 16, v{40+i}\nv_and_b32 v{src+2*i+1}, 0xffff0000, v{40+i}")
        for i in range(8):
            a(f"v_mul_f32 v{src+i}, v{src+i}, v5")
        for i in range(4):
            a(f"v_cvt_pk_bf16_f32 v{40+i}, v{src+2*i}, v{src+2*i+1}")
    a(f"""v_mov_b32 v18, 0x3b000000
    v_lshlrev_b32 v16, 4, v2
    v_add_u32 v16, {XN}, v16
    s_lshl_b32 s38, s34, 8
    v_lshl_add_u32 v17, v21, 4, s38
    v_add_u32 v17, {XN}, v17
    s_waitcnt vmcnt(0)""")
    for i in range(4):
        a(f"v_lshlrev_b32 v{32+2*i}, 16, v{8+i}\nv_and_b32 v{33+2*i}, 0xffff0000, v{8+i}")
    ln(32)
    a("ds_write_b128 v16, v[40:43]")
    for i in range(4):
        a(f"v_lshlrev_b32 v{32+2*i}, 16, v{40+i}\nv_and_b32 v{33+2*i}, 0xffff0000, v{40+i}")
    for t in range(4):
        a(f"ds_read_b128 v[{48+4*t}:{51+4*t}], v17 offset:{64*t}")
    ln(32)
    a(f"""ds_write_b128 v16, v[40:43] offset:1024
    s_lshl_b32 s38, s35, 7
    v_lshl_add_u32 v17, v21, 4, s38
    v_add_u32 v17, {YN}, v17
    ds_read_b128 v[64:67], v17
    ds_read_b128 v[68:71], v17 offset:64
    """)
    a(f"""s_lshl_b32 s38, s30, 13
    s_lshl_b32 s39, s34, 11
    s_add_u32 s38, s38, s39
    s_lshl_b32 s39, s35, 8
    s_add_u32 s38, s38, s39
    s_lshl_b32 s44, s32, 6
    s_add_u32 s38, s38, s44
    s_add_u32 s38, s38, {QB}
    v_lshl_add_u32 v16, v20, 2, s38
    s_lshl_b32 s38, s36, 11
    s_add_u32 s38, s38, s39
    s_add_u32 s38, s38, s44
    s_add_u32 s38, s38, {HB}
    v_lshl_add_u32 v17, v20, 2, s38
    s_mov_b32 s45, {th(base['q'] + 16*ST)}
    """)
    nxt = order[order.index("q") + 1]
    if nxt == "1":
        a(f"s_cmp_ge_u32 s36, 28\ns_cselect_b32 s45, {th(base['q'] + 24*ST)}, s45")
    stamp()
    wait_prog("s45")
    stamp()
    for t in range(4):
        for rd in range(2):
            a(f"ds_read_b64_tr_b16 v[{72+4*t+2*rd}:{73+4*t+2*rd}], v24 offset:{base['q'] + t*4*ST + rd*512}")
    a("s_waitcnt lgkmcnt(0)")
    a("v_mfma_f32_16x16x32_bf16 v[4:7], v[48:51], v[72:75], 0")
    for t in range(1, 4):
        a(f"v_mfma_f32_16x16x32_bf16 v[4:7], v[{48+4*t}:{51+4*t}], v[{72+4*t}:{75+4*t}], v[4:7]")
    a(f"""s_mov_b64 exec, 0xffff
    s_nop 6
    v_bfi_b32 v4, v19, v29, v4
    global_store_dword v16, v4, s[28:29] sc1
    s_mov_b64 exec, -1
    """)
    stamp()
    def mlp1():
        a(f"""s_cmp_ge_u32 s36, 28
        s_cbranch_scc1 L_nomlp1""")
        wait_prog(th(base['1'] + 8*ST))
        for t in range(2):
            for rd in range(2):
                a(f"ds_read_b64_tr_b16 v[{72+4*t+2*rd}:{73+4*t+2*rd}], v24 offset:{base['1'] + t*4*ST + rd*512}")
        a(f"""s_waitcnt lgkmcnt(0)
        v_mfma_f32_16x16x32_bf16 v[4:7], v[64:67], v[72:75], 0
        v_mfma_f32_16x16x32_bf16 v[4:7], v[68:71], v[76:79], v[4:7]
        s_mov_b64 exec, 0xffff
        s_nop 6
        v_bfi_b32 v4, v19, v29, v4
        global_store_dword v17, v4, s[28:29] sc1
        s_mov_b64 exec, -1
        L_nomlp1:""")
    assert base['1'] + 4*ST + 512 + 3*ST + 512 < 65536
    mlp1()
    stamp()
    a(f"""s_lshl_b32 s38, s30, 13
    s_lshl_b32 s39, s32, 9
    s_add_u32 s38, s38, s39
    s_add_u32 s38, s38, {QB}
    v_lshl_add_u32 v16, v2, 3, s38
    v_add_u32 v17, 4096, v16
    s_mul_i32 s38, s32, 288
    s_add_u32 s38, s38, {QL}
    v_lshl_add_u32 v18, v2, 2, s38
    L_gq:
    global_load_dwordx2 v[32:33], v16, s[28:29] sc1
    global_load_dwordx2 v[34:35], v16, s[28:29] offset:2048 sc1
    global_load_dwordx2 v[36:37], v17, s[28:29] sc1
    global_load_dwordx2 v[38:39], v17, s[28:29] offset:2048 sc1
    s_sub_u32 s33, s33, 1
    s_cbranch_scc1 L_fin
    s_waitcnt vmcnt(0)
    v_xor_b32 v4, v32, v30
    v_bitop3_b32 v4, v4, v33, v31 bitop3:0xf6
    v_bitop3_b32 v4, v4, v34, v30 bitop3:0xf6
    v_bitop3_b32 v4, v4, v35, v31 bitop3:0xf6
    v_bitop3_b32 v4, v4, v36, v30 bitop3:0xf6
    v_bitop3_b32 v4, v4, v37, v31 bitop3:0xf6
    v_bitop3_b32 v4, v4, v38, v30 bitop3:0xf6
    v_bitop3_b32 v4, v4, v39, v31 bitop3:0xf6
    v_and_b32 v4, v19, v4
    v_cmp_ne_u32 vcc, 0, v4
    s_cbranch_vccnz L_gq
    L_gqe:
    s_waitcnt vmcnt(0)
    v_add_f32 v32, v32, v34
    v_add_f32 v33, v33, v35
    v_add_f32 v36, v36, v38
    v_add_f32 v37, v37, v39
    v_add_f32 v32, v32, v36
    v_add_f32 v33, v33, v37
    v_cvt_pk_bf16_f32 v32, v32, v33
    v_mov_b32 v5, 1
    s_lshl_b32 s44, s32, 2
    v_add_u32 v44, s44, v3
    ds_write_b32 v18, v32
    ds_write_b32 v44, v5 offset:256
    """)
    stamp()
    wait_prog(th(base['K'] + 32*ST))
    stamp()
    for u in range(2):
        for t in range(4):
            r = 72 + 16*u + 4*t
            a(f"ds_read_b128 v[{r}:{r+3}], v26 offset:{u*4*ST + t*64}")
    a(f"""v_mul_u32_u24 v17, 288, v23
    v_lshl_add_u32 v17, v21, 4, v17
    v_add_u32 v17, {QL}, v17""")
    wait_flags(0)
    for t in range(4):
        a(f"ds_read_b128 v[{48+4*t}:{51+4*t}], v17 offset:{64*t}")
    a(f"""s_lshl_b32 s38, s32, 7
    s_add_u32 s38, s38, {SL}
    v_mul_u32_u24 v16, 576, v23
    v_lshl_add_u32 v16, v21, 4, v16
    v_add_u32 v16, s38, v16
    v_mul_u32_u24 v17, 576, v22
    v_lshl_add_u32 v17, v23, 7, v17
    v_lshl_add_u32 v17, v21, 5, v17
    v_add_u32 v17, {SL}, v17
    s_waitcnt lgkmcnt(0)""")
    for t in range(4):
        for u in range(2):
            c = "0" if t == 0 else f"v[{32+4*u}:{35+4*u}]"
            a(f"v_mfma_f32_16x16x32_bf16 v[{32+4*u}:{35+4*u}], v[{72+16*u+4*t}:{75+16*u+4*t}], v[{48+4*t}:{51+4*t}], {c}")
    a(f"""s_mov_b32 exec_lo, 0x000f000f
    s_mov_b32 exec_hi, 0x000f000f
    v_mov_b32 v5, 1
    s_nop 4
    ds_write_b128 v16, v[32:35]
    ds_write_b128 v16, v[36:39] offset:64
    ds_write_b32 v44, v5 offset:272
    s_mov_b64 exec, -1""")
    stamp()
    wait_flags(16)
    SC = 0x3e0293ee
    a(f"""ds_read_b128 v[32:35], v17
    ds_read_b128 v[36:39], v17 offset:16
    s_mov_b32 s46, {SC}
    s_waitcnt lgkmcnt(0)
    v_max3_f32 v4, v32, v33, v34
    v_max3_f32 v5, v35, v36, v37
    v_max3_f32 v4, v4, v38, v39
    v_max_f32 v4, v4, v5
    s_nop 1
    v_max_f32_dpp v4, v4, v4 quad_perm:[1,0,3,2] row_mask:0xf bank_mask:0xf
    s_nop 1
    v_max_f32_dpp v4, v4, v4 quad_perm:[2,3,0,1] row_mask:0xf bank_mask:0xf
    v_mov_b32 v5, v4
    s_nop 1
    v_permlane16_swap_b32 v4, v5
    v_max_f32 v4, v4, v5
    v_mov_b32 v5, v4
    s_nop 1
    v_permlane32_swap_b32 v4, v5
    v_max_f32 v4, v4, v5
    v_mul_f32 v6, s46, v4""")
    for i in range(8):
        a(f"v_fma_f32 v{32+i}, v{32+i}, s46, -v6")
    for i in range(8):
        a(f"v_exp_f32 v{32+i}, v{32+i}")
    a(f"""v_add_f32 v4, v32, v33
    v_add_f32 v5, v34, v35
    v_add_f32 v7, v36, v37
    v_add_f32 v4, v4, v5
    v_add_f32 v5, v38, v39
    v_add_f32 v7, v7, v5
    v_add_f32 v4, v4, v7
    s_nop 1
    v_add_f32_dpp v4, v4, v4 quad_perm:[1,0,3,2] row_mask:0xf bank_mask:0xf
    s_nop 1
    v_add_f32_dpp v4, v4, v4 quad_perm:[2,3,0,1] row_mask:0xf bank_mask:0xf
    v_mov_b32 v5, v4
    s_nop 1
    v_permlane16_swap_b32 v4, v5
    v_add_f32 v4, v4, v5
    v_mov_b32 v5, v4
    s_nop 1
    v_permlane32_swap_b32 v4, v5
    v_add_f32 v4, v4, v5
    v_rcp_f32 v5, v4
    v_log_f32 v7, v4
    s_lshl_b32 s38, s30, 11
    s_lshl_b32 s39, s31, 4
    s_add_u32 s38, s38, s39
    s_add_u32 s38, s38, {LB}
    v_lshlrev_b32 v16, 9, v22
    v_lshl_add_u32 v16, v23, 2, v16
    v_add_u32 v16, s38, v16
    v_add_f32 v7, v7, v6
    v_bfi_b32 v7, v19, v29, v7
    s_cmp_lg_u32 s32, 0
    s_cbranch_scc1 L_nolam
    s_mov_b64 exec, 0xffff
    global_store_dword v16, v7, s[28:29] sc1
    s_mov_b64 exec, -1
    L_nolam:""")
    for i in range(8):
        a(f"v_mul_f32 v{32+i}, v{32+i}, v5")
    for i in range(4):
        a(f"v_cvt_pk_bf16_f32 v{40+i}, v{32+2*i}, v{33+2*i}")
    a("s_nop 0")
    for t in range(4):
        for i in range(4):
            a(f"v_mov_b32_dpp v{48+4*t+i}, v{40+i} quad_perm:[{t},{t},{t},{t}] row_mask:0xf bank_mask:0xf")
    a(f"""s_lshl_b32 s38, s30, 16
    s_lshl_b32 s39, s31, 9
    s_add_u32 s38, s38, s39
    s_lshl_b32 s39, s32, 7
    s_add_u32 s38, s38, s39
    s_add_u32 s38, s38, {OB}
    v_lshlrev_b32 v16, 14, v21
    v_lshl_add_u32 v16, v20, 3, v16
    v_add_u32 v16, s38, v16""")
    stamp()
    for t in range(4):
        wait_prog(th(base['V'] + 8*(t+1)*ST))
        for ntile in range(2):
            for rd in range(2):
                r = 72 + 4*ntile + 2*rd
                a(f"ds_read_b64_tr_b16 v[{r}:{r+1}], v{27+ntile} offset:{t*8*ST + rd*ST}")
        a("s_waitcnt lgkmcnt(0)")
        for ntile in range(2):
            c = "0" if t == 0 else f"v[{32+4*ntile}:{35+4*ntile}]"
            a(f"v_mfma_f32_16x16x32_bf16 v[{32+4*ntile}:{35+4*ntile}], v[{48+4*t}:{51+4*t}], v[{72+4*ntile}:{75+4*ntile}], {c}")
    a(f"""s_lshl_b32 s38, s36, 14
    s_lshl_b32 s39, s32, 12
    s_add_u32 s38, s38, s39
    s_add_u32 s38, s38, {OB}
    v_lshrrev_b32 v6, 5, v2
    v_and_b32 v7, 31, v2
    v_lshlrev_b32 v17, 11, v6
    v_lshl_add_u32 v17, v7, 4, v17
    v_add_u32 v17, s38, v17
    v_bfi_b32 v4, v19, v30, v32
    v_bfi_b32 v5, v19, v31, v36
    global_store_dwordx2 v16, v[4:5], s[28:29] sc1""")
    stamp()
    a(f"""s_mul_i32 s38, s32, 576
    s_add_u32 s38, s38, {AL}
    v_mul_u32_u24 v16, 288, v6
    v_lshrrev_b32 v18, 3, v7
    v_lshl_add_u32 v16, v18, 6, v16
    v_and_b32 v18, 7, v7
    v_lshl_add_u32 v16, v18, 2, v16
    v_add_u32 v16, s38, v16
    s_lshl_b32 s38, s32, 5
    s_add_u32 s38, s38, {WL}
    v_lshl_add_u32 v18, v6, 4, s38""")
    l = lab("ww"); e = lab("wwe")
    a(f"""{l}:
    ds_read_b32 v4, v3 offset:288
    s_sub_u32 s33, s33, 1
    s_cbranch_scc1 L_fin
    s_waitcnt lgkmcnt(0)
    v_cmp_eq_u32 vcc, 0, v4
    s_cbranch_vccnz {l}
    {e}:
    ds_read_b128 v[44:47], v18
    L_go:""")
    for i in range(4):
        a(f"global_load_dwordx4 v[{48+4*i}:{51+4*i}], v17, s[28:29] offset:{512*i} sc1")
    a(f"""s_sub_u32 s33, s33, 1
    s_cbranch_scc1 L_fin
    s_waitcnt vmcnt(0)
    v_xor_b32 v4, s40, v48""")
    for i in range(1, 16):
        a(f"v_bitop3_b32 v4, v4, v{48+i}, s{40+(i&3)} bitop3:0xf6")
    a(f"""v_and_b32 v4, v19, v4
    v_cmp_ne_u32 vcc, 0, v4
    s_cbranch_vccnz L_go
    L_goe:
    s_waitcnt vmcnt(0) lgkmcnt(0)""")
    stamp()
    for j in range(4):
        a(f"v_mul_f32 v{32+j}, v44, v{48+j}")
    for i in range(1, 4):
        for j in range(4):
            a(f"v_fmac_f32 v{32+j}, v{44+i}, v{48+4*i+j}")
    a(f"""v_cvt_pk_bf16_f32 v4, v32, v34
    v_cvt_pk_bf16_f32 v5, v33, v35
    v_and_b32 v6, 7, v2
    v_mul_u32_u24 v17, 288, v6
    v_lshl_add_u32 v17, v21, 4, v17
    v_add_u32 v17, {AL}, v17
    ds_write2_b32 v16, v4, v5 offset0:0 offset1:8
    v_lshlrev_b32 v18, 4, v21
    v_add_u32 v18, {HL}, v18
    s_lshl_b32 s38, s35, 14
    s_lshl_b32 s39, s36, 9
    s_add_u32 s38, s38, s39
    s_lshl_b32 s39, s32, 7
    s_add_u32 s38, s38, s39
    s_add_u32 s38, s38, {FB}
    v_lshl_add_u32 v16, v20, 3, s38
    s_waitcnt lgkmcnt(0)
    s_barrier""")
    stamp()
    for t in range(4):
        a(f"ds_read_b128 v[{48+4*t}:{51+4*t}], v17 offset:{64*t}")
        for rd in range(2):
            a(f"ds_read_b64_tr_b16 v[{72+4*t+2*rd}:{73+4*t+2*rd}], v25 offset:{t*4*ST + rd*512}")
    o2 = base['2'] - base['o']
    assert o2 > 0
    a(f"""v_mov_b32 v36, 0
    s_cmp_ge_u32 s36, 28
    s_cbranch_scc1 L_nomlp2
    ds_read_b128 v[64:67], v18
    ds_read_b128 v[68:71], v18 offset:64""")
    for t in range(2):
        for rd in range(2):
            a(f"ds_read_b64_tr_b16 v[{88+4*t+2*rd}:{89+4*t+2*rd}], v25 offset:{o2 + t*4*ST + rd*512}")
    a(f"""s_waitcnt lgkmcnt(0)
    v_mfma_f32_16x16x32_bf16 v[36:39], v[64:67], v[88:91], 0
    v_mfma_f32_16x16x32_bf16 v[36:39], v[68:71], v[92:95], v[36:39]
    L_nomlp2:
    s_waitcnt lgkmcnt(0)
    v_mfma_f32_16x16x32_bf16 v[32:35], v[48:51], v[72:75], 0""")
    for t in range(1, 4):
        a(f"v_mfma_f32_16x16x32_bf16 v[32:35], v[{48+4*t}:{51+4*t}], v[{72+4*t}:{75+4*t}], v[32:35]")
    a(f"""s_nop 7
    v_add_f32 v4, v32, v33
    v_add_f32 v5, v34, v35
    v_add_f32 v4, v4, v5
    v_mov_b32 v6, v4
    v_bfi_b32 v5, v19, v31, v36
    s_nop 0
    v_permlane16_swap_b32 v4, v6
    v_add_f32 v4, v4, v6
    s_mov_b64 exec, 0xffff
    v_bfi_b32 v4, v19, v30, v4
    global_store_dwordx2 v16, v[4:5], s[28:29] sc1""")
    stamp()
    a("s_branch L_fin")

    nst[0] = 0
    a(f"""L_aux:
    s_lshl_b32 s38, s36, 7
    v_lshl_add_u32 v4, v2, 1, s38
    s_cmp_ge_u32 s36, 28
    s_cbranch_scc1 L_aux0
    global_load_ushort v8, v4, s[18:19]
    L_aux0:
    s_lshl_b32 s38, s2, 3
    s_and_b32 s38, s38, 0x3ff
    v_lshrrev_b32 v20, 5, v2
    v_and_b32 v21, 1, v2
    v_lshlrev_b32 v4, 2, v20
    v_lshl_add_u32 v4, v21, 1, v4
    v_add_u32 v12, s38, v4
    global_load_ushort v9, v12, s[4:5]
    global_load_ushort v10, v12, s[22:23]
    s_waitcnt lgkmcnt(0)
    s_add_u32 s37, s37, 1
    s_mul_i32 s40, s37, 0x9E3779B1
    s_lshr_b32 s41, s40, 8
    s_lshr_b32 s42, s40, 16
    s_lshr_b32 s43, s40, 24
    s_barrier
    v_and_b32 v4, 3, v2
    v_lshlrev_b32 v4, 3, v4
    v_lshrrev_b32 v29, v4, s40
    v_mov_b32 v19, 0xff
    s_cmp_ge_u32 s36, 28
    s_cbranch_scc1 L_aux1
    s_lshl_b32 s38, s36, 11
    s_add_u32 s38, s38, {HB}
    v_lshl_add_u32 v16, v2, 2, s38
    L_gh:""")
    for p in range(8):
        a(f"global_load_dword v{32+p}, v16, s[28:29] offset:{256*p} sc1")
    a(f"""s_sub_u32 s33, s33, 1
    s_cbranch_scc1 L_fin
    s_waitcnt vmcnt(0)
    v_xor_b32 v4, v32, v29""")
    for p in range(1, 8):
        a(f"v_bitop3_b32 v4, v4, v{32+p}, v29 bitop3:0xf6")
    C1 = 0xc0135761
    C2 = 0xbdd2d3e8
    a(f"""v_and_b32 v4, v19, v4
    v_cmp_ne_u32 vcc, 0, v4
    s_cbranch_vccnz L_gh
    L_ghe:
    s_waitcnt vmcnt(0)
    v_add_f32 v32, v32, v33
    v_add_f32 v34, v34, v35
    v_add_f32 v36, v36, v37
    v_add_f32 v38, v38, v39
    v_add_f32 v32, v32, v34
    v_add_f32 v36, v36, v38
    v_add_f32 v32, v32, v36
    v_cvt_pk_bf16_f32 v32, v32, v32
    v_and_b32 v32, 0xffff0000, v32
    v_lshlrev_b32 v8, 16, v8
    v_add_f32 v32, v32, v8
    v_cvt_pk_bf16_f32 v32, v32, v32
    v_and_b32 v32, 0xffff0000, v32
    v_mul_f32 v33, v32, v32
    v_mov_b32 v34, {C1}
    v_fmac_f32 v34, {C2}, v33
    v_mul_f32 v33, v34, v32
    v_exp_f32 v33, v33
    v_lshlrev_b32 v5, 1, v2
    v_add_f32 v33, 1.0, v33
    v_rcp_f32 v33, v33
    v_add_u32 v5, {HL}, v5
    v_mul_f32 v32, v32, v33
    v_cvt_pk_bf16_f32 v32, v32, v32
    ds_write_b16 v5, v32
    L_aux1:""")
    stamp()
    a(f"""s_lshl_b32 s38, s36, 9
    s_add_u32 s38, s38, {LB}
    v_and_b32 v22, 31, v2
    v_lshl_add_u32 v16, v22, 4, s38
    L_gl:
    global_load_dwordx4 v[32:35], v16, s[28:29] sc1
    s_sub_u32 s33, s33, 1
    s_cbranch_scc1 L_fin
    s_waitcnt vmcnt(0)
    v_xor_b32 v4, s40, v32
    v_bitop3_b32 v4, v4, v33, s41 bitop3:0xf6
    v_bitop3_b32 v4, v4, v34, s42 bitop3:0xf6
    v_bitop3_b32 v4, v4, v35, s43 bitop3:0xf6
    v_and_b32 v4, v19, v4
    v_cmp_ne_u32 vcc, 0, v4
    s_cbranch_vccnz L_gl
    L_gle:
    s_waitcnt vmcnt(0)
    v_mov_b32 v4, v32
    s_nop 1""")
    for d in (1, 2, 4, 8):
        a(f"v_max_f32_dpp v4, v4, v4 row_ror:{d} row_mask:0xf bank_mask:0xf\ns_nop 1")
    a(f"""v_mov_b32 v5, v4
    s_nop 1
    v_permlane16_swap_b32 v4, v5
    v_max_f32 v4, v4, v5
    v_sub_f32 v32, v32, v4
    v_exp_f32 v32, v32
    s_nop 0
    v_mov_b32 v4, v32
    s_nop 1""")
    for d in (1, 2, 4, 8):
        a(f"v_add_f32_dpp v4, v4, v4 row_ror:{d} row_mask:0xf bank_mask:0xf\ns_nop 1")
    a(f"""v_mov_b32 v5, v4
    s_nop 1
    v_permlane16_swap_b32 v4, v5
    v_add_f32 v4, v4, v5
    v_rcp_f32 v4, v4
    v_lshlrev_b32 v5, 2, v22
    v_add_u32 v5, {WL}, v5
    v_mul_f32 v32, v32, v4
    v_mov_b32 v6, 1
    ds_write_b32 v5, v32
    ds_write_b32 v3, v6 offset:288
    s_lshr_b32 s38, s2, 4
    s_lshl_b32 s38, s38, 14
    s_and_b32 s39, s2, 15
    s_lshl_b32 s39, s39, 5
    s_add_u32 s38, s38, s39
    s_add_u32 s38, s38, {FB}
    v_lshlrev_b32 v16, 9, v22
    v_lshl_add_u32 v16, v20, 4, v16
    v_add_u32 v16, s38, v16
    v_lshlrev_b32 v9, 16, v9
    v_lshlrev_b32 v10, 16, v10
    v_cmp_eq_u32 s[46:47], 1, v21
    s_waitcnt lgkmcnt(0)""")
    stamp()
    a(f"""s_barrier
    s_cmp_ge_u32 s2, 128
    s_cbranch_scc1 L_fin""")
    stamp()
    a(f"""L_gf:
    global_load_dwordx4 v[32:35], v16, s[28:29] sc1
    s_sub_u32 s33, s33, 1
    s_cbranch_scc1 L_fin
    s_waitcnt vmcnt(0)
    v_xor_b32 v4, s40, v32
    v_bitop3_b32 v4, v4, v33, s41 bitop3:0xf6
    v_bitop3_b32 v4, v4, v34, s42 bitop3:0xf6
    v_bitop3_b32 v4, v4, v35, s43 bitop3:0xf6
    v_and_b32 v4, v19, v4
    v_cmp_ne_u32 vcc, 0, v4
    s_cbranch_vccnz L_gf
    L_gfe:
    s_waitcnt vmcnt(0)""")
    stamp()
    for d in (1, 2, 4, 8):
        for i in range(4):
            a(f"v_add_f32_dpp v{32+i}, v{32+i}, v{32+i} row_ror:{d} row_mask:0xf bank_mask:0xf")
    for i in range(4):
        a(f"v_add_f32_dpp v{32+i}, v{32+i}, v{32+i} row_bcast:15 row_mask:0xa bank_mask:0xf")
    a(f"""v_cndmask_b32 v32, v32, v34, s[46:47]
    v_cndmask_b32 v33, v33, v35, s[46:47]
    v_cvt_pk_bf16_f32 v32, v32, v33
    v_and_b32 v33, 0xffff0000, v32
    v_lshlrev_b32 v32, 16, v32
    v_add_f32 v33, v33, v10
    v_cvt_pk_bf16_f32 v33, v33, v33
    v_and_b32 v33, 0xffff0000, v33
    v_mul_f32 v34, 0xbfb8aa3b, v33
    v_exp_f32 v34, v34
    s_mov_b32 exec_lo, 0x00030000
    v_add_f32 v34, 1.0, v34
    v_rcp_f32 v34, v34
    s_mov_b32 exec_hi, 0x00030000
    v_mul_f32 v33, v33, v34
    v_cvt_pk_bf16_f32 v33, v33, v33
    v_and_b32 v33, 0xffff0000, v33
    v_mul_f32 v32, v32, v33
    v_cvt_pk_bf16_f32 v32, v32, v32
    v_and_b32 v32, 0xffff0000, v32
    v_add_f32 v32, v32, v9
    v_cvt_pk_bf16_f32 v32, v32, v32
    global_store_short v12, v32, s[24:25] sc1
    s_cmp_lg_u32 s2, 0
    s_cbranch_scc1 L_fin
    v_mov_b32 v4, 0
    v_mov_b32 v5, s37
    s_mov_b64 exec, 0x10000
    global_store_dword v4, v5, s[28:29] sc1""")
    a("L_fin:")
    if stamps:
        a("s_memrealtime s[94:95]")
        a("s_mov_b64 exec, -1\ns_waitcnt lgkmcnt(0)\nv_mov_b32 v5, 0\nv_writelane_b32 v5, s62, 0")
        for i in range(16):
            a(f"v_writelane_b32 v5, s{64+2*i}, {i+1}")
        a(f"""v_writelane_b32 v5, s33, 17
        s_getreg_b32 s38, hwreg(HW_REG_XCC_ID)
        v_writelane_b32 v5, s38, 18
        v_lshrrev_b32 v1, 6, v0
        s_lshl_b32 s38, s2, 10
        s_add_u32 s38, s38, {TS_OFF}
        v_lshlrev_b32 v4, 7, v1
        v_lshl_add_u32 v4, v2, 2, v4
        v_add_u32 v4, s38, v4
        s_mov_b64 exec, 0xffffffff
        global_store_dword v4, v5, s[28:29]""")
    a("L_exit:")
    body = "\n".join(("" if x.endswith(":") else "    ") + x for x in L)
    return f"""{HEADER}; @launch grid=(256,1,1) block=(384,1,1) lds={LDS_TOTAL}
.amdgcn_target "amdgcn-amd-amdhsa--gfx950"
.text
.globl {KN}_kernel
.p2align 8
.type {KN}_kernel,@function
{KN}_kernel:
{body}
    s_endpgm
.section .rodata,"a"
.p2align 6
.amdhsa_kernel {KN}_kernel
  .amdhsa_next_free_vgpr 104
  .amdhsa_next_free_sgpr 96
  .amdhsa_accum_offset 104
  .amdhsa_group_segment_fixed_size 0
  .amdhsa_kernarg_size 104
  .amdhsa_user_sgpr_count 2
  .amdhsa_user_sgpr_kernarg_segment_ptr 1
  .amdhsa_system_sgpr_workgroup_id_x 1
.end_amdhsa_kernel
"""
if __name__ == "__main__":
    import argparse, json
    ap = argparse.ArgumentParser()
    ap.add_argument("out"); ap.add_argument("--kw", default="{}")
    x = ap.parse_args()
    open(x.out, "w").write(gen(**json.loads(x.kw)))
```

```python
import sys
KN = "recurrent_scan__sliding_block_cached__mixer_channel_mlp__decode"
HEADER = open("cdna_kernels/%s.s.ref" % KN).read().split("; Override launch")[0]

ST = 1088
QB, HB, LB, OB, FB = 0x10000, 0x20000, 0x30000, 0x40000, 0xC0000
TS_OFF = 0x8000000
DL = 0x100000

def gen(W=24, nt="nt", stamps=False, order="q1KVo2", budget=20000, pace_q=24, pace_h=40, pace_o=88,
        warm=False, l2pre=True, outflag="sc1", qhint=False, dual=True, pretouch=True, KSW=64, remap=True):
    L = []
    def a(s):
        for x in s.split("\n"):
            x = x.strip()
            if x: L.append(x)
    cnt = {"q": 16, "1": 8, "K": 32, "V": 32, "o": 16, "2": 8}
    idx = {}; p = 0
    for t in order:
        idx[t] = p; p += cnt[t]
    NL = p
    base = {t: idx[t] * ST for t in order}
    END = NL * ST
    PROG = END
    FLG = PROG + 256
    XN = FLG + 64
    YN = XN + 1024
    QL = YN + 1024
    SL = QL + 4 * 288
    WL = SL + 4 * 576
    AL = WL + 128
    HL = AL + 8 * 288
    LDS_TOTAL = HL + 128
    assert LDS_TOTAL <= 163840
    bounds = sorted(set([idx['q'] + 16, idx['1'] + 8, idx['K'] + 32] + [idx['V'] + 8 * (t + 1) for t in range(4)]
                        + [pace_q, pace_h, pace_o, NL]))
    nst = [0]
    def stamp():
        if stamps:
            a(f"s_memrealtime s[{64+2*nst[0]}:{65+2*nst[0]}]")
        nst[0] += 1
        assert nst[0] <= 15
    uid = [0]
    pads = []
    def lab(p):
        uid[0] += 1
        return f"L_{p}{uid[0]}"
    def tmo(pad=False):
        a("s_sub_u32 s33, s33, 1")
        if pad:
            l = lab("pad"); pads.append(l); a(f"{l}:")
        a("s_cbranch_scc1 L_tmo")
    def wait_prog(th, pad=False):
        l = lab("wp")
        a(f"{l}:\nds_read_b32 v4, v3")
        tmo(pad)
        a(f"""s_waitcnt lgkmcnt(0)
        v_cmp_gt_u32 vcc, {th}, v4
        s_cbranch_vccnz {l}""")
    def wait_flags(off, pad=False):
        l = lab("wf")
        a(f"{l}:\nds_read_b128 v[4:7], v3 offset:{256+off}")
        tmo(pad)
        a(f"""s_waitcnt lgkmcnt(0)
        v_bitop3_b32 v4, v4, v5, v6 bitop3:0x80
        v_and_b32 v4, v4, v7
        v_cmp_eq_u32 vcc, 0, v4
        s_cbranch_vccnz {l}""")
    def wait_flag1(off, pad=False):
        l = lab("w1")
        a(f"{l}:\nds_read_b32 v4, v3 offset:{256+off}")
        tmo(pad)
        a(f"""s_waitcnt lgkmcnt(0)
        v_cmp_eq_u32 vcc, 0, v4
        s_cbranch_vccnz {l}""")
    def attempts(i):
        if stamps: a(f"s_add_u32 s{56+i}, s{56+i}, 1")
    def publish(op, vaddr, data):
        if dual:
            a(f"""{op} v{vaddr}, {data}, s[28:29]
            {op} v{vaddr}, {data}, s[26:27] sc1""")
        else:
            a(f"{op} v{vaddr}, {data}, s[28:29] sc1")
    def retry_head(name, vaddrs):
        if dual:
            a(f"""s_mov_b32 s47, {KSW}
            s_branch L_{name}_t
            L_{name}:
            s_sub_u32 s47, s47, 1
            s_cselect_b32 s39, {DL}, 0""")
            for v in vaddrs: a(f"v_add_u32 v{v}, s39, v{v}")
            a(f"L_{name}_t:")
        else:
            a(f"L_{name}:")
    def wave_sum2(x, y):
        for d in ("row_shr:1", "row_shr:2", "row_shr:4", "row_shr:8"):
            a(f"""v_add_f32_dpp v{x}, v{x}, v{x} {d} row_mask:0xf bank_mask:0xf bound_ctrl:1
            v_add_f32_dpp v{y}, v{y}, v{y} {d} row_mask:0xf bank_mask:0xf bound_ctrl:1
            s_nop 0""")
        a(f"""v_add_f32_dpp v{x}, v{x}, v{x} row_bcast:15 row_mask:0xa bank_mask:0xf
        v_add_f32_dpp v{y}, v{y}, v{y} row_bcast:15 row_mask:0xa bank_mask:0xf
        s_nop 0
        v_add_f32_dpp v{x}, v{x}, v{x} row_bcast:31 row_mask:0xc bank_mask:0xf
        v_add_f32_dpp v{y}, v{y}, v{y} row_bcast:31 row_mask:0xc bank_mask:0xf""")

    if stamps: a("s_memrealtime s[62:63]")
    a(f"""
    s_load_dwordx16 s[4:19], s[0:1], 0
    s_load_dwordx8 s[20:27], s[0:1], 64
    s_load_dwordx2 s[28:29], s[0:1], 96
    v_readfirstlane_b32 s32, v0
    s_lshr_b32 s31, s2, 3
    s_cmp_ge_u32 s31, 32
    s_cbranch_scc1 L_exit
    s_and_b32 s30, s2, 7
    s_lshr_b32 s34, s31, 3
    s_and_b32 s35, s31, 7
    s_cmpk_eq_u32 s32, 320
    s_cbranch_scc1 L_aux
    s_cmp_lg_u32 s32, 0
    s_cbranch_scc1 L_notloader
    """)
    assert order[0] == "q"
    a(f"""
    v_lshrrev_b32 v4, 3, v0
    v_and_b32 v5, 7, v0
    v_and_b32 v6, 2, v4
    v_xor_b32 v5, v5, v6
    v_lshlrev_b32 v5, 4, v5
    s_lshl_b32 s37, s34, 20
    s_lshl_b32 s38, s30, 10
    s_lshl_b32 s39, s35, 7
    s_add_u32 s37, s37, s38
    s_add_u32 s37, s37, s39
    v_lshl_add_u32 v10, v4, 13, v5
    v_add_u32 v10, s37, v10
    s_movk_i32 s50, {ST}
    s_lshl_b32 s51, 1, 16
    s_mov_b32 m0, 0
    s_setprio 3
    s_waitcnt lgkmcnt(0)
    """)
    stamp()
    info = {"q": (10, 10, 51), "1": (11, 16, 52), "K": (12, 6, 53), "V": (13, 8, 53), "o": (14, 12, 54), "2": (15, 20, 54)}
    setup = {
        "1": f"""s_mul_i32 s37, s35, 64*3584
        s_lshl_b32 s38, s46, 7
        s_add_u32 s37, s37, s38
        v_mul_u32_u24 v11, 3584, v4
        v_add3_u32 v11, v11, v5, s37
        s_movk_i32 s52, 28672""",
        "K": f"""s_lshl_b32 s37, s30, 23
        s_lshl_b32 s38, s31, 15
        s_add_u32 s37, s37, s38
        s_add_u32 s47, s37, 0x700000
        v_lshrrev_b32 v8, 4, v0
        v_and_b32 v9, 15, v0
        v_xor_b32 v6, v9, v8
        v_lshlrev_b32 v6, 4, v6
        v_lshl_add_u32 v12, v8, 8, v6
        v_add_u32 v12, s47, v12
        s_movk_i32 s53, 1024""",
        "V": f"""v_lshlrev_b32 v6, 1, v8
        v_xor_b32 v6, v9, v6
        v_lshlrev_b32 v6, 4, v6
        v_lshl_add_u32 v13, v8, 8, v6
        v_add_u32 v13, s47, v13""",
        "o": f"""v_lshl_add_u32 v14, v4, 10, v5
        s_lshl_b32 s37, s36, 17
        s_add_u32 s37, s37, s39
        v_add_u32 v14, s37, v14
        s_movk_i32 s54, 8192""",
        "2": f"""v_lshl_add_u32 v15, v4, 10, v5
        s_lshl_b32 s37, s46, 16
        s_add_u32 s37, s37, s39
        v_add_u32 v15, s37, v15
        s_movk_i32 s54, 8192""",
    }
    assert order.index("K") < order.index("V")
    def postq():
        a(f"""s_lshl_b32 s36, s30, 2
        s_add_u32 s36, s36, s34
        s_min_u32 s46, s36, 27
        s_cmp_lt_u32 s36, 28
        s_cselect_b64 s[48:49], -1, 1
        v_mov_b32 v3, {PROG}
        v_lshl_add_u32 v3, v0, 2, v3""")
    n = 0
    did_barrier = False
    for t in order:
        v, s, step = info[t]
        if t != "q": a(setup[t])
        if t in "12": a("s_mov_b64 exec, s[48:49]")
        for i in range(cnt[t]):
            if n == W and W < 16: postq()
            if n == min(W, NL) and not did_barrier:
                a("s_barrier"); did_barrier = True
            if n >= W:
                a(f"s_waitcnt vmcnt({W-1})")
                if n - W + 1 in bounds:
                    a(f"v_mov_b32 v7, {n-W+1}\nds_write_b32 v3, v7")
            a(f"global_load_lds_dwordx4 v{v}, s[{s}:{s+1}] {nt}")
            if n < NL - 1: a("s_add_u32 m0, m0, s50")
            if i < cnt[t] - 1: a(f"v_add_u32 v{v}, s{step}, v{v}")
            n += 1
        if t in "12": a("s_mov_b64 exec, -1")
        if t == "q" and W >= 16: postq()
        stamp()
    for b in bounds:
        if b > NL - W:
            a(f"s_waitcnt vmcnt({NL-b})\nv_mov_b32 v7, {b}\nds_write_b32 v3, v7")
    stamp()
    a("s_branch L_fin")

    nst[0] = 0
    def common():
        a(f"""v_and_b32 v2, 63, v0
        s_lshl_b32 s36, s30, 2
        s_add_u32 s36, s36, s34
        s_mov_b32 s33, {budget}
        s_mov_b32 s55, 0
        v_mov_b32 v3, {PROG}
        """)
        if stamps: a("s_mov_b64 s[56:57], 0\ns_mov_b64 s[58:59], 0")
    a("L_notloader:\ns_lshr_b32 s32, s32, 6")
    common()
    a(f"""
    v_lshlrev_b32 v16, 4, v2
    s_sub_u32 s32, s32, 1
    v_and_b32 v20, 15, v2
    v_lshrrev_b32 v21, 4, v2
    v_lshrrev_b32 v22, 2, v20
    v_and_b32 v23, 3, v2
    s_waitcnt lgkmcnt(0)
    global_load_dwordx4 v[8:11], v16, s[4:5]
    """)
    a("@WARMC@")
    a(f"""
    s_lshl_b32 s38, s32, 1
    v_lshrrev_b32 v7, 1, v23
    v_add_u32 v4, s38, v7
    v_and_b32 v5, 2, v22
    v_xor_b32 v4, v4, v5
    v_lshlrev_b32 v4, 4, v4
    v_and_b32 v12, 1, v23
    v_lshl_add_u32 v5, v12, 3, v4
    v_lshl_add_u32 v5, v22, 7, v5
    v_mul_u32_u24 v6, {ST}, v21
    v_add_u32 v24, v5, v6
    v_add_u32 v25, {base['o']}, v24
    s_mul_i32 s38, s32, {8*ST}
    s_add_u32 s38, s38, {base['K']}
    v_xor_b32 v4, v21, v23
    v_lshlrev_b32 v4, 4, v4
    v_lshl_add_u32 v4, v23, 8, v4
    v_mul_u32_u24 v5, {ST}, v22
    v_add3_u32 v26, v4, v5, s38
    s_lshl_b32 s38, s32, 2
    v_add_u32 v4, s38, v7
    v_lshlrev_b32 v5, 1, v22
    v_xor_b32 v4, v4, v5
    v_lshlrev_b32 v4, 4, v4
    v_lshl_add_u32 v4, v12, 3, v4
    v_lshl_add_u32 v4, v22, 8, v4
    v_xor_b32 v5, 32, v4
    v_lshlrev_b32 v6, 1, v6
    v_add_u32 v6, {base['V']}, v6
    v_add_u32 v27, v4, v6
    v_add_u32 v28, v5, v6
    v_add_u32 v44, s38, v3
    v_mov_b32 v19, 0xff
    v_mov_b32 v18, 0x3b000000
    v_add_u32 v16, {XN}, v16
    s_lshl_b32 s38, s34, 8
    v_lshl_add_u32 v17, v21, 4, s38
    v_add_u32 v17, {XN}, v17
    s_lshl_b32 s38, s30, 13
    s_lshl_b32 s39, s34, 11
    s_add_u32 s38, s38, s39
    s_lshl_b32 s39, s35, 8
    s_add_u32 s38, s38, s39
    s_lshl_b32 s44, s32, 6
    s_add_u32 s38, s38, s44
    s_add_u32 s38, s38, {QB}
    v_lshl_add_u32 v12, v20, 2, s38
    s_lshl_b32 s38, s36, 11
    s_add_u32 s38, s38, s39
    s_add_u32 s38, s38, s44
    s_add_u32 s38, s38, {HB}
    v_lshl_add_u32 v13, v20, 2, s38
    s_lshl_b32 s38, s30, 16
    s_lshl_b32 s39, s31, 9
    s_add_u32 s38, s38, s39
    s_lshl_b32 s44, s32, 7
    s_add_u32 s38, s38, s44
    s_add_u32 s38, s38, {OB}
    v_lshlrev_b32 v46, 14, v21
    v_lshl_add_u32 v46, v20, 3, v46
    v_add_u32 v46, s38, v46
    s_add_u32 s26, s28, {DL}
    s_addc_u32 s27, s29, 0
    """)
    if pretouch:
        a("""global_load_dword v96, v12, s[28:29] sc1
        global_load_dword v97, v13, s[28:29] sc1
        global_load_dword v98, v46, s[28:29] sc1""")
    a("s_barrier")
    stamp()
    def ln(src):
        a(f"""
        v_add_f32 v4, v{src}, v{src+1}
        v_mul_f32 v5, v{src}, v{src}
        v_fmac_f32 v5, v{src+1}, v{src+1}
        """)
        for i in range(2, 8):
            a(f"v_add_f32 v4, v4, v{src+i}\nv_fmac_f32 v5, v{src+i}, v{src+i}")
        a("s_nop 0")
        wave_sum2(4, 5)
        a(f"""s_nop 0
        v_readlane_b32 s38, v4, 63
        v_readlane_b32 s39, v5, 63
        s_nop 0
        v_mul_f32 v4, s38, v18
        v_mul_f32 v5, s39, v18
        v_fma_f32 v5, -v4, v4, v5
        v_max_f32 v5, 0, v5
        v_cvt_pk_bf16_f32 v4, v4, v5
        v_and_b32 v5, 0xffff0000, v4
        v_lshlrev_b32 v4, 16, v4
        v_add_f32 v5, 0x3727c5ac, v5
        v_cvt_pk_bf16_f32 v5, v5, v5
        v_and_b32 v5, 0xffff0000, v5
        v_sqrt_f32 v5, v5
        """)
        for i in range(8):
            a(f"v_sub_f32 v{src+i}, v{src+i}, v4")
        a(f"""v_cvt_pk_bf16_f32 v5, v5, v5
        v_and_b32 v5, 0xffff0000, v5
        v_rcp_f32 v5, v5""")
        for i in range(4):
            a(f"v_cvt_pk_bf16_f32 v{40+i}, v{src+2*i}, v{src+2*i+1}")
        for i in range(4):
            a(f"v_lshlrev_b32 v{src+2*i}, 16, v{40+i}\nv_and_b32 v{src+2*i+1}, 0xffff0000, v{40+i}")
        for i in range(8):
            a(f"v_mul_f32 v{src+i}, v{src+i}, v5")
        for i in range(4):
            a(f"v_cvt_pk_bf16_f32 v{40+i}, v{src+2*i}, v{src+2*i+1}")
    a(f"s_waitcnt vmcnt({3 if pretouch else 0})")
    for i in range(4):
        a(f"v_lshlrev_b32 v{32+2*i}, 16, v{8+i}\nv_and_b32 v{33+2*i}, 0xffff0000, v{8+i}")
    ln(32)
    a("ds_write_b128 v16, v[40:43]")
    for t in range(4):
        a(f"ds_read_b128 v[{48+4*t}:{51+4*t}], v17 offset:{64*t}")
    for i in range(4):
        a(f"v_lshlrev_b32 v{32+2*i}, 16, v{40+i}\nv_and_b32 v{33+2*i}, 0xffff0000, v{40+i}")
    stamp()
    l = lab("wt")
    a(f"{l}:\nds_read_b64 v[4:5], v3 offset:{256+48}")
    tmo()
    a(f"""s_waitcnt lgkmcnt(0)
    v_cmp_eq_u32 vcc, 0, v5
    s_cbranch_vccnz {l}
    v_readfirstlane_b32 s40, v4
    v_lshlrev_b32 v5, 3, v23
    v_lshrrev_b32 v29, v5, v4
    v_and_b32 v5, 1, v2
    v_lshlrev_b32 v5, 4, v5
    v_lshrrev_b32 v30, v5, v4
    s_lshr_b32 s42, s40, 16
    """)
    wait_prog(idx['q'] + 16, pad=True)
    stamp()
    for t in range(4):
        for rd in range(2):
            a(f"ds_read_b64_tr_b16 v[{72+4*t+2*rd}:{73+4*t+2*rd}], v24 offset:{base['q'] + t*4*ST + rd*512}")
    for t in range(4):
        c = "0" if t == 0 else "v[4:7]"
        a(f"s_waitcnt lgkmcnt({0 if stamps else 6-2*t})\nv_mfma_f32_16x16x32_bf16 v[4:7], v[{48+4*t}:{51+4*t}], v[{72+4*t}:{75+4*t}], {c}")
    a(f"""s_mov_b64 exec, 0xffff
    s_nop 6
    v_bfi_b32 v4, v19, v29, v4""")
    publish("global_store_dword", 12, "v4")
    a("s_mov_b64 exec, -1")
    stamp()
    def mlp1():
        a(f"""s_cmp_ge_u32 s36, 28
        s_cbranch_scc1 L_nomlp1""")
        ln(32)
        a(f"""ds_write_b128 v16, v[40:43] offset:1024
        s_lshl_b32 s38, s35, 7
        v_lshl_add_u32 v17, v21, 4, s38
        v_add_u32 v17, {YN}, v17
        ds_read_b128 v[64:67], v17
        ds_read_b128 v[68:71], v17 offset:64""")
        wait_prog(idx['1'] + 8, pad=True)
        o1 = base['1']
        if o1 + 8 * ST >= 65536:
            a(f"v_add_u32 v17, {o1}, v24"); r = 17; o1 = 0
        else: r = 24
        for t in range(2):
            for rd in range(2):
                a(f"ds_read_b64_tr_b16 v[{72+4*t+2*rd}:{73+4*t+2*rd}], v{r} offset:{o1 + t*4*ST + rd*512}")
        a(f"""s_waitcnt lgkmcnt(0)
        v_mfma_f32_16x16x32_bf16 v[4:7], v[64:67], v[72:75], 0
        v_mfma_f32_16x16x32_bf16 v[4:7], v[68:71], v[76:79], v[4:7]
        s_mov_b64 exec, 0xffff
        s_nop 6
        v_bfi_b32 v4, v19, v29, v4""")
        publish("global_store_dword", 13, "v4")
        a("s_mov_b64 exec, -1\nL_nomlp1:")
    assert idx['1'] < idx['K']
    mlp1()
    stamp()
    a(f"""s_lshl_b32 s38, s30, 13
    s_lshl_b32 s39, s32, 9
    s_add_u32 s38, s38, s39
    s_add_u32 s38, s38, {QB}
    v_lshl_add_u32 v16, v2, 3, s38
    v_add_u32 v17, 4096, v16
    s_mul_i32 s39, s32, 288
    s_add_u32 s39, s39, {QL}
    v_lshl_add_u32 v18, v2, 2, s39
    v_lshrrev_b32 v31, 8, v30""")
    if qhint:
        a(f"""s_add_u32 s60, s28, s38
        s_addc_u32 s61, s29, 0
        L_hq:""")
        for p_ in range(4):
            for cg in range(2):
                a(f"s_load_dword s{94+2*p_+cg}, s[60:61], {p_*2048 + cg*256 + 192} glc")
        tmo()
        a("s_waitcnt lgkmcnt(0)")
        for i in range(8):
            a(f"s_xor_b32 s{94+i}, s{94+i}, s40")
        for i in range(1, 8):
            a(f"s_or_b32 s94, s94, s{94+i}")
        a("s_and_b32 s94, s94, 0xff\ns_cbranch_scc1 L_hq")
    elif pace_q > idx['1'] + 8:
        wait_prog(pace_q)
    stamp()
    retry_head("gq", [16, 17])
    a(f"""global_load_dwordx2 v[32:33], v16, s[28:29] sc1
    global_load_dwordx2 v[34:35], v16, s[28:29] offset:2048 sc1
    global_load_dwordx2 v[36:37], v17, s[28:29] sc1
    global_load_dwordx2 v[38:39], v17, s[28:29] offset:2048 sc1""")
    attempts(0)
    tmo(pad=True)
    a(f"""s_waitcnt vmcnt(0)
    v_xor_b32 v4, v32, v30
    v_bitop3_b32 v4, v4, v33, v31 bitop3:0xf6
    v_bitop3_b32 v4, v4, v34, v30 bitop3:0xf6
    v_bitop3_b32 v4, v4, v35, v31 bitop3:0xf6
    v_bitop3_b32 v4, v4, v36, v30 bitop3:0xf6
    v_bitop3_b32 v4, v4, v37, v31 bitop3:0xf6
    v_bitop3_b32 v4, v4, v38, v30 bitop3:0xf6
    v_bitop3_b32 v4, v4, v39, v31 bitop3:0xf6
    v_and_b32 v4, v19, v4
    v_cmp_ne_u32 vcc, 0, v4
    v_pk_add_f32 v[32:33], v[32:33], v[34:35]
    v_pk_add_f32 v[36:37], v[36:37], v[38:39]
    s_cbranch_vccnz L_gq
    v_pk_add_f32 v[32:33], v[32:33], v[36:37]
    v_mov_b32 v5, 1
    v_cvt_pk_bf16_f32 v32, v32, v33
    ds_write_b32 v18, v32
    ds_write_b32 v44, v5 offset:256
    v_mul_u32_u24 v17, 288, v23
    v_lshl_add_u32 v17, v21, 4, v17
    v_add_u32 v17, {QL}, v17
    s_lshl_b32 s38, s32, 7
    s_add_u32 s38, s38, {SL}
    v_mul_u32_u24 v16, 576, v23
    v_lshl_add_u32 v16, v21, 4, v16
    v_add_u32 v16, s38, v16
    v_mul_u32_u24 v18, 576, v22
    v_lshl_add_u32 v18, v23, 7, v18
    v_lshl_add_u32 v18, v21, 5, v18
    v_add_u32 v18, {SL}, v18
    """)
    stamp()
    wait_prog(idx['K'] + 32)
    for u in range(2):
        for t in range(4):
            r = 72 + 16*u + 4*t
            a(f"ds_read_b128 v[{r}:{r+3}], v26 offset:{u*4*ST + t*64}")
    wait_flags(0)
    for t in range(4):
        a(f"ds_read_b128 v[{48+4*t}:{51+4*t}], v17 offset:{64*t}")
    for t in range(4):
        a(f"s_waitcnt lgkmcnt({0 if stamps else 3-t})")
        for u in range(2):
            c = "0" if t == 0 else f"v[{32+4*u}:{35+4*u}]"
            a(f"v_mfma_f32_16x16x32_bf16 v[{32+4*u}:{35+4*u}], v[{72+16*u+4*t}:{75+16*u+4*t}], v[{48+4*t}:{51+4*t}], {c}")
    SC = 0x3e0293ee
    a(f"""s_mov_b32 exec_lo, 0x000f000f
    s_mov_b32 exec_hi, 0x000f000f
    v_mov_b32 v5, 1
    s_mov_b32 s46, {SC}
    s_nop 3
    ds_write_b128 v16, v[32:35]
    ds_write_b128 v16, v[36:39] offset:64
    ds_write_b32 v44, v5 offset:272
    s_mov_b64 exec, -1""")
    stamp()
    wait_flags(16, pad=True)
    a(f"""ds_read_b128 v[32:35], v18
    ds_read_b128 v[36:39], v18 offset:16
    s_waitcnt lgkmcnt(0)
    v_max3_f32 v4, v32, v33, v34
    v_max3_f32 v5, v35, v36, v37
    v_max3_f32 v4, v4, v38, v39
    v_max_f32 v4, v4, v5
    s_nop 1
    v_max_f32_dpp v4, v4, v4 quad_perm:[1,0,3,2] row_mask:0xf bank_mask:0xf
    s_nop 1
    v_max_f32_dpp v4, v4, v4 quad_perm:[2,3,0,1] row_mask:0xf bank_mask:0xf
    v_mov_b32 v5, v4
    s_nop 1
    v_permlane16_swap_b32 v4, v5
    v_max_f32 v4, v4, v5
    v_mov_b32 v5, v4
    s_nop 1
    v_permlane32_swap_b32 v4, v5
    v_max_f32 v4, v4, v5
    v_mul_f32 v6, s46, v4""")
    for i in range(8):
        a(f"v_fma_f32 v{32+i}, v{32+i}, s46, -v6")
    for i in range(8):
        a(f"v_exp_f32 v{32+i}, v{32+i}")
    a(f"""v_pk_add_f32 v[4:5], v[32:33], v[34:35]
    v_pk_add_f32 v[40:41], v[36:37], v[38:39]
    v_pk_add_f32 v[4:5], v[4:5], v[40:41]
    v_add_f32 v4, v4, v5
    s_nop 1
    v_add_f32_dpp v4, v4, v4 quad_perm:[1,0,3,2] row_mask:0xf bank_mask:0xf
    s_nop 1
    v_add_f32_dpp v4, v4, v4 quad_perm:[2,3,0,1] row_mask:0xf bank_mask:0xf
    v_mov_b32 v5, v4
    s_nop 1
    v_permlane16_swap_b32 v4, v5
    v_add_f32 v4, v4, v5
    v_mov_b32 v5, v4
    s_nop 1
    v_permlane32_swap_b32 v4, v5
    v_add_f32 v4, v4, v5
    v_log_f32 v7, v4
    v_rcp_f32 v4, v4
    v_lshlrev_b32 v40, 4, v21
    v_add_f32 v7, v7, v6
    ds_bpermute_b32 v45, v40, v7""")
    for i in range(4):
        a(f"v_pk_mul_f32 v[{32+2*i}:{33+2*i}], v[{32+2*i}:{33+2*i}], v[4:5] op_sel_hi:[1,0]")
    for i in range(4):
        a(f"v_cvt_pk_bf16_f32 v{40+i}, v{32+2*i}, v{33+2*i}")
    a("s_nop 0")
    for t in range(4):
        for i in range(4):
            a(f"v_mov_b32_dpp v{48+4*t+i}, v{40+i} quad_perm:[{t},{t},{t},{t}] row_mask:0xf bank_mask:0xf")
    a(f"""s_lshl_b32 s44, s32, 7
    s_lshl_b32 s38, s36, 14
    s_add_u32 s38, s38, s44
    s_add_u32 s38, s38, {OB}
    v_lshrrev_b32 v6, 3, v2
    v_and_b32 v5, 7, v2
    v_lshlrev_b32 v17, 11, v6
    v_lshl_add_u32 v17, v5, 4, v17
    v_add_u32 v17, s38, v17
    s_lshl_b32 s38, s32, 6
    s_add_u32 s38, s38, {AL}
    v_mul_u32_u24 v12, 288, v6
    v_lshl_add_u32 v12, v5, 2, v12
    v_add_u32 v12, s38, v12
    v_and_b32 v7, 1, v2
    v_mov_b32 v13, 0x0c0c0400
    v_mov_b32 v6, 0x04000c0c
    v_cmp_eq_u32 vcc, 1, v7
    v_mul_u32_u24 v14, 288, v5
    v_lshl_add_u32 v14, v21, 4, v14
    v_cndmask_b32 v13, v13, v6, vcc
    v_add_u32 v14, {AL}, v14
    v_lshlrev_b32 v7, 3, v23
    s_waitcnt lgkmcnt(0)
    v_lshrrev_b32 v45, v7, v45
    v_lshlrev_b32 v15, 4, v21
    v_add_u32 v15, {HL}, v15
    s_lshl_b32 s38, s35, 14
    s_lshl_b32 s39, s36, 9
    s_add_u32 s38, s38, s39
    s_add_u32 s38, s38, s44
    s_add_u32 s38, s38, {FB}
    v_lshl_add_u32 v18, v20, 3, s38""")
    stamp()
    for t in range(4):
        wait_prog(idx['V'] + 8*(t+1), pad=(t == 0))
        for ntile in range(2):
            for rd in range(2):
                r = 72 + 4*ntile + 2*rd
                a(f"ds_read_b64_tr_b16 v[{r}:{r+1}], v{27+ntile} offset:{t*8*ST + rd*ST}")
        for ntile in range(2):
            c = "0" if t == 0 else f"v[{32+4*ntile}:{35+4*ntile}]"
            a(f"s_waitcnt lgkmcnt({0 if stamps else 2-2*ntile})")
            a(f"v_mfma_f32_16x16x32_bf16 v[{32+4*ntile}:{35+4*ntile}], v[{48+4*t}:{51+4*t}], v[{72+4*ntile}:{75+4*ntile}], {c}")
    a(f"""s_nop 5
    v_bfi_b32 v4, v19, v30, v32
    s_nop 0
    v_bfi_b32 v5, v19, v45, v36""")
    publish("global_store_dwordx2", 46, "v[4:5]")
    stamp()
    if pace_o > idx['V'] + 32: wait_prog(pace_o, pad=True)
    stamp()
    def ogather():
        for i in range(4):
            a(f"global_load_dwordx4 v[{48+4*i}:{51+4*i}], v17, s[28:29] offset:{512*i} sc1")
        attempts(1)
    ogather()
    wait_prog(NL)
    for t in range(4):
        for rd in range(2):
            a(f"ds_read_b64_tr_b16 v[{72+4*t+2*rd}:{73+4*t+2*rd}], v25 offset:{t*4*ST + rd*512}")
    o2 = base['2'] - base['o']
    assert o2 > 0
    a(f"""v_mov_b32 v36, 0
    s_cmp_ge_u32 s36, 28
    s_cbranch_scc1 L_nomlp2""")
    for t in range(2):
        for rd in range(2):
            a(f"ds_read_b64_tr_b16 v[{88+4*t+2*rd}:{89+4*t+2*rd}], v25 offset:{o2 + t*4*ST + rd*512}")
    wait_flag1(36)
    a(f"""ds_read_b128 v[64:67], v15
    ds_read_b128 v[68:71], v15 offset:64
    s_waitcnt lgkmcnt(0)
    v_mfma_f32_16x16x32_bf16 v[36:39], v[64:67], v[88:91], 0
    v_mfma_f32_16x16x32_bf16 v[36:39], v[68:71], v[92:95], v[36:39]
    L_nomlp2:""")
    a(f"""s_mov_b32 s47, {KSW}
    s_branch L_go1
    L_go:""")
    if dual:
        a(f"""s_sub_u32 s47, s47, 1
        s_cselect_b32 s39, {DL}, 0
        v_add_u32 v17, s39, v17""")
    ogather()
    a("L_go1:")
    tmo(pad=True)
    a(f"""s_waitcnt vmcnt(0)
    v_perm_b32 v40, v51, v49, v13
    v_perm_b32 v41, v55, v53, v13
    v_perm_b32 v42, v59, v57, v13
    v_perm_b32 v43, v63, v61, v13
    v_or_b32_dpp v40, v40, v40 quad_perm:[1,0,3,2] row_mask:0xf bank_mask:0xf
    v_or_b32_dpp v41, v41, v41 quad_perm:[1,0,3,2] row_mask:0xf bank_mask:0xf
    v_or_b32_dpp v42, v42, v42 quad_perm:[1,0,3,2] row_mask:0xf bank_mask:0xf
    v_or_b32_dpp v43, v43, v43 quad_perm:[1,0,3,2] row_mask:0xf bank_mask:0xf
    v_max_f32 v5, v40, v41
    v_max3_f32 v5, v5, v42, v43
    v_xor_b32 v4, s40, v48
    v_bitop3_b32 v4, v4, v50, s42 bitop3:0xf6
    v_max_f32_dpp v5, v5, v5 row_ror:8 row_mask:0xf bank_mask:0xf
    v_mov_b32 v6, v5
    v_bitop3_b32 v4, v4, v52, s40 bitop3:0xf6
    v_bitop3_b32 v4, v4, v54, s42 bitop3:0xf6
    v_permlane16_swap_b32 v5, v6
    v_max_f32 v5, v5, v6
    v_mov_b32 v6, v5
    v_bitop3_b32 v4, v4, v56, s40 bitop3:0xf6
    v_bitop3_b32 v4, v4, v58, s42 bitop3:0xf6
    v_permlane32_swap_b32 v5, v6
    v_max_f32 v5, v5, v6
    v_sub_f32 v40, v40, v5
    v_sub_f32 v41, v41, v5
    v_exp_f32 v40, v40
    v_sub_f32 v42, v42, v5
    v_exp_f32 v41, v41
    v_sub_f32 v43, v43, v5
    v_exp_f32 v42, v42
    v_bitop3_b32 v4, v4, v60, s40 bitop3:0xf6
    v_exp_f32 v43, v43
    v_bitop3_b32 v4, v4, v62, s42 bitop3:0xf6
    v_pk_mul_f32 v[32:33], v[48:49], v[40:41] op_sel_hi:[1,0]
    v_pk_mul_f32 v[34:35], v[50:51], v[40:41] op_sel_hi:[1,0]
    v_and_b32 v4, v19, v4
    v_cmp_ne_u32 vcc, 0, v4""")
    sel = {1: ("v[40:41]", "op_sel:[0,1,0] op_sel_hi:[1,1,1]"), 2: ("v[42:43]", "op_sel_hi:[1,0,1]"), 3: ("v[42:43]", "op_sel:[0,1,0] op_sel_hi:[1,1,1]")}
    for i in range(1, 4):
        w_, m_ = sel[i]
        a(f"""v_pk_fma_f32 v[32:33], v[{48+4*i}:{49+4*i}], {w_}, v[32:33] {m_}
        v_pk_fma_f32 v[34:35], v[{50+4*i}:{51+4*i}], {w_}, v[34:35] {m_}""")
    a(f"""v_cvt_pk_bf16_f32 v4, v32, v34
    v_cvt_pk_bf16_f32 v5, v33, v35
    s_cbranch_vccnz L_go
    ds_write2_b32 v12, v4, v5 offset0:0 offset1:8""")
    stamp()
    a(f"""v_pk_add_f32 v[40:41], v[40:41], v[42:43]
    v_add_f32 v40, v40, v41
    s_waitcnt lgkmcnt(0)
    s_barrier""")
    stamp()
    for t in range(4):
        a(f"ds_read_b128 v[{48+4*t}:{51+4*t}], v14 offset:{64*t}")
    a(f"""v_add_f32_dpp v40, v40, v40 row_ror:8 row_mask:0xf bank_mask:0xf
    v_mov_b32 v41, v40
    v_mov_b32 v5, v36
    s_nop 0
    v_permlane16_swap_b32 v40, v41
    v_add_f32 v40, v40, v41
    v_mov_b32 v41, v40
    s_nop 1
    v_permlane32_swap_b32 v40, v41
    v_add_f32 v40, v40, v41
    v_rcp_f32 v40, v40""")
    for t in range(4):
        c = "0" if t == 0 else "v[32:35]"
        a(f"s_waitcnt lgkmcnt({0 if stamps else 3-t})\nv_mfma_f32_16x16x32_bf16 v[32:35], v[{48+4*t}:{51+4*t}], v[{72+4*t}:{75+4*t}], {c}")
    a(f"""s_nop 7
    v_pk_add_f32 v[32:33], v[32:33], v[34:35]
    v_add_f32 v4, v32, v33
    v_add_f32 v6, v32, v33
    s_nop 1
    v_permlane16_swap_b32 v4, v6
    v_add_f32 v4, v4, v6
    s_mov_b64 exec, 0xffff
    v_mul_f32 v4, v4, v40
    v_bfi_b32 v4, v19, v30, v4
    global_store_dwordx2 v18, v[4:5], s[28:29] sc1""")
    stamp()
    a("s_branch L_fin")

    cpads = list(pads)
    nst[0] = 0
    a("L_aux:")
    common()
    QCALC = ("s_and_b32 s48, s34, 3\ns_lshl_b32 s48, s48, 3\ns_add_u32 s48, s48, s30\ns_lshl_b32 s48, s48, 2\ns_and_b32 s38, s31, 3\ns_add_u32 s48, s48, s38"
             if remap else "s_and_b32 s48, s2, 127")
    a(f"""v_mov_b32 v4, 0
    v_lshl_add_u32 v5, v2, 2, v3
    ds_write_b32 v5, v4
    ds_write_b32 v5, v4 offset:64
    s_lshl_b32 s38, s36, 7
    v_lshl_add_u32 v6, v2, 1, s38
    {QCALC}
    s_lshl_b32 s38, s48, 3
    v_lshrrev_b32 v20, 5, v2
    v_and_b32 v21, 1, v2
    v_lshlrev_b32 v4, 2, v20
    v_lshl_add_u32 v4, v21, 1, v4
    v_add_u32 v12, s38, v4
    s_waitcnt lgkmcnt(0)
    s_load_dword s37, s[28:29], 0""")
    if l2pre:
        a(f"""s_getpc_b64 s[44:45]
        L_pc0:
        s_lshl_b32 s38, s31, 8
        s_sub_u32 s44, s44, L_pc0 - {KN}_kernel
        s_subb_u32 s45, s45, 0
        s_min_u32 s38, s38, @CODEMAX@
        s_load_dword s46, s[44:45], s38
        s_add_u32 s38, s38, 128
        s_load_dword s47, s[44:45], s38""")
    a(f"""s_cmp_ge_u32 s36, 28
    s_cbranch_scc1 L_aux0
    global_load_ushort v8, v6, s[18:19]
    L_aux0:
    global_load_ushort v9, v12, s[4:5]
    global_load_ushort v10, v12, s[22:23]
    s_barrier
    v_mov_b32 v5, 1
    v_mov_b32 v19, 0xff
    s_waitcnt lgkmcnt(0)
    s_add_u32 s37, s37, 1
    s_mul_i32 s40, s37, 0x9E3779B1
    v_mov_b32 v4, s40
    ds_write_b64 v3, v[4:5] offset:{256+48}
    s_lshr_b32 s41, s40, 8
    s_lshr_b32 s42, s40, 16
    s_lshr_b32 s43, s40, 24
    v_and_b32 v4, 3, v2
    v_lshlrev_b32 v4, 3, v4
    v_lshrrev_b32 v29, v4, s40""")
    stamp()
    a("@WARMA@")
    a(f"""s_cmp_ge_u32 s36, 28
    s_cbranch_scc1 L_aux1
    s_lshl_b32 s38, s36, 11
    s_add_u32 s38, s38, {HB}
    v_lshl_add_u32 v16, v2, 2, s38""")
    wait_prog(pace_h)
    retry_head("gh", [16])
    for p_ in range(8):
        a(f"global_load_dword v{32+p_}, v16, s[28:29] offset:{256*p_} sc1")
    attempts(0)
    tmo()
    a(f"""s_waitcnt vmcnt(0)
    v_xor_b32 v4, v32, v29""")
    for p_ in range(1, 8):
        a(f"v_bitop3_b32 v4, v4, v{32+p_}, v29 bitop3:0xf6")
    C1 = 0xc0135761
    C2 = 0xbdd2d3e8
    a(f"""v_and_b32 v4, v19, v4
    v_cmp_ne_u32 vcc, 0, v4
    s_cbranch_vccnz L_gh
    v_pk_add_f32 v[32:33], v[32:33], v[34:35]
    v_pk_add_f32 v[36:37], v[36:37], v[38:39]
    v_pk_add_f32 v[32:33], v[32:33], v[36:37]
    v_add_f32 v32, v32, v33
    v_cvt_pk_bf16_f32 v32, v32, v32
    v_and_b32 v32, 0xffff0000, v32
    v_lshlrev_b32 v8, 16, v8
    v_add_f32 v32, v32, v8
    v_cvt_pk_bf16_f32 v32, v32, v32
    v_and_b32 v32, 0xffff0000, v32
    v_mul_f32 v33, v32, v32
    v_mov_b32 v34, {C1}
    v_fmac_f32 v34, {C2}, v33
    v_mul_f32 v33, v34, v32
    v_exp_f32 v33, v33
    v_lshlrev_b32 v5, 1, v2
    v_add_f32 v33, 1.0, v33
    v_rcp_f32 v33, v33
    v_add_u32 v5, {HL}, v5
    v_mul_f32 v32, v32, v33
    v_cvt_pk_bf16_f32 v32, v32, v32
    v_mov_b32 v6, 1
    ds_write_b16 v5, v32
    ds_write_b32 v3, v6 offset:{256+36}
    L_aux1:""")
    stamp()
    a(f"""v_and_b32 v22, 31, v2
    s_lshr_b32 s38, s48, 4
    s_lshl_b32 s38, s38, 14
    s_and_b32 s39, s48, 15
    s_lshl_b32 s39, s39, 5
    s_add_u32 s38, s38, s39
    s_add_u32 s38, s38, {FB}
    v_lshlrev_b32 v16, 9, v22
    v_lshl_add_u32 v16, v20, 4, v16
    v_add_u32 v16, s38, v16
    s_waitcnt vmcnt(0)
    v_lshlrev_b32 v9, 16, v9
    v_lshlrev_b32 v10, 16, v10
    v_cmp_eq_u32 s[46:47], 1, v21
    s_waitcnt lgkmcnt(0)""")
    stamp()
    a(f"""s_barrier
    {"s_bitcmp1_b32 s31, 2" if remap else "s_cmp_ge_u32 s2, 128"}
    s_cbranch_scc1 L_fin""")
    stamp()
    a(f"""L_gf:
    global_load_dwordx4 v[32:35], v16, s[28:29] sc1""")
    attempts(2)
    tmo()
    a(f"""s_waitcnt vmcnt(0)
    v_xor_b32 v4, s40, v32
    v_bitop3_b32 v4, v4, v34, s42 bitop3:0xf6
    v_and_b32 v4, v19, v4
    v_cmp_ne_u32 vcc, 0, v4""")
    for i in range(4):
        a(f"v_add_f32_dpp v{32+i}, v{32+i}, v{32+i} row_ror:1 row_mask:0xf bank_mask:0xf")
    a("s_cbranch_vccnz L_gf")
    stamp()
    for d in (2, 4, 8):
        for i in range(4):
            a(f"v_add_f32_dpp v{32+i}, v{32+i}, v{32+i} row_ror:{d} row_mask:0xf bank_mask:0xf")
    for i in range(4):
        a(f"v_add_f32_dpp v{32+i}, v{32+i}, v{32+i} row_bcast:15 row_mask:0xa bank_mask:0xf")
    a(f"""v_cndmask_b32 v32, v32, v34, s[46:47]
    v_cndmask_b32 v33, v33, v35, s[46:47]
    v_cvt_pk_bf16_f32 v32, v32, v33
    v_and_b32 v33, 0xffff0000, v32
    v_add_f32 v33, v33, v10
    v_cvt_pk_bf16_f32 v33, v33, v33
    v_and_b32 v33, 0xffff0000, v33
    v_mul_f32 v34, 0xbfb8aa3b, v33
    v_exp_f32 v34, v34
    v_lshlrev_b32 v32, 16, v32
    v_add_f32 v34, 1.0, v34
    v_rcp_f32 v34, v34
    s_mov_b32 exec_lo, 0x00030000
    v_mul_f32 v33, v33, v34
    v_cvt_pk_bf16_f32 v33, v33, v33
    v_and_b32 v33, 0xffff0000, v33
    v_mul_f32 v32, v32, v33
    v_cvt_pk_bf16_f32 v32, v32, v32
    s_mov_b32 exec_hi, 0x00030000
    v_and_b32 v32, 0xffff0000, v32
    v_add_f32 v32, v32, v9
    v_cvt_pk_bf16_f32 v32, v32, v32
    global_store_short v12, v32, s[24:25] {outflag}
    s_cmp_lg_u32 s2, 0
    s_cbranch_scc1 L_fin
    v_mov_b32 v4, 0
    v_mov_b32 v5, s37
    s_mov_b64 exec, 0x10000
    global_store_dword v4, v5, s[28:29] sc1
    s_branch L_fin
    L_tmo:
    s_cmp_eq_u32 s55, 0
    s_cbranch_scc1 L_fin
    s_setpc_b64 s[60:61]""")
    a("L_fin:")
    if stamps:
        a("s_memrealtime s[92:93]")
        a("s_mov_b64 exec, -1\ns_waitcnt lgkmcnt(0)\nv_mov_b32 v5, 0\nv_writelane_b32 v5, s62, 0")
        for i in range(15):
            a(f"v_writelane_b32 v5, s{64+2*i}, {i+1}")
        a(f"""v_writelane_b32 v5, s33, 17
        s_getreg_b32 s38, hwreg(HW_REG_XCC_ID)
        v_writelane_b32 v5, s38, 18
        v_writelane_b32 v5, s56, 19
        v_writelane_b32 v5, s57, 20
        v_writelane_b32 v5, s58, 21
        s_lshl_b32 s38, s2, 10
        s_add_u32 s38, s38, {TS_OFF}
        v_lshrrev_b32 v1, 6, v0
        v_and_b32 v2, 63, v0
        v_lshlrev_b32 v4, 7, v1
        v_lshl_add_u32 v4, v2, 2, v4
        v_add_u32 v4, s38, v4
        s_mov_b64 exec, 0xffffffff
        global_store_dword v4, v5, s[28:29]""")
    a("L_exit:")
    apads = [p_ for p_ in pads if p_ not in cpads]
    def call(p_): return f"s_cmp_eq_u32 0, 0\ns_call_b64 s[60:61], {p_}"
    wc = ""; wa = ""
    if warm:
        wc = "s_mov_b32 s55, 1\n"
        for w in range(4):
            wc += f"s_cmp_lg_u32 s32, {w}\ns_cbranch_scc1 L_wc{w}\n{call(cpads[w])}\nL_wc{w}:\n"
        wc += "s_mov_b32 s55, 0"
        wa = "s_mov_b32 s55, 1\n" + "\n".join(call(p_) for p_ in cpads[4:] + apads) + "\ns_mov_b32 s55, 0"
    out = []
    for x in L:
        if x == "@WARMC@": out += wc.split("\n") if wc else []
        elif x == "@WARMA@": out += wa.split("\n") if wa else []
        else: out.append(x)
    body = "\n".join(("" if x.endswith(":") else "    ") + x for x in out)
    body = body.replace("@CODEMAX@", f"L_exit - {KN}_kernel - 128")
    return f"""{HEADER}; @launch grid=(256,1,1) block=(384,1,1) lds={LDS_TOTAL}
.amdgcn_target "amdgcn-amd-amdhsa--gfx950"
.text
.globl {KN}_kernel
.p2align 8
.type {KN}_kernel,@function
{KN}_kernel:
{body}
    s_endpgm
.section .rodata,"a"
.p2align 6
.amdhsa_kernel {KN}_kernel
  .amdhsa_next_free_vgpr 104
  .amdhsa_next_free_sgpr 102
  .amdhsa_accum_offset 104
  .amdhsa_group_segment_fixed_size 0
  .amdhsa_kernarg_size 104
  .amdhsa_user_sgpr_count 2
  .amdhsa_user_sgpr_kernarg_segment_ptr 1
  .amdhsa_system_sgpr_workgroup_id_x 1
.end_amdhsa_kernel
"""
if __name__ == "__main__":
    import argparse, json
    ap = argparse.ArgumentParser()
    ap.add_argument("out"); ap.add_argument("--kw", default="{}")
    x = ap.parse_args()
    open(x.out, "w").write(gen(**json.loads(x.kw)))
```

```python
import sys
KN = "recurrent_scan__sliding_block_cached__mixer_channel_mlp__decode"
HEADER = open("cdna_kernels/%s.s.ref" % KN).read().split("; Override launch")[0]

ST = 1088
QB, HB, OB, FB = 0x10000, 0x20000, 0x40000, 0xC0000
DL = 0x100000
TS_OFF = 0x8000000
WAVE_GROUPS = {'loader': [0], 'c0': [1], 'c1': [2], 'c2': [3], 'c3': [4], 'comp': [1, 2, 3, 4], 'aux': [5]}

def gen(W=None, nt="", stamps=False, budget=20000, pace_h=40, KSW=64, warm=True, qstag=8, nfin=1, extra_dirty=0, pace_o=104, noB=False):
    order = "q1KVo2"
    Wd = {"1": 20, "K": 20, "V": 20, "o": 20, "2": 20}
    if isinstance(W, int): Wd = {k: W for k in Wd}
    elif W: Wd.update(W)
    pol = {t: nt for t in order} if isinstance(nt, str) else {t: nt.get(t, "") for t in order}
    L = []
    def a(s):
        for x in s.split("\n"):
            x = x.strip()
            if x: L.append(x)
    cnt = {"q": 16, "1": 8, "K": 32, "V": 32, "o": 16, "2": 8}
    idx = {}; p = 0
    for t in order:
        idx[t] = p; p += cnt[t]
    NL = p
    base = {t: (idx[t] + 1) * ST for t in order}
    END = (NL + 1) * ST
    PROG = END
    FLG = PROG + 256
    XN = FLG + 64
    YN = XN + 1024
    QL = YN + 1024
    SL = QL + 4 * 288
    AL = SL + 4 * 576
    HL = AL + 8 * 288
    LDS_TOTAL = HL + 128
    assert LDS_TOTAL <= 163840
    nst = [0]
    def stamp():
        if stamps:
            a(f"s_memrealtime s[{64+2*nst[0]}:{65+2*nst[0]}]")
        nst[0] += 1
        assert nst[0] <= 15
    def lgk(n): return 0 if stamps else n
    uid = [0]
    def lab(p):
        uid[0] += 1
        return f"L_{p}{uid[0]}"
    def tmo(padn=None):
        a("s_sub_u32 s33, s33, 1")
        if padn and warm: a(f"L_pad{padn}:")
        a("s_cbranch_scc1 L_fin")
    def pad(n, target, jump=True):
        if warm:
            if jump: a(f"s_branch L_po{n}")
            a(f"L_pad{n}:\ns_branch {target}")
            if jump: a(f"L_po{n}:")
    def wait_prog(th):
        l = lab("wp")
        a(f"{l}:\nds_read_b32 v4, v3")
        tmo()
        a(f"""s_waitcnt lgkmcnt(0)
        v_cmp_gt_u32 vcc, {th}, v4
        s_cbranch_vccnz {l}""")
    def wait_flags(off, padn=None):
        l = lab("wf")
        a(f"{l}:\nds_read_b128 v[4:7], v3 offset:{256+off}")
        tmo(padn)
        a(f"""s_waitcnt lgkmcnt(0)
        v_bitop3_b32 v4, v4, v5, v6 bitop3:0x80
        v_and_b32 v4, v4, v7
        v_cmp_eq_u32 vcc, 0, v4
        s_cbranch_vccnz {l}""")
    def wait_flag1(off):
        l = lab("w1")
        a(f"{l}:\nds_read_b32 v4, v3 offset:{256+off}")
        tmo()
        a(f"""s_waitcnt lgkmcnt(0)
        v_cmp_eq_u32 vcc, 0, v4
        s_cbranch_vccnz {l}""")
    def attempts(i):
        if stamps: a(f"s_add_u32 s{56+i}, s{56+i}, 1")

    if stamps: a("s_memrealtime s[62:63]")
    a(f"""
    s_load_dwordx16 s[4:19], s[0:1], 0
    s_load_dwordx8 s[20:27], s[0:1], 64
    s_load_dwordx2 s[28:29], s[0:1], 96
    v_readfirstlane_b32 s32, v0
    s_lshr_b32 s31, s2, 3
    s_cmp_ge_u32 s31, 32
    s_cbranch_scc1 L_exit
    s_and_b32 s30, s2, 7
    s_lshr_b32 s34, s31, 3
    s_and_b32 s35, s31, 7
    s_lshr_b32 s32, s32, 6
""")
    if warm:
        for w in range(1, 6):
            a(f"s_cmp_eq_u32 s32, {w}\ns_cbranch_scc1 L_pad{w}")
    else:
        a("s_cmp_eq_u32 s32, 5\ns_cbranch_scc1 L_aux\ns_cmp_lg_u32 s32, 0\ns_cbranch_scc1 L_comp")
    a(f"""
    v_lshrrev_b32 v4, 3, v0
    v_and_b32 v5, 7, v0
    v_and_b32 v6, 2, v4
    v_xor_b32 v5, v5, v6
    v_lshlrev_b32 v5, 4, v5
    s_lshl_b32 s37, s34, 20
    s_lshl_b32 s38, s30, 10
    s_lshl_b32 s39, s35, 7
    s_add_u32 s37, s37, s38
    s_add_u32 s37, s37, s39
    v_lshl_add_u32 v10, v4, 13, v5
    v_add_u32 v10, s37, v10
    s_movk_i32 s50, {ST}
    s_lshl_b32 s51, 1, 16
    s_mov_b32 m0, 0
    v_lshlrev_b32 v9, 4, v0
    s_setprio 3
    s_waitcnt lgkmcnt(0)
    """)
    stamp()
    a("global_load_lds_dwordx4 v9, s[4:5]\ns_add_u32 m0, m0, s50\ns_nop 0")
    a(f"""L_ldq:
    global_load_lds_dwordx4 v10, s[10:11] {pol['q']}
    s_add_u32 m0, m0, s50
    v_add_u32 v10, s51, v10
    global_load_lds_dwordx4 v10, s[10:11] {pol['q']}
    s_add_u32 m0, m0, s50
    v_add_u32 v10, s51, v10
    s_cmpk_lt_u32 m0, {17*ST}
    s_cbranch_scc1 L_ldq""")
    stamp()
    a(f"""s_lshl_b32 s36, s30, 2
    s_add_u32 s36, s36, s34
    s_min_u32 s46, s36, 27
    s_cmp_lt_u32 s36, 28
    s_cselect_b64 s[48:49], -1, 1
    v_mov_b32 v3, {PROG}
    v_lshl_add_u32 v3, v0, 2, v3""")
    info = {"1": (11, 16), "K": (12, 6), "V": (13, 8), "o": (14, 12), "2": (15, 20)}
    setup = {
        "1": f"""s_mul_i32 s37, s35, 64*3584
        s_lshl_b32 s38, s46, 7
        s_add_u32 s37, s37, s38
        v_mul_u32_u24 v11, 3584, v4
        v_add3_u32 v11, v11, v5, s37
        s_movk_i32 s51, 28672""",
        "K": f"""s_lshl_b32 s37, s30, 23
        s_lshl_b32 s38, s31, 15
        s_add_u32 s37, s37, s38
        s_add_u32 s47, s37, 0x700000
        v_lshrrev_b32 v8, 4, v0
        v_and_b32 v9, 15, v0
        v_xor_b32 v6, v9, v8
        v_lshlrev_b32 v6, 4, v6
        v_lshl_add_u32 v12, v8, 8, v6
        v_add_u32 v12, s47, v12
        s_movk_i32 s51, 1024""",
        "V": f"""v_lshlrev_b32 v6, 1, v8
        v_xor_b32 v6, v9, v6
        v_lshlrev_b32 v6, 4, v6
        v_lshl_add_u32 v13, v8, 8, v6
        v_add_u32 v13, s47, v13""",
        "o": f"""v_lshl_add_u32 v15, v4, 10, v5
        s_lshl_b32 s37, s36, 17
        s_add_u32 s37, s37, s39
        v_add_u32 v14, s37, v15
        s_movk_i32 s51, 8192""",
        "2": f"""s_lshl_b32 s37, s46, 16
        s_add_u32 s37, s37, s39
        v_add_u32 v15, s37, v15""",
    }
    for t in order[1:]:
        v, s = info[t]; w = Wd[t]
        r = (w - 1 - idx[t]) % 4
        first = idx[t] + r - w + 1
        a(setup[t])
        if t == "1": pad(1, "L_comp")
        if t in "12": a("s_mov_b64 exec, s[48:49]")
        if t == "1":
            nfree = min(8, max(0, w - 16))
            for i in range(8):
                if i == nfree:
                    a(f"s_waitcnt vmcnt({16 + nfree})"); stamp(); a("s_barrier")
                if i >= nfree: a(f"s_waitcnt vmcnt({w-1})")
                a(f"""global_load_lds_dwordx4 v{v}, s[{s}:{s+1}] {pol[t]}
                s_add_u32 m0, m0, s50
                v_add_u32 v{v}, s51, v{v}""")
            if nfree == 8:
                a(f"s_waitcnt vmcnt(24)"); stamp(); a("s_barrier")
        else:
            a(f"v_mov_b32 v7, {first}")
            l = lab("ld")
            a(f"{l}:")
            for i in range(4):
                a(f"s_waitcnt vmcnt({w-1})")
                if i == r: a("ds_max_i32 v3, v7")
                a(f"""global_load_lds_dwordx4 v{v}, s[{s}:{s+1}] {pol[t]}
                s_add_u32 m0, m0, s50
                v_add_u32 v{v}, s51, v{v}""")
            e = base[t] + cnt[t] * ST
            a(f"""v_add_u32 v7, 4, v7
            {'s_cmpk_lt_u32' if e < 65536 else 's_cmp_lt_u32'} m0, {e}
            s_cbranch_scc1 {l}""")
        if t in "12": a("s_mov_b64 exec, -1")
        stamp()
    for b in range(4, NL + 1, 4):
        if b > NL - Wd["2"] and (b <= idx['V'] + 32 or b == NL or b == pace_o):
            a(f"v_mov_b32 v7, {b}\ns_waitcnt vmcnt({NL-b})\nds_max_i32 v3, v7")
    stamp()
    a("s_branch L_fin")

    def common():
        a(f"""v_and_b32 v2, 63, v0
        s_lshl_b32 s36, s30, 2
        s_add_u32 s36, s36, s34
        s_mov_b32 s33, {budget}
        v_mov_b32 v3, {PROG}
        """)
        if stamps: a("s_mov_b64 s[56:57], 0\ns_mov_b64 s[58:59], 0")
    nst[0] = 0
    a("L_comp:")
    common()
    a(f"""
    v_lshlrev_b32 v16, 4, v2
    s_sub_u32 s32, s32, 1
    v_and_b32 v20, 15, v2
    v_lshrrev_b32 v21, 4, v2
    v_lshrrev_b32 v22, 2, v20
    v_and_b32 v23, 3, v2
    s_lshl_b32 s38, s30, 13
    s_lshl_b32 s39, s34, 11
    s_add_u32 s38, s38, s39
    s_lshl_b32 s39, s35, 8
    s_lshl_b32 s44, s32, 6
    s_add_u32 s39, s39, s44
    s_add_u32 s38, s38, s39
    s_add_u32 s38, s38, {QB}
    v_lshl_add_u32 v12, v20, 2, s38
    s_lshl_b32 s38, s36, 11
    s_add_u32 s38, s38, s39
    s_add_u32 s38, s38, {HB}
    v_lshl_add_u32 v13, v20, 2, s38
    s_lshl_b32 s38, s30, 16
    s_lshl_b32 s39, s31, 9
    s_add_u32 s38, s38, s39
    s_lshl_b32 s45, s32, 7
    s_add_u32 s38, s38, s45
    s_add_u32 s38, s38, {OB}
    v_lshlrev_b32 v46, 14, v21
    v_lshl_add_u32 v46, v20, 3, v46
    v_add_u32 v46, s38, v46
    s_waitcnt lgkmcnt(0)
    global_load_dword v125, v12, s[28:29] sc1
    global_load_dword v113, v13, s[28:29] sc1
    global_load_dword v114, v46, s[28:29] sc1
    """)
    a(f"""
    s_add_u32 s26, s28, {DL}
    s_addc_u32 s27, s29, 0
    s_lshl_b32 s38, s32, 1
    v_lshrrev_b32 v7, 1, v23
    v_add_u32 v4, s38, v7
    v_and_b32 v5, 2, v22
    v_xor_b32 v4, v4, v5
    v_lshlrev_b32 v4, 4, v4
    v_and_b32 v14, 1, v23
    v_lshl_add_u32 v5, v14, 3, v4
    v_lshl_add_u32 v5, v22, 7, v5
    v_mul_u32_u24 v6, {ST}, v21
    v_add_u32 v24, v5, v6
    v_add_u32 v25, {base['o']}, v24
    s_mul_i32 s38, s32, {8*ST}
    s_add_u32 s38, s38, {base['K']}
    v_xor_b32 v4, v21, v23
    v_lshlrev_b32 v4, 4, v4
    v_lshl_add_u32 v4, v23, 8, v4
    v_mul_u32_u24 v5, {ST}, v22
    v_add3_u32 v26, v4, v5, s38
    s_lshl_b32 s38, s32, 2
    v_add_u32 v4, s38, v7
    v_lshlrev_b32 v5, 1, v22
    v_xor_b32 v4, v4, v5
    v_lshlrev_b32 v4, 4, v4
    v_lshl_add_u32 v4, v14, 3, v4
    v_lshl_add_u32 v4, v22, 8, v4
    v_xor_b32 v5, 32, v4
    v_lshlrev_b32 v6, 1, v6
    v_add_u32 v6, {base['V']}, v6
    v_add_u32 v27, v4, v6
    v_add_u32 v28, v5, v6
    v_add_u32 v44, s38, v3""")
    pad(2, "L_comp")
    a(f"""v_mov_b32 v19, 0xff
    v_mov_b32 v18, 0x3b000000
    v_mov_b32 v112, v16
    v_add_u32 v16, {XN}, v16
    v_lshlrev_b32 v15, 4, v21
    s_lshl_b32 s38, s34, 8
    s_add_u32 s38, s38, {XN}
    v_add_u32 v17, s38, v15""")
    stamp()
    a("s_barrier")
    stamp()
    a("ds_read_b128 v[8:11], v112\ns_waitcnt lgkmcnt(0)")
    for i in range(4):
        a(f"v_lshlrev_b32 v{32+2*i}, 16, v{8+i}\nv_and_b32 v{33+2*i}, 0xffff0000, v{8+i}")
    a("s_mov_b32 s55, 0\nL_ln:")
    a("""v_pk_mul_f32 v[40:41], v[32:33], v[32:33]
    v_pk_add_f32 v[4:5], v[32:33], v[34:35]
    v_pk_fma_f32 v[40:41], v[34:35], v[34:35], v[40:41]
    v_pk_add_f32 v[6:7], v[36:37], v[38:39]
    v_pk_fma_f32 v[40:41], v[36:37], v[36:37], v[40:41]
    v_pk_add_f32 v[4:5], v[4:5], v[6:7]
    v_pk_fma_f32 v[40:41], v[38:39], v[38:39], v[40:41]
    v_add_f32 v4, v4, v5
    v_add_f32 v5, v40, v41
    s_nop 0""")
    for d in ("row_shr:1", "row_shr:2", "row_shr:4", "row_shr:8"):
        a(f"""v_add_f32_dpp v4, v4, v4 {d} row_mask:0xf bank_mask:0xf bound_ctrl:1
        v_add_f32_dpp v5, v5, v5 {d} row_mask:0xf bank_mask:0xf bound_ctrl:1
        s_nop 0""")
    a(f"""v_add_f32_dpp v4, v4, v4 row_bcast:15 row_mask:0xa bank_mask:0xf
    v_add_f32_dpp v5, v5, v5 row_bcast:15 row_mask:0xa bank_mask:0xf
    s_nop 0
    v_add_f32_dpp v4, v4, v4 row_bcast:31 row_mask:0xc bank_mask:0xf
    v_add_f32_dpp v5, v5, v5 row_bcast:31 row_mask:0xc bank_mask:0xf
    s_nop 0
    v_readlane_b32 s38, v4, 63
    v_readlane_b32 s39, v5, 63
    s_nop 0
    v_mul_f32 v4, s38, v18
    v_mul_f32 v5, s39, v18
    v_fma_f32 v5, -v4, v4, v5
    v_max_f32 v5, 0, v5
    v_cvt_pk_bf16_f32 v4, v4, v5
    v_and_b32 v5, 0xffff0000, v4
    v_lshlrev_b32 v4, 16, v4
    v_add_f32 v5, 0x3727c5ac, v5
    v_cvt_pk_bf16_f32 v5, v5, v5
    v_and_b32 v5, 0xffff0000, v5
    v_sqrt_f32 v6, v5""")
    for i in range(4):
        a(f"v_pk_add_f32 v[{32+2*i}:{33+2*i}], v[{32+2*i}:{33+2*i}], v[4:5] op_sel_hi:[1,0] neg_lo:[0,1] neg_hi:[0,1]")
    a(f"""v_cvt_pk_bf16_f32 v6, v6, v6
    v_and_b32 v6, 0xffff0000, v6
    v_rcp_f32 v6, v6""")
    for i in range(4):
        a(f"v_cvt_pk_bf16_f32 v{40+i}, v{32+2*i}, v{33+2*i}")
    for i in range(4):
        a(f"v_lshlrev_b32 v{32+2*i}, 16, v{40+i}\nv_and_b32 v{33+2*i}, 0xffff0000, v{40+i}")
    for i in range(4):
        a(f"v_pk_mul_f32 v[{32+2*i}:{33+2*i}], v[{32+2*i}:{33+2*i}], v[6:7] op_sel_hi:[1,0]")
    for i in range(4):
        a(f"v_cvt_pk_bf16_f32 v{40+i}, v{32+2*i}, v{33+2*i}")
    a("""ds_write_b128 v16, v[40:43]
    s_cmp_lg_u32 s55, 0
    s_cbranch_scc1 L_ln2""")
    for t in range(4):
        a(f"ds_read_b128 v[{48+4*t}:{51+4*t}], v17 offset:{64*t}")
    for i in range(4):
        a(f"v_lshlrev_b32 v{32+2*i}, 16, v{40+i}\nv_and_b32 v{33+2*i}, 0xffff0000, v{40+i}")
    stamp()
    a(f"""s_lshl_b32 s38, s35, 7
    s_add_u32 s38, s38, {YN}
    v_add_u32 v17, s38, v15
    v_add_u32 v16, 1024, v16
    s_lshl_b32 s38, s30, 13
    s_lshl_b32 s39, s32, 9
    s_add_u32 s38, s38, s39
    s_add_u32 s38, s38, {QB}
    v_lshl_add_u32 v8, v2, 3, s38
    v_add_u32 v9, 4096, v8
    s_mul_i32 s39, s32, 288
    s_add_u32 s39, s39, {QL}
    v_lshl_add_u32 v10, v2, 2, s39
    v_mul_u32_u24 v11, 288, v23
    v_add_u32 v11, v11, v15
    v_add_u32 v11, {QL}, v11
    s_add_u32 s38, s45, {SL}
    v_mul_u32_u24 v47, 576, v23
    v_add3_u32 v47, v47, v15, s38
    v_mul_u32_u24 v115, 576, v22
    v_lshl_add_u32 v115, v23, 7, v115
    v_lshl_add_u32 v115, v21, 5, v115
    v_add_u32 v115, {SL}, v115
    s_lshl_b32 s38, s36, 14
    s_add_u32 s38, s38, s45
    s_add_u32 s38, s38, {OB}
    v_lshrrev_b32 v6, 3, v2
    v_and_b32 v5, 7, v2
    v_lshlrev_b32 v116, 11, v6
    v_lshl_add_u32 v116, v5, 4, v116
    v_add_u32 v116, s38, v116
    s_add_u32 s38, s44, {AL}
    v_mul_u32_u24 v117, 288, v6
    v_lshl_add_u32 v117, v5, 2, v117
    v_add_u32 v117, s38, v117
    v_mov_b32 v118, 0x0c0c0400
    v_mov_b32 v6, 0x04000c0c
    v_cmp_eq_u32 vcc, 1, v14
    v_mul_u32_u24 v119, 288, v5
    v_add_u32 v119, v119, v15
    v_cndmask_b32 v118, v118, v6, vcc
    v_add_u32 v119, {AL}, v119
    v_add_u32 v120, {HL}, v15
    s_lshl_b32 s38, s35, 14
    s_lshl_b32 s39, s36, 9
    s_add_u32 s38, s38, s39
    s_add_u32 s38, s38, s45
    s_add_u32 s38, s38, {FB}
    v_lshl_add_u32 v121, v20, 3, s38
    s_lshl_b32 s52, s32, 3
    s_add_u32 s52, s52, {idx['K'] + 8}""")
    l = lab("wt")
    a(f"{l}:\nds_read_b64 v[4:5], v3 offset:{256+48}")
    tmo()
    a(f"""s_waitcnt lgkmcnt(0)
    v_cmp_eq_u32 vcc, 0, v5
    s_cbranch_vccnz {l}
    v_readfirstlane_b32 s40, v4
    v_lshlrev_b32 v122, 3, v23
    v_lshrrev_b32 v29, v122, v4
    v_lshlrev_b32 v5, 4, v14
    v_lshrrev_b32 v30, v5, v4
    v_lshrrev_b32 v31, 8, v30
    s_lshr_b32 s42, s40, 16
    """)
    wait_prog(idx['q'] + 16)
    stamp()
    for t in range(4):
        for rd in range(2):
            a(f"ds_read_b64_tr_b16 v[{72+4*t+2*rd}:{73+4*t+2*rd}], v24 offset:{base['q'] + t*4*ST + rd*512}")
    for t in range(4):
        c = "0" if t == 0 else "v[4:7]"
        a(f"s_waitcnt lgkmcnt({lgk(6-2*t)})\nv_mfma_f32_16x16x32_bf16 v[4:7], v[{48+4*t}:{51+4*t}], v[{72+4*t}:{75+4*t}], {c}")
    a(f"""s_mov_b64 exec, 0xffff
    s_mov_b32 s55, 1
    s_cmp_lt_u32 s36, 28
    s_nop 4
    v_bfi_b32 v123, v19, v29, v4
    global_store_dword v12, v123, s[28:29]
    s_mov_b64 exec, -1""")
    stamp()
    a(f"""s_cbranch_scc1 L_ln
    s_branch L_nomlp1""")
    pad(3, "L_comp", jump=False)
    a(f"""L_ln2:
    ds_read_b128 v[64:67], v17
    ds_read_b128 v[68:71], v17 offset:64""")
    wait_prog(idx['1'] + 8)
    for t in range(2):
        for rd in range(2):
            a(f"ds_read_b64_tr_b16 v[{72+4*t+2*rd}:{73+4*t+2*rd}], v24 offset:{base['1'] + t*4*ST + rd*512}")
    a(f"""s_waitcnt lgkmcnt(0)
    v_mfma_f32_16x16x32_bf16 v[4:7], v[64:67], v[72:75], 0
    v_mfma_f32_16x16x32_bf16 v[4:7], v[68:71], v[76:79], v[4:7]
    s_mov_b64 exec, 0xffff
    s_nop 6
    v_bfi_b32 v124, v19, v29, v4
    global_store_dword v13, v124, s[28:29]
    s_mov_b64 exec, -1
    L_nomlp1:""")
    stamp()
    def qissue(r):
        a(f"""global_load_dwordx2 v[{r}:{r+1}], v8, s[28:29] sc1
        global_load_dwordx2 v[{r+2}:{r+3}], v8, s[28:29] offset:2048 sc1
        global_load_dwordx2 v[{r+4}:{r+5}], v9, s[28:29] sc1
        global_load_dwordx2 v[{r+6}:{r+7}], v9, s[28:29] offset:2048 sc1""")
        attempts(0)
    def qcheck(r):
        a(f"v_xor_b32 v4, v{r}, v30")
        for i in range(1, 8):
            a(f"v_bitop3_b32 v4, v4, v{r+i}, v{30 + (i & 1)} bitop3:0xf6")
        a(f"""v_and_b32 v4, v19, v4
        v_cmp_ne_u32 vcc, 0, v4
        v_pk_add_f32 v[40:41], v[{r}:{r+1}], v[{r+2}:{r+3}]
        v_pk_add_f32 v[42:43], v[{r+4}:{r+5}], v[{r+6}:{r+7}]""")
    def qhB():
        a(f"""s_mov_b64 exec, 0xffff
        global_store_dword v12, v123, s[26:27] sc1
        global_store_dword v13, v124, s[26:27] sc1
        s_mov_b64 exec, -1""")
    qissue(128)
    a(f"""ds_read_b32 v4, v3
    s_mov_b32 s47, {KSW // 2}
    s_waitcnt lgkmcnt(0)
    v_readfirstlane_b32 s53, v4
    s_add_u32 s53, s53, {qstag}
    s_min_u32 s53, s53, {NL}""")
    wait_prog("s53")
    a("L_gq:")
    qissue(104)
    tmo()
    a("s_waitcnt vmcnt(4)")
    qcheck(128)
    a("s_cbranch_vccz L_gqok")
    a(f"""s_sub_u32 s47, s47, 1
    s_cbranch_scc0 L_gq2
    v_add_u32 v8, {DL}, v8
    v_add_u32 v9, {DL}, v9""")
    qhB()
    a("L_gq2:")
    qissue(128)
    a("s_waitcnt vmcnt(4)")
    qcheck(104)
    a("s_cbranch_vccnz L_gq")
    a(f"""L_gqok:
    v_pk_add_f32 v[40:41], v[40:41], v[42:43]
    v_mov_b32 v5, 1
    v_cvt_pk_bf16_f32 v40, v40, v41
    ds_write_b32 v10, v40
    ds_write_b32 v44, v5 offset:256""")
    stamp()
    qhB()
    wait_prog("s52")
    for u in range(2):
        for t in range(4):
            r = 72 + 16*u + 4*t
            a(f"ds_read_b128 v[{r}:{r+3}], v26 offset:{u*4*ST + t*64}")
    wait_flags(0)
    for t in range(4):
        a(f"ds_read_b128 v[{48+4*t}:{51+4*t}], v11 offset:{64*t}")
    for t in range(4):
        a(f"s_waitcnt lgkmcnt({lgk(3-t)})")
        for u in range(2):
            c = "0" if t == 0 else f"v[{32+4*u}:{35+4*u}]"
            a(f"v_mfma_f32_16x16x32_bf16 v[{32+4*u}:{35+4*u}], v[{72+16*u+4*t}:{75+16*u+4*t}], v[{48+4*t}:{51+4*t}], {c}")
    SC = 0x3e0293ee
    a(f"""s_mov_b32 exec_lo, 0x000f000f
    s_mov_b32 exec_hi, 0x000f000f
    v_mov_b32 v5, 1
    s_mov_b32 s46, {SC}
    s_nop 3
    ds_write_b128 v47, v[32:35]
    ds_write_b128 v47, v[36:39] offset:64
    ds_write_b32 v44, v5 offset:272
    s_mov_b64 exec, -1
    v_mov_b32 v64, 0x3f803f80
    v_mov_b32 v65, v64
    v_mov_b32 v66, v64
    v_mov_b32 v67, v64""")
    stamp()
    pad(4, "L_pad6")
    wait_flags(16)
    def vreads(t):
        for ntile in range(2):
            for rd in range(2):
                r = 72 + 8*t + 4*ntile + 2*rd
                a(f"ds_read_b64_tr_b16 v[{r}:{r+1}], v{27+ntile} offset:{t*8*ST + rd*ST}")
    a(f"""ds_read_b32 v4, v3
    ds_read_b128 v[32:35], v115
    ds_read_b128 v[36:39], v115 offset:16
    s_waitcnt lgkmcnt({lgk(2)})
    v_readfirstlane_b32 s53, v4
    s_waitcnt lgkmcnt(0)
    v_max3_f32 v4, v32, v33, v34
    v_max3_f32 v5, v35, v36, v37
    v_max3_f32 v4, v4, v38, v39
    v_max_f32 v4, v4, v5""")
    for t in range(4):
        a(f"s_cmpk_lt_u32 s53, {idx['V'] + 8*(t+1)}\ns_cbranch_scc1 L_v1")
        vreads(t)
    a(f"""L_v1:
    v_max_f32_dpp v4, v4, v4 quad_perm:[1,0,3,2] row_mask:0xf bank_mask:0xf
    s_nop 1
    v_max_f32_dpp v4, v4, v4 quad_perm:[2,3,0,1] row_mask:0xf bank_mask:0xf
    v_mov_b32 v5, v4
    s_nop 1
    v_permlane16_swap_b32 v4, v5
    v_max_f32 v4, v4, v5
    v_mov_b32 v5, v4
    s_nop 1
    v_permlane32_swap_b32 v4, v5
    v_max_f32 v4, v4, v5
    v_mul_f32 v6, s46, v4""")
    for i in range(8):
        a(f"v_fma_f32 v{32+i}, v{32+i}, s46, -v6")
        if i == 0: a("ds_bpermute_b32 v45, v15, v6")
    for i in range(8):
        a(f"v_exp_f32 v{32+i}, v{32+i}")
    a("s_nop 0")
    for i in range(4):
        a(f"v_cvt_pk_bf16_f32 v{40+i}, v{32+2*i}, v{33+2*i}")
    a("s_nop 0")
    for t in range(4):
        for i in range(4):
            a(f"v_mov_b32_dpp v{48+4*t+i}, v{40+i} quad_perm:[{t},{t},{t},{t}] row_mask:0xf bank_mask:0xf")
        if t > 0:
            c = "0" if t == 1 else "v[68:71]"
            a(f"v_mfma_f32_16x16x32_bf16 v[68:71], v[{44+4*t}:{47+4*t}], v[64:67], {c}")
    a("s_nop 0\nv_mfma_f32_16x16x32_bf16 v[68:71], v[60:63], v[64:67], v[68:71]")
    stamp()
    for t in range(4):
        sk = lab("vs")
        a(f"s_cmpk_ge_u32 s53, {idx['V'] + 8*(t+1)}\ns_cbranch_scc1 {sk}")
        wait_prog(idx['V'] + 8*(t+1))
        vreads(t)
        a(f"{sk}:\ns_waitcnt lgkmcnt(0)")
        for ntile in range(2):
            c = "0" if t == 0 else f"v[{32+4*ntile}:{35+4*ntile}]"
            a(f"v_mfma_f32_16x16x32_bf16 v[{32+4*ntile}:{35+4*ntile}], v[{48+4*t}:{51+4*t}], v[{72+8*t+4*ntile}:{75+8*t+4*ntile}], {c}")
        if t == 1:
            a("""v_log_f32 v5, v68
            v_rcp_f32 v6, v68
            v_add_f32 v45, v45, v5
            v_lshrrev_b32 v45, v122, v45""")
    a(f"""s_nop 6
    v_mul_f32 v32, v32, v6
    v_bfi_b32 v126, v19, v30, v32
    v_mul_f32 v36, v36, v6
    v_bfi_b32 v127, v19, v45, v36
    global_store_dwordx2 v46, v[126:127], s[28:29]""")
    stamp()
    def ogather():
        for i in range(4):
            a(f"global_load_dwordx4 v[{48+4*i}:{51+4*i}], v116, s[28:29] offset:{512*i} sc1")
        attempts(1)
    a(f"""v_mov_b32 v36, 0
    s_mov_b32 s47, {KSW}
    s_cmp_ge_u32 s36, 28
    s_cbranch_scc1 L_nohw""")
    wait_flag1(36)
    a(f"""ds_read_b128 v[64:67], v120
    ds_read_b128 v[68:71], v120 offset:64
    L_nohw:""")
    if pace_o > idx['V'] + 32: wait_prog(pace_o)
    ogather()
    if pace_o < NL: wait_prog(NL)
    stamp()
    o2 = base['2'] - base['o']
    for t in range(2):
        for rd in range(2):
            a(f"ds_read_b64_tr_b16 v[{88+4*t+2*rd}:{89+4*t+2*rd}], v25 offset:{o2 + t*4*ST + rd*512}")
    for t in range(4):
        for rd in range(2):
            a(f"ds_read_b64_tr_b16 v[{72+4*t+2*rd}:{73+4*t+2*rd}], v25 offset:{t*4*ST + rd*512}")
    a("s_branch L_go1")
    pad(5, "L_aux", jump=False)
    a(f"""L_go:
    s_sub_u32 s47, s47, 1
    s_cbranch_scc0 L_go2
    v_add_u32 v116, {DL}, v116
    global_store_dwordx2 v46, v[126:127], s[26:27] sc1
    L_go2:""")
    ogather()
    a("L_go1:")
    tmo()
    a(f"""s_waitcnt vmcnt(0)
    v_xor_b32 v4, s40, v48
    v_bitop3_b32 v4, v4, v50, s42 bitop3:0xf6
    v_bitop3_b32 v4, v4, v52, s40 bitop3:0xf6
    v_bitop3_b32 v4, v4, v54, s42 bitop3:0xf6
    v_bitop3_b32 v4, v4, v56, s40 bitop3:0xf6
    v_bitop3_b32 v4, v4, v58, s42 bitop3:0xf6
    v_bitop3_b32 v4, v4, v60, s40 bitop3:0xf6
    v_bitop3_b32 v4, v4, v62, s42 bitop3:0xf6
    v_and_b32 v4, v19, v4
    v_cmp_ne_u32 vcc, 0, v4
    v_perm_b32 v40, v51, v49, v118
    v_perm_b32 v41, v55, v53, v118
    s_cbranch_vccnz L_go
    v_perm_b32 v42, v59, v57, v118
    v_perm_b32 v43, v63, v61, v118
    v_or_b32_dpp v40, v40, v40 quad_perm:[1,0,3,2] row_mask:0xf bank_mask:0xf
    v_or_b32_dpp v41, v41, v41 quad_perm:[1,0,3,2] row_mask:0xf bank_mask:0xf
    v_or_b32_dpp v42, v42, v42 quad_perm:[1,0,3,2] row_mask:0xf bank_mask:0xf
    v_or_b32_dpp v43, v43, v43 quad_perm:[1,0,3,2] row_mask:0xf bank_mask:0xf
    v_max_f32 v5, v40, v41
    v_max3_f32 v5, v5, v42, v43
    s_nop 1
    v_max_f32_dpp v5, v5, v5 row_ror:8 row_mask:0xf bank_mask:0xf
    v_mov_b32 v6, v5
    s_nop 1
    v_permlane16_swap_b32 v5, v6
    v_max_f32 v5, v5, v6
    v_mov_b32 v6, v5
    s_nop 1
    v_permlane32_swap_b32 v5, v6
    v_max_f32 v5, v5, v6
    v_sub_f32 v40, v40, v5
    v_sub_f32 v41, v41, v5
    v_exp_f32 v40, v40
    v_sub_f32 v42, v42, v5
    v_exp_f32 v41, v41
    v_sub_f32 v43, v43, v5
    v_exp_f32 v42, v42
    v_exp_f32 v43, v43
    v_pk_mul_f32 v[32:33], v[48:49], v[40:41] op_sel_hi:[1,0]
    v_pk_mul_f32 v[34:35], v[50:51], v[40:41] op_sel_hi:[1,0]""")
    sel = {1: ("v[40:41]", "op_sel:[0,1,0] op_sel_hi:[1,1,1]"), 2: ("v[42:43]", "op_sel_hi:[1,0,1]"), 3: ("v[42:43]", "op_sel:[0,1,0] op_sel_hi:[1,1,1]")}
    for i in range(1, 4):
        w_, m_ = sel[i]
        a(f"""v_pk_fma_f32 v[32:33], v[{48+4*i}:{49+4*i}], {w_}, v[32:33] {m_}
        v_pk_fma_f32 v[34:35], v[{50+4*i}:{51+4*i}], {w_}, v[34:35] {m_}""")
    a(f"""v_cvt_pk_bf16_f32 v4, v32, v34
    v_cvt_pk_bf16_f32 v5, v33, v35
    ds_write2_b32 v117, v4, v5 offset0:0 offset1:8""")
    stamp()
    a(f"""v_pk_add_f32 v[40:41], v[40:41], v[42:43]
    v_add_f32 v40, v40, v41
    s_waitcnt lgkmcnt(0)
    s_barrier""")
    stamp()
    for t in range(4):
        a(f"ds_read_b128 v[{48+4*t}:{51+4*t}], v119 offset:{64*t}")
    a(f"""s_cmp_ge_u32 s36, 28
    s_cbranch_scc1 L_nog
    v_mfma_f32_16x16x32_bf16 v[36:39], v[64:67], v[88:91], 0
    v_mfma_f32_16x16x32_bf16 v[36:39], v[68:71], v[92:95], v[36:39]
    L_nog:
    v_add_f32_dpp v40, v40, v40 row_ror:8 row_mask:0xf bank_mask:0xf
    v_mov_b32 v41, v40
    s_nop 1
    v_permlane16_swap_b32 v40, v41
    v_add_f32 v40, v40, v41
    v_mov_b32 v41, v40
    s_nop 1
    v_permlane32_swap_b32 v40, v41
    v_add_f32 v40, v40, v41
    v_rcp_f32 v40, v40""")
    for t in range(4):
        c = "0" if t == 0 else "v[32:35]"
        a(f"s_waitcnt lgkmcnt({lgk(3-t)})\nv_mfma_f32_16x16x32_bf16 v[32:35], v[{48+4*t}:{51+4*t}], v[{72+4*t}:{75+4*t}], {c}")
    a(f"""v_mov_b32 v5, v36
    s_nop 6
    v_pk_add_f32 v[32:33], v[32:33], v[34:35]
    v_add_f32 v4, v32, v33
    v_add_f32 v6, v32, v33
    s_nop 1
    v_permlane16_swap_b32 v4, v6
    v_add_f32 v4, v4, v6
    s_mov_b64 exec, 0xffff
    v_mul_f32 v4, v4, v40
    v_bfi_b32 v4, v19, v30, v4
    global_store_dwordx2 v121, v[4:5], s[28:29] sc1
    s_mov_b64 exec, -1""")
    stamp()
    if not noB: a("global_store_dwordx2 v46, v[126:127], s[26:27] sc1")
    a("s_branch L_fin")

    nst[0] = 0
    a("L_aux:")
    common()
    a(f"""v_mov_b32 v4, 0
    v_lshl_add_u32 v5, v2, 2, v3
    ds_write_b32 v5, v4
    ds_write_b32 v5, v4 offset:64
    s_lshl_b32 s38, s36, 7
    v_lshl_add_u32 v6, v2, 1, s38
    s_lshl_b32 s48, s34, 3
    s_add_u32 s48, s48, s30
    s_lshl_b32 s48, s48, 2
    s_and_b32 s38, s31, 3
    s_add_u32 s48, s48, s38
    s_lshl_b32 s38, s48, 3
    v_lshrrev_b32 v20, 5, v2
    v_and_b32 v21, 1, v2
    v_lshlrev_b32 v4, 2, v20
    v_lshl_add_u32 v4, v21, 1, v4
    v_add_u32 v12, s38, v4
    s_waitcnt lgkmcnt(0)
    s_load_dword s37, s[28:29], 0
    s_cmp_ge_u32 s36, 28
    s_cbranch_scc1 L_aux0
    global_load_ushort v8, v6, s[18:19]
    L_aux0:
    global_load_ushort v9, v12, s[4:5]
    global_load_ushort v10, v12, s[22:23]""")
    stamp()
    a(f"""s_barrier
    v_mov_b32 v5, 1
    v_mov_b32 v19, 0xff
    s_lshr_b32 s38, s48, 4
    s_lshl_b32 s38, s38, 14
    s_and_b32 s39, s48, 15
    s_lshl_b32 s39, s39, 5
    s_add_u32 s38, s38, s39
    s_add_u32 s38, s38, {FB}
    v_and_b32 v22, 31, v2
    v_lshlrev_b32 v17, 9, v22
    v_lshl_add_u32 v17, v20, 4, v17
    v_add_u32 v17, s38, v17
    v_cmp_eq_u32 s[46:47], 1, v21
    s_waitcnt lgkmcnt(0)
    s_add_u32 s37, s37, 1
    s_mul_i32 s40, s37, 0x9E3779B1
    v_mov_b32 v4, s40
    ds_write_b64 v3, v[4:5] offset:{256+48}
    s_lshr_b32 s42, s40, 16
    v_and_b32 v4, 3, v2
    v_lshlrev_b32 v4, 3, v4
    v_lshrrev_b32 v29, v4, s40""")
    stamp()
    if extra_dirty:
        a(f"s_lshl_b32 s38, s2, 12\ns_add_u32 s38, s38, 0x400000\nv_lshl_add_u32 v16, v2, 4, s38")
        for i in range(extra_dirty):
            a(f"global_store_dwordx4 v16, v[32:35], s[28:29] offset:{1024*i}")
    a(f"""s_cmp_ge_u32 s36, 28
    s_cbranch_scc1 L_aux1
    s_lshl_b32 s38, s36, 11
    s_add_u32 s38, s38, {HB}
    v_lshl_add_u32 v16, v2, 2, s38
    s_mov_b32 s49, {KSW}""")
    wait_prog(pace_h)
    a(f"""L_gh:
    s_sub_u32 s49, s49, 1
    s_cselect_b32 s39, {DL}, 0
    v_add_u32 v16, s39, v16""")
    for p_ in range(8):
        a(f"global_load_dword v{32+p_}, v16, s[28:29] offset:{256*p_} sc1")
    attempts(0)
    tmo()
    a(f"""s_waitcnt vmcnt(0)
    v_xor_b32 v4, v32, v29""")
    for p_ in range(1, 8):
        a(f"v_bitop3_b32 v4, v4, v{32+p_}, v29 bitop3:0xf6")
    C1 = 0xc0135761
    C2 = 0xbdd2d3e8
    a(f"""v_and_b32 v4, v19, v4
    v_cmp_ne_u32 vcc, 0, v4
    s_cbranch_vccnz L_gh
    v_pk_add_f32 v[32:33], v[32:33], v[34:35]
    v_pk_add_f32 v[36:37], v[36:37], v[38:39]
    v_pk_add_f32 v[32:33], v[32:33], v[36:37]
    v_add_f32 v32, v32, v33
    v_cvt_pk_bf16_f32 v32, v32, v32
    v_and_b32 v32, 0xffff0000, v32
    v_lshlrev_b32 v8, 16, v8
    v_add_f32 v32, v32, v8
    v_cvt_pk_bf16_f32 v32, v32, v32
    v_and_b32 v32, 0xffff0000, v32
    v_mul_f32 v33, v32, v32
    v_mov_b32 v34, {C1}
    v_fmac_f32 v34, {C2}, v33
    v_mul_f32 v33, v34, v32
    v_exp_f32 v33, v33
    v_lshlrev_b32 v5, 1, v2
    v_add_f32 v33, 1.0, v33
    v_rcp_f32 v33, v33
    v_add_u32 v5, {HL}, v5
    v_mul_f32 v32, v32, v33
    v_cvt_pk_bf16_f32 v32, v32, v32
    v_mov_b32 v6, 1
    ds_write_b16 v5, v32
    ds_write_b32 v3, v6 offset:{256+36}
""")
    pad(6, "L_comp")
    a("L_aux1:")
    stamp()
    a(f"""s_waitcnt vmcnt(0) lgkmcnt(0)
    v_lshlrev_b32 v9, 16, v9
    v_lshlrev_b32 v10, 16, v10
    s_barrier
    s_bitcmp1_b32 s31, 2
    s_cbranch_scc1 L_fin""")
    stamp()
    regs = [32 + 4 * i for i in range(nfin)]
    for r in regs[:-1]:
        a(f"global_load_dwordx4 v[{r}:{r+3}], v17, s[28:29] sc1")
    a("L_gf:")
    for k in range(nfin):
        r = regs[k]; rn = regs[(k - 1) % nfin]
        a(f"global_load_dwordx4 v[{rn}:{rn+3}], v17, s[28:29] sc1")
        attempts(2)
        if k == 0: tmo()
        a(f"""s_waitcnt vmcnt({nfin-1})
        v_xor_b32 v4, s40, v{r}
        v_bitop3_b32 v4, v4, v{r+2}, s42 bitop3:0xf6
        v_and_b32 v4, v19, v4
        v_cmp_ne_u32 vcc, 0, v4""")
        for i in range(4):
            a(f"v_add_f32_dpp v{48+i}, v{r+i}, v{r+i} row_ror:1 row_mask:0xf bank_mask:0xf")
        a("s_cbranch_vccz L_gfok" if k < nfin - 1 else "s_cbranch_vccnz L_gf")
    a("L_gfok:")
    stamp()
    for d in (2, 4, 8):
        for i in range(4):
            a(f"v_add_f32_dpp v{48+i}, v{48+i}, v{48+i} row_ror:{d} row_mask:0xf bank_mask:0xf")
    for i in range(4):
        a(f"v_add_f32_dpp v{48+i}, v{48+i}, v{48+i} row_bcast:15 row_mask:0xa bank_mask:0xf")
    a(f"""v_cndmask_b32 v48, v48, v50, s[46:47]
    v_cndmask_b32 v49, v49, v51, s[46:47]
    v_cvt_pk_bf16_f32 v48, v48, v49
    v_and_b32 v49, 0xffff0000, v48
    v_add_f32 v49, v49, v10
    v_cvt_pk_bf16_f32 v49, v49, v49
    v_and_b32 v49, 0xffff0000, v49
    v_mul_f32 v50, 0xbfb8aa3b, v49
    v_exp_f32 v50, v50
    v_lshlrev_b32 v48, 16, v48
    v_add_f32 v50, 1.0, v50
    v_rcp_f32 v50, v50
    s_mov_b32 exec_lo, 0x00030000
    v_mul_f32 v49, v49, v50
    v_cvt_pk_bf16_f32 v49, v49, v49
    v_and_b32 v49, 0xffff0000, v49
    v_mul_f32 v48, v48, v49
    v_cvt_pk_bf16_f32 v48, v48, v48
    s_mov_b32 exec_hi, 0x00030000
    v_and_b32 v48, 0xffff0000, v48
    v_add_f32 v48, v48, v9
    v_cvt_pk_bf16_f32 v48, v48, v48
    global_store_short v12, v48, s[24:25]
    s_cmp_lg_u32 s2, 0
    s_cbranch_scc1 L_fin
    v_mov_b32 v4, 0
    v_mov_b32 v5, s37
    s_mov_b64 exec, 0x10000
    global_store_dword v4, v5, s[28:29]""")
    a("L_fin:")
    if stamps:
        a("s_memrealtime s[92:93]")
        a("s_mov_b64 exec, -1\ns_waitcnt lgkmcnt(0)\nv_mov_b32 v5, 0\nv_writelane_b32 v5, s62, 0")
        for i in range(15):
            a(f"v_writelane_b32 v5, s{64+2*i}, {i+1}")
        a(f"""v_writelane_b32 v5, s33, 17
        s_getreg_b32 s38, hwreg(HW_REG_XCC_ID)
        v_writelane_b32 v5, s38, 18
        v_writelane_b32 v5, s56, 19
        v_writelane_b32 v5, s57, 20
        v_writelane_b32 v5, s58, 21
        s_lshl_b32 s38, s2, 10
        s_add_u32 s38, s38, {TS_OFF}
        v_lshrrev_b32 v1, 6, v0
        v_and_b32 v2, 63, v0
        v_lshlrev_b32 v4, 7, v1
        v_lshl_add_u32 v4, v2, 2, v4
        v_add_u32 v4, s38, v4
        s_mov_b64 exec, 0xffffffff
        global_store_dword v4, v5, s[28:29]""")
    a("L_exit:")
    body = "\n".join(("" if x.endswith(":") else "    ") + x for x in L)
    return f"""{HEADER}; @launch grid=(256,1,1) block=(384,1,1) lds={LDS_TOTAL}
.amdgcn_target "amdgcn-amd-amdhsa--gfx950"
.text
.globl {KN}_kernel
.p2align 8
.type {KN}_kernel,@function
{KN}_kernel:
{body}
    s_endpgm
.section .rodata,"a"
.p2align 6
.amdhsa_kernel {KN}_kernel
  .amdhsa_next_free_vgpr 136
  .amdhsa_next_free_sgpr 96
  .amdhsa_accum_offset 136
  .amdhsa_group_segment_fixed_size 0
  .amdhsa_kernarg_size 104
  .amdhsa_user_sgpr_count 2
  .amdhsa_user_sgpr_kernarg_segment_ptr 1
  .amdhsa_system_sgpr_workgroup_id_x 1
.end_amdhsa_kernel
"""
if __name__ == "__main__":
    import argparse, json
    ap = argparse.ArgumentParser()
    ap.add_argument("out"); ap.add_argument("--kw", default="{}")
    x = ap.parse_args()
    open(x.out, "w").write(gen(**json.loads(x.kw)))
```

```python
import sys
KN = "recurrent_scan__sliding_block_cached__mixer_channel_mlp__decode"
HEADER = open("cdna_kernels/%s.s.ref" % KN).read().split("; Override launch")[0]

ST = 1088
QB, HB, OB, FB = 0x10000, 0x20000, 0x40000, 0xC0000
DL = 0x100000
TS_OFF = 0x8000000
WAVE_GROUPS = {'loader': [0], 'c0': [1], 'c1': [2], 'c2': [3], 'c3': [4], 'comp': [1, 2, 3, 4], 'aux': [5]}

def gen(W=None, nt="", stamps=False, budget=20000, pace_h=40, KSW=64, warm=True, qstag=8, nfin=1, extra_dirty=0, pace_o=104, noB=False, diag=None):
    order = "q1KVo2"
    Wd = {"1": 20, "K": 20, "V": 20, "o": 20, "2": 20}
    if isinstance(W, int): Wd = {k: W for k in Wd}
    elif W: Wd.update(W)
    pol = {t: nt for t in order} if isinstance(nt, str) else {t: nt.get(t, "") for t in order}
    L = []
    def a(s):
        for x in s.split("\n"):
            x = x.strip()
            if x: L.append(x)
    cnt = {"q": 16, "1": 8, "K": 32, "V": 32, "o": 16, "2": 8}
    idx = {}; p = 0
    for t in order:
        idx[t] = p; p += cnt[t]
    NL = p
    base = {t: (idx[t] + 1) * ST for t in order}
    END = (NL + 1) * ST
    PROG = END
    FLG = PROG + 256
    XN = FLG + 64
    YN = XN + 1024
    QL = YN + 1024
    SL = QL + 4 * 288
    AL = SL + 4 * 576
    HL = AL + 8 * 288
    LDS_TOTAL = HL + 128
    assert LDS_TOTAL <= 163840
    nst = [0]
    def stamp():
        if stamps:
            a(f"s_memrealtime s[{64+2*nst[0]}:{65+2*nst[0]}]")
        nst[0] += 1
        assert nst[0] <= 15
    def lgk(n): return 0 if stamps else n
    uid = [0]
    def lab(p):
        uid[0] += 1
        return f"L_{p}{uid[0]}"
    def tmo(padn=None):
        a("s_sub_u32 s33, s33, 1")
        if padn and warm: a(f"L_pad{padn}:")
        a("s_cbranch_scc1 L_fin")
    def pad(n, target, jump=True):
        if warm:
            if jump: a(f"s_branch L_po{n}")
            a(f"L_pad{n}:\ns_branch {target}")
            if jump: a(f"L_po{n}:")
    def wait_prog(th):
        l = lab("wp")
        a(f"{l}:\nds_read_b32 v4, v3")
        tmo()
        a(f"""s_waitcnt lgkmcnt(0)
        v_cmp_gt_u32 vcc, {th}, v4
        s_cbranch_vccnz {l}""")
    def wait_flags(off, padn=None):
        l = lab("wf")
        a(f"{l}:\nds_read_b128 v[4:7], v3 offset:{256+off}")
        tmo(padn)
        a(f"""s_waitcnt lgkmcnt(0)
        v_bitop3_b32 v4, v4, v5, v6 bitop3:0x80
        v_and_b32 v4, v4, v7
        v_cmp_eq_u32 vcc, 0, v4
        s_cbranch_vccnz {l}""")
    def wait_flag1(off):
        l = lab("w1")
        a(f"{l}:\nds_read_b32 v4, v3 offset:{256+off}")
        tmo()
        a(f"""s_waitcnt lgkmcnt(0)
        v_cmp_eq_u32 vcc, 0, v4
        s_cbranch_vccnz {l}""")
    def attempts(i):
        if stamps: a(f"s_add_u32 s{56+i}, s{56+i}, 1")

    if diag: a(f"{diag[0]} s[60:61]")
    if stamps: a("s_memrealtime s[62:63]")
    a(f"""
    s_load_dwordx16 s[4:19], s[0:1], 0
    s_load_dwordx8 s[20:27], s[0:1], 64
    s_load_dwordx2 s[28:29], s[0:1], 96
    v_readfirstlane_b32 s32, v0
    s_lshr_b32 s31, s2, 3
    s_cmp_ge_u32 s31, 32
    s_cbranch_scc1 L_exit
    s_and_b32 s30, s2, 7
    s_lshr_b32 s34, s31, 3
    s_and_b32 s35, s31, 7
    s_lshr_b32 s32, s32, 6
""")
    if warm:
        for w in range(1, 6):
            a(f"s_cmp_eq_u32 s32, {w}\ns_cbranch_scc1 L_pad{w}")
    else:
        a("s_cmp_eq_u32 s32, 5\ns_cbranch_scc1 L_aux\ns_cmp_lg_u32 s32, 0\ns_cbranch_scc1 L_comp")
    a(f"""
    v_lshrrev_b32 v4, 3, v0
    v_and_b32 v5, 7, v0
    v_and_b32 v6, 2, v4
    v_xor_b32 v5, v5, v6
    v_lshlrev_b32 v5, 4, v5
    s_lshl_b32 s37, s34, 20
    s_lshl_b32 s38, s30, 10
    s_lshl_b32 s39, s35, 7
    s_add_u32 s37, s37, s38
    s_add_u32 s37, s37, s39
    v_lshl_add_u32 v10, v4, 13, v5
    v_add_u32 v10, s37, v10
    s_movk_i32 s50, {ST}
    s_lshl_b32 s51, 1, 16
    s_mov_b32 m0, 0
    v_lshlrev_b32 v9, 4, v0
    s_setprio 3
    s_waitcnt lgkmcnt(0)
    """)
    stamp()
    a("global_load_lds_dwordx4 v9, s[4:5]\ns_add_u32 m0, m0, s50\ns_nop 0")
    a(f"""L_ldq:
    global_load_lds_dwordx4 v10, s[10:11] {pol['q']}
    s_add_u32 m0, m0, s50
    v_add_u32 v10, s51, v10
    global_load_lds_dwordx4 v10, s[10:11] {pol['q']}
    s_add_u32 m0, m0, s50
    v_add_u32 v10, s51, v10
    s_cmpk_lt_u32 m0, {17*ST}
    s_cbranch_scc1 L_ldq""")
    stamp()
    a(f"""s_lshl_b32 s36, s30, 2
    s_add_u32 s36, s36, s34
    s_min_u32 s46, s36, 27
    s_cmp_lt_u32 s36, 28
    s_cselect_b64 s[48:49], -1, 1
    v_mov_b32 v3, {PROG}
    v_lshl_add_u32 v3, v0, 2, v3""")
    info = {"1": (11, 16), "K": (12, 6), "V": (13, 8), "o": (14, 12), "2": (15, 20)}
    setup = {
        "1": f"""s_mul_i32 s37, s35, 64*3584
        s_lshl_b32 s38, s46, 7
        s_add_u32 s37, s37, s38
        v_mul_u32_u24 v11, 3584, v4
        v_add3_u32 v11, v11, v5, s37
        s_movk_i32 s51, 28672""",
        "K": f"""s_lshl_b32 s37, s30, 23
        s_lshl_b32 s38, s31, 15
        s_add_u32 s37, s37, s38
        s_add_u32 s47, s37, 0x700000
        v_lshrrev_b32 v8, 4, v0
        v_and_b32 v9, 15, v0
        v_xor_b32 v6, v9, v8
        v_lshlrev_b32 v6, 4, v6
        v_lshl_add_u32 v12, v8, 8, v6
        v_add_u32 v12, s47, v12
        s_movk_i32 s51, 1024""",
        "V": f"""v_lshlrev_b32 v6, 1, v8
        v_xor_b32 v6, v9, v6
        v_lshlrev_b32 v6, 4, v6
        v_lshl_add_u32 v13, v8, 8, v6
        v_add_u32 v13, s47, v13""",
        "o": f"""v_lshl_add_u32 v15, v4, 10, v5
        s_lshl_b32 s37, s36, 17
        s_add_u32 s37, s37, s39
        v_add_u32 v14, s37, v15
        s_movk_i32 s51, 8192""",
        "2": f"""s_lshl_b32 s37, s46, 16
        s_add_u32 s37, s37, s39
        v_add_u32 v15, s37, v15""",
    }
    for t in order[1:]:
        v, s = info[t]; w = Wd[t]
        r = (w - 1 - idx[t]) % 4
        first = idx[t] + r - w + 1
        a(setup[t])
        if t == "1": pad(1, "L_comp")
        if t in "12": a("s_mov_b64 exec, s[48:49]")
        if t == "1":
            nfree = min(8, max(0, w - 16))
            for i in range(8):
                if i == nfree:
                    a(f"s_waitcnt vmcnt({16 + nfree})"); stamp(); a("s_barrier")
                if i >= nfree: a(f"s_waitcnt vmcnt({w-1})")
                a(f"""global_load_lds_dwordx4 v{v}, s[{s}:{s+1}] {pol[t]}
                s_add_u32 m0, m0, s50
                v_add_u32 v{v}, s51, v{v}""")
            if nfree == 8:
                a(f"s_waitcnt vmcnt(24)"); stamp(); a("s_barrier")
        else:
            a(f"v_mov_b32 v7, {first}")
            l = lab("ld")
            a(f"{l}:")
            for i in range(4):
                a(f"s_waitcnt vmcnt({w-1})")
                if i == r: a("ds_max_i32 v3, v7")
                a(f"""global_load_lds_dwordx4 v{v}, s[{s}:{s+1}] {pol[t]}
                s_add_u32 m0, m0, s50
                v_add_u32 v{v}, s51, v{v}""")
            e = base[t] + cnt[t] * ST
            a(f"""v_add_u32 v7, 4, v7
            {'s_cmpk_lt_u32' if e < 65536 else 's_cmp_lt_u32'} m0, {e}
            s_cbranch_scc1 {l}""")
        if t in "12": a("s_mov_b64 exec, -1")
        stamp()
    for b in range(4, NL + 1, 4):
        if b > NL - Wd["2"] and (b <= idx['V'] + 32 or b == NL or b == pace_o):
            a(f"v_mov_b32 v7, {b}\ns_waitcnt vmcnt({NL-b})\nds_max_i32 v3, v7")
    stamp()
    a("s_branch L_fin")

    def common():
        a(f"""v_and_b32 v2, 63, v0
        s_lshl_b32 s36, s30, 2
        s_add_u32 s36, s36, s34
        s_mov_b32 s33, {budget}
        v_mov_b32 v3, {PROG}
        """)
        if stamps: a("s_mov_b64 s[56:57], 0\ns_mov_b64 s[58:59], 0")
    nst[0] = 0
    a("L_comp:")
    common()
    a(f"""
    v_lshlrev_b32 v16, 4, v2
    s_sub_u32 s32, s32, 1
    v_and_b32 v20, 15, v2
    v_lshrrev_b32 v21, 4, v2
    v_lshrrev_b32 v22, 2, v20
    v_and_b32 v23, 3, v2
    s_lshl_b32 s38, s30, 13
    s_lshl_b32 s39, s34, 11
    s_add_u32 s38, s38, s39
    s_lshl_b32 s39, s35, 8
    s_lshl_b32 s44, s32, 6
    s_add_u32 s39, s39, s44
    s_add_u32 s38, s38, s39
    s_add_u32 s38, s38, {QB}
    v_lshl_add_u32 v12, v20, 2, s38
    s_lshl_b32 s38, s36, 11
    s_add_u32 s38, s38, s39
    s_add_u32 s38, s38, {HB}
    v_lshl_add_u32 v13, v20, 2, s38
    s_lshl_b32 s38, s30, 16
    s_lshl_b32 s39, s31, 9
    s_add_u32 s38, s38, s39
    s_lshl_b32 s45, s32, 7
    s_add_u32 s38, s38, s45
    s_add_u32 s38, s38, {OB}
    v_lshlrev_b32 v46, 14, v21
    v_lshl_add_u32 v46, v20, 3, v46
    v_add_u32 v46, s38, v46
    s_waitcnt lgkmcnt(0)
    global_load_dword v125, v12, s[28:29] sc1
    global_load_dword v113, v13, s[28:29] sc1
    global_load_dword v114, v46, s[28:29] sc1
    """)
    a(f"""
    s_add_u32 s26, s28, {DL}
    s_addc_u32 s27, s29, 0
    s_lshl_b32 s38, s32, 1
    v_lshrrev_b32 v7, 1, v23
    v_add_u32 v4, s38, v7
    v_and_b32 v5, 2, v22
    v_xor_b32 v4, v4, v5
    v_lshlrev_b32 v4, 4, v4
    v_and_b32 v14, 1, v23
    v_lshl_add_u32 v5, v14, 3, v4
    v_lshl_add_u32 v5, v22, 7, v5
    v_mul_u32_u24 v6, {ST}, v21
    v_add_u32 v24, v5, v6
    v_add_u32 v25, {base['o']}, v24
    s_mul_i32 s38, s32, {8*ST}
    s_add_u32 s38, s38, {base['K']}
    v_xor_b32 v4, v21, v23
    v_lshlrev_b32 v4, 4, v4
    v_lshl_add_u32 v4, v23, 8, v4
    v_mul_u32_u24 v5, {ST}, v22
    v_add3_u32 v26, v4, v5, s38
    s_lshl_b32 s38, s32, 2
    v_add_u32 v4, s38, v7
    v_lshlrev_b32 v5, 1, v22
    v_xor_b32 v4, v4, v5
    v_lshlrev_b32 v4, 4, v4
    v_lshl_add_u32 v4, v14, 3, v4
    v_lshl_add_u32 v4, v22, 8, v4
    v_xor_b32 v5, 32, v4
    v_lshlrev_b32 v6, 1, v6
    v_add_u32 v6, {base['V']}, v6
    v_add_u32 v27, v4, v6
    v_add_u32 v28, v5, v6
    v_add_u32 v44, s38, v3""")
    pad(2, "L_comp")
    a(f"""v_mov_b32 v19, 0xff
    v_mov_b32 v18, 0x3b000000
    v_mov_b32 v112, v16
    v_add_u32 v16, {XN}, v16
    v_lshlrev_b32 v15, 4, v21
    s_lshl_b32 s38, s34, 8
    s_add_u32 s38, s38, {XN}
    v_add_u32 v17, s38, v15""")
    stamp()
    a("s_barrier")
    stamp()
    a("ds_read_b128 v[8:11], v112\ns_waitcnt lgkmcnt(0)")
    for i in range(4):
        a(f"v_lshlrev_b32 v{32+2*i}, 16, v{8+i}\nv_and_b32 v{33+2*i}, 0xffff0000, v{8+i}")
    a("s_mov_b32 s55, 0\nL_ln:")
    a("""v_pk_mul_f32 v[40:41], v[32:33], v[32:33]
    v_pk_add_f32 v[4:5], v[32:33], v[34:35]
    v_pk_fma_f32 v[40:41], v[34:35], v[34:35], v[40:41]
    v_pk_add_f32 v[6:7], v[36:37], v[38:39]
    v_pk_fma_f32 v[40:41], v[36:37], v[36:37], v[40:41]
    v_pk_add_f32 v[4:5], v[4:5], v[6:7]
    v_pk_fma_f32 v[40:41], v[38:39], v[38:39], v[40:41]
    v_add_f32 v4, v4, v5
    v_add_f32 v5, v40, v41
    s_nop 0""")
    for d in ("row_shr:1", "row_shr:2", "row_shr:4", "row_shr:8"):
        a(f"""v_add_f32_dpp v4, v4, v4 {d} row_mask:0xf bank_mask:0xf bound_ctrl:1
        v_add_f32_dpp v5, v5, v5 {d} row_mask:0xf bank_mask:0xf bound_ctrl:1
        s_nop 0""")
    a(f"""v_add_f32_dpp v4, v4, v4 row_bcast:15 row_mask:0xa bank_mask:0xf
    v_add_f32_dpp v5, v5, v5 row_bcast:15 row_mask:0xa bank_mask:0xf
    s_nop 0
    v_add_f32_dpp v4, v4, v4 row_bcast:31 row_mask:0xc bank_mask:0xf
    v_add_f32_dpp v5, v5, v5 row_bcast:31 row_mask:0xc bank_mask:0xf
    s_nop 0
    v_readlane_b32 s38, v4, 63
    v_readlane_b32 s39, v5, 63
    s_nop 0
    v_mul_f32 v4, s38, v18
    v_mul_f32 v5, s39, v18
    v_fma_f32 v5, -v4, v4, v5
    v_max_f32 v5, 0, v5
    v_cvt_pk_bf16_f32 v4, v4, v5
    v_and_b32 v5, 0xffff0000, v4
    v_lshlrev_b32 v4, 16, v4
    v_add_f32 v5, 0x3727c5ac, v5
    v_cvt_pk_bf16_f32 v5, v5, v5
    v_and_b32 v5, 0xffff0000, v5
    v_sqrt_f32 v6, v5""")
    for i in range(4):
        a(f"v_pk_add_f32 v[{32+2*i}:{33+2*i}], v[{32+2*i}:{33+2*i}], v[4:5] op_sel_hi:[1,0] neg_lo:[0,1] neg_hi:[0,1]")
    a(f"""v_cvt_pk_bf16_f32 v6, v6, v6
    v_and_b32 v6, 0xffff0000, v6
    v_rcp_f32 v6, v6""")
    for i in range(4):
        a(f"v_cvt_pk_bf16_f32 v{40+i}, v{32+2*i}, v{33+2*i}")
    for i in range(4):
        a(f"v_lshlrev_b32 v{32+2*i}, 16, v{40+i}\nv_and_b32 v{33+2*i}, 0xffff0000, v{40+i}")
    for i in range(4):
        a(f"v_pk_mul_f32 v[{32+2*i}:{33+2*i}], v[{32+2*i}:{33+2*i}], v[6:7] op_sel_hi:[1,0]")
    for i in range(4):
        a(f"v_cvt_pk_bf16_f32 v{40+i}, v{32+2*i}, v{33+2*i}")
    a("""ds_write_b128 v16, v[40:43]
    s_cmp_lg_u32 s55, 0
    s_cbranch_scc1 L_ln2""")
    for t in range(4):
        a(f"ds_read_b128 v[{48+4*t}:{51+4*t}], v17 offset:{64*t}")
    for i in range(4):
        a(f"v_lshlrev_b32 v{32+2*i}, 16, v{40+i}\nv_and_b32 v{33+2*i}, 0xffff0000, v{40+i}")
    stamp()
    a(f"""s_lshl_b32 s38, s35, 7
    s_add_u32 s38, s38, {YN}
    v_add_u32 v17, s38, v15
    v_add_u32 v16, 1024, v16
    s_lshl_b32 s38, s30, 13
    s_lshl_b32 s39, s32, 9
    s_add_u32 s38, s38, s39
    s_add_u32 s38, s38, {QB}
    v_lshl_add_u32 v8, v2, 3, s38
    v_add_u32 v9, 4096, v8
    s_mul_i32 s39, s32, 288
    s_add_u32 s39, s39, {QL}
    v_lshl_add_u32 v10, v2, 2, s39
    v_mul_u32_u24 v11, 288, v23
    v_add_u32 v11, v11, v15
    v_add_u32 v11, {QL}, v11
    s_add_u32 s38, s45, {SL}
    v_mul_u32_u24 v47, 576, v23
    v_add3_u32 v47, v47, v15, s38
    v_mul_u32_u24 v115, 576, v22
    v_lshl_add_u32 v115, v23, 7, v115
    v_lshl_add_u32 v115, v21, 5, v115
    v_add_u32 v115, {SL}, v115
    s_lshl_b32 s38, s36, 14
    s_add_u32 s38, s38, s45
    s_add_u32 s38, s38, {OB}
    v_lshrrev_b32 v6, 3, v2
    v_and_b32 v5, 7, v2
    v_lshlrev_b32 v116, 11, v6
    v_lshl_add_u32 v116, v5, 4, v116
    v_add_u32 v116, s38, v116
    s_add_u32 s38, s44, {AL}
    v_mul_u32_u24 v117, 288, v6
    v_lshl_add_u32 v117, v5, 2, v117
    v_add_u32 v117, s38, v117
    v_mov_b32 v118, 0x0c0c0400
    v_mov_b32 v6, 0x04000c0c
    v_cmp_eq_u32 vcc, 1, v14
    v_mul_u32_u24 v119, 288, v5
    v_add_u32 v119, v119, v15
    v_cndmask_b32 v118, v118, v6, vcc
    v_add_u32 v119, {AL}, v119
    v_add_u32 v120, {HL}, v15
    s_lshl_b32 s38, s35, 14
    s_lshl_b32 s39, s36, 9
    s_add_u32 s38, s38, s39
    s_add_u32 s38, s38, s45
    s_add_u32 s38, s38, {FB}
    v_lshl_add_u32 v121, v20, 3, s38
    s_lshl_b32 s52, s32, 3
    s_add_u32 s52, s52, {idx['K'] + 8}""")
    l = lab("wt")
    a(f"{l}:\nds_read_b64 v[4:5], v3 offset:{256+48}")
    tmo()
    a(f"""s_waitcnt lgkmcnt(0)
    v_cmp_eq_u32 vcc, 0, v5
    s_cbranch_vccnz {l}
    v_readfirstlane_b32 s40, v4
    v_lshlrev_b32 v122, 3, v23
    v_lshrrev_b32 v29, v122, v4
    v_lshlrev_b32 v5, 4, v14
    v_lshrrev_b32 v30, v5, v4
    v_lshrrev_b32 v31, 8, v30
    s_lshr_b32 s42, s40, 16
    """)
    wait_prog(idx['q'] + 16)
    stamp()
    for t in range(4):
        for rd in range(2):
            a(f"ds_read_b64_tr_b16 v[{72+4*t+2*rd}:{73+4*t+2*rd}], v24 offset:{base['q'] + t*4*ST + rd*512}")
    for t in range(4):
        c = "0" if t == 0 else "v[4:7]"
        a(f"s_waitcnt lgkmcnt({lgk(6-2*t)})\nv_mfma_f32_16x16x32_bf16 v[4:7], v[{48+4*t}:{51+4*t}], v[{72+4*t}:{75+4*t}], {c}")
    a(f"""s_mov_b64 exec, 0xffff
    s_mov_b32 s55, 1
    s_cmp_lt_u32 s36, 28
    s_nop 4
    v_bfi_b32 v123, v19, v29, v4
    global_store_dword v12, v123, s[28:29]
    s_mov_b64 exec, -1""")
    stamp()
    a(f"""s_cbranch_scc1 L_ln
    s_branch L_nomlp1""")
    pad(3, "L_comp", jump=False)
    a(f"""L_ln2:
    ds_read_b128 v[64:67], v17
    ds_read_b128 v[68:71], v17 offset:64""")
    wait_prog(idx['1'] + 8)
    for t in range(2):
        for rd in range(2):
            a(f"ds_read_b64_tr_b16 v[{72+4*t+2*rd}:{73+4*t+2*rd}], v24 offset:{base['1'] + t*4*ST + rd*512}")
    a(f"""s_waitcnt lgkmcnt(0)
    v_mfma_f32_16x16x32_bf16 v[4:7], v[64:67], v[72:75], 0
    v_mfma_f32_16x16x32_bf16 v[4:7], v[68:71], v[76:79], v[4:7]
    s_mov_b64 exec, 0xffff
    s_nop 6
    v_bfi_b32 v124, v19, v29, v4
    global_store_dword v13, v124, s[28:29]
    s_mov_b64 exec, -1
    L_nomlp1:""")
    stamp()
    def qissue(r):
        a(f"""global_load_dwordx2 v[{r}:{r+1}], v8, s[28:29] sc1
        global_load_dwordx2 v[{r+2}:{r+3}], v8, s[28:29] offset:2048 sc1
        global_load_dwordx2 v[{r+4}:{r+5}], v9, s[28:29] sc1
        global_load_dwordx2 v[{r+6}:{r+7}], v9, s[28:29] offset:2048 sc1""")
        attempts(0)
    def qcheck(r):
        a(f"v_xor_b32 v4, v{r}, v30")
        for i in range(1, 8):
            a(f"v_bitop3_b32 v4, v4, v{r+i}, v{30 + (i & 1)} bitop3:0xf6")
        a(f"""v_and_b32 v4, v19, v4
        v_cmp_ne_u32 vcc, 0, v4
        v_pk_add_f32 v[40:41], v[{r}:{r+1}], v[{r+2}:{r+3}]
        v_pk_add_f32 v[42:43], v[{r+4}:{r+5}], v[{r+6}:{r+7}]""")
    def qhB():
        a(f"""s_mov_b64 exec, 0xffff
        global_store_dword v12, v123, s[26:27] sc1
        global_store_dword v13, v124, s[26:27] sc1
        s_mov_b64 exec, -1""")
    qissue(128)
    a(f"""ds_read_b32 v4, v3
    s_mov_b32 s47, {KSW // 2}
    s_waitcnt lgkmcnt(0)
    v_readfirstlane_b32 s53, v4
    s_add_u32 s53, s53, {qstag}
    s_min_u32 s53, s53, {NL}""")
    wait_prog("s53")
    a("L_gq:")
    qissue(104)
    tmo()
    a("s_waitcnt vmcnt(4)")
    qcheck(128)
    a("s_cbranch_vccz L_gqok")
    a(f"""s_sub_u32 s47, s47, 1
    s_cbranch_scc0 L_gq2
    v_add_u32 v8, {DL}, v8
    v_add_u32 v9, {DL}, v9""")
    qhB()
    a("L_gq2:")
    qissue(128)
    a("s_waitcnt vmcnt(4)")
    qcheck(104)
    a("s_cbranch_vccnz L_gq")
    a(f"""L_gqok:
    v_pk_add_f32 v[40:41], v[40:41], v[42:43]
    v_mov_b32 v5, 1
    v_cvt_pk_bf16_f32 v40, v40, v41
    ds_write_b32 v10, v40
    ds_write_b32 v44, v5 offset:256""")
    stamp()
    qhB()
    wait_prog("s52")
    for u in range(2):
        for t in range(4):
            r = 72 + 16*u + 4*t
            a(f"ds_read_b128 v[{r}:{r+3}], v26 offset:{u*4*ST + t*64}")
    wait_flags(0)
    for t in range(4):
        a(f"ds_read_b128 v[{48+4*t}:{51+4*t}], v11 offset:{64*t}")
    for t in range(4):
        a(f"s_waitcnt lgkmcnt({lgk(3-t)})")
        for u in range(2):
            c = "0" if t == 0 else f"v[{32+4*u}:{35+4*u}]"
            a(f"v_mfma_f32_16x16x32_bf16 v[{32+4*u}:{35+4*u}], v[{72+16*u+4*t}:{75+16*u+4*t}], v[{48+4*t}:{51+4*t}], {c}")
    SC = 0x3e0293ee
    a(f"""s_mov_b32 exec_lo, 0x000f000f
    s_mov_b32 exec_hi, 0x000f000f
    v_mov_b32 v5, 1
    s_mov_b32 s46, {SC}
    s_nop 3
    ds_write_b128 v47, v[32:35]
    ds_write_b128 v47, v[36:39] offset:64
    ds_write_b32 v44, v5 offset:272
    s_mov_b64 exec, -1
    v_mov_b32 v64, 0x3f803f80
    v_mov_b32 v65, v64
    v_mov_b32 v66, v64
    v_mov_b32 v67, v64""")
    stamp()
    pad(4, "L_pad6")
    wait_flags(16)
    def vreads(t):
        for ntile in range(2):
            for rd in range(2):
                r = 72 + 8*t + 4*ntile + 2*rd
                a(f"ds_read_b64_tr_b16 v[{r}:{r+1}], v{27+ntile} offset:{t*8*ST + rd*ST}")
    a(f"""ds_read_b32 v4, v3
    ds_read_b128 v[32:35], v115
    ds_read_b128 v[36:39], v115 offset:16
    s_waitcnt lgkmcnt({lgk(2)})
    v_readfirstlane_b32 s53, v4
    s_waitcnt lgkmcnt(0)
    v_max3_f32 v4, v32, v33, v34
    v_max3_f32 v5, v35, v36, v37
    v_max3_f32 v4, v4, v38, v39
    v_max_f32 v4, v4, v5""")
    for t in range(4):
        a(f"s_cmpk_lt_u32 s53, {idx['V'] + 8*(t+1)}\ns_cbranch_scc1 L_v1")
        vreads(t)
    a(f"""L_v1:
    v_max_f32_dpp v4, v4, v4 quad_perm:[1,0,3,2] row_mask:0xf bank_mask:0xf
    s_nop 1
    v_max_f32_dpp v4, v4, v4 quad_perm:[2,3,0,1] row_mask:0xf bank_mask:0xf
    v_mov_b32 v5, v4
    s_nop 1
    v_permlane16_swap_b32 v4, v5
    v_max_f32 v4, v4, v5
    v_mov_b32 v5, v4
    s_nop 1
    v_permlane32_swap_b32 v4, v5
    v_max_f32 v4, v4, v5
    v_mul_f32 v6, s46, v4""")
    for i in range(8):
        a(f"v_fma_f32 v{32+i}, v{32+i}, s46, -v6")
        if i == 0: a("ds_bpermute_b32 v45, v15, v6")
    for i in range(8):
        a(f"v_exp_f32 v{32+i}, v{32+i}")
    a("s_nop 0")
    for i in range(4):
        a(f"v_cvt_pk_bf16_f32 v{40+i}, v{32+2*i}, v{33+2*i}")
    a("s_nop 0")
    for t in range(4):
        for i in range(4):
            a(f"v_mov_b32_dpp v{48+4*t+i}, v{40+i} quad_perm:[{t},{t},{t},{t}] row_mask:0xf bank_mask:0xf")
        if t > 0:
            c = "0" if t == 1 else "v[68:71]"
            a(f"v_mfma_f32_16x16x32_bf16 v[68:71], v[{44+4*t}:{47+4*t}], v[64:67], {c}")
    a("s_nop 0\nv_mfma_f32_16x16x32_bf16 v[68:71], v[60:63], v[64:67], v[68:71]")
    stamp()
    for t in range(4):
        sk = lab("vs")
        a(f"s_cmpk_ge_u32 s53, {idx['V'] + 8*(t+1)}\ns_cbranch_scc1 {sk}")
        wait_prog(idx['V'] + 8*(t+1))
        vreads(t)
        a(f"{sk}:\ns_waitcnt lgkmcnt(0)")
        for ntile in range(2):
            c = "0" if t == 0 else f"v[{32+4*ntile}:{35+4*ntile}]"
            a(f"v_mfma_f32_16x16x32_bf16 v[{32+4*ntile}:{35+4*ntile}], v[{48+4*t}:{51+4*t}], v[{72+8*t+4*ntile}:{75+8*t+4*ntile}], {c}")
        if t == 1:
            a("""v_log_f32 v5, v68
            v_rcp_f32 v6, v68
            v_add_f32 v45, v45, v5
            v_lshrrev_b32 v45, v122, v45""")
    a(f"""s_nop 6
    v_mul_f32 v32, v32, v6
    v_bfi_b32 v126, v19, v30, v32
    v_mul_f32 v36, v36, v6
    v_bfi_b32 v127, v19, v45, v36
    global_store_dwordx2 v46, v[126:127], s[28:29]""")
    stamp()
    def ogather():
        for i in range(4):
            a(f"global_load_dwordx4 v[{48+4*i}:{51+4*i}], v116, s[28:29] offset:{512*i} sc1")
        attempts(1)
    a(f"""v_mov_b32 v36, 0
    s_mov_b32 s47, {KSW}
    s_cmp_ge_u32 s36, 28
    s_cbranch_scc1 L_nohw""")
    wait_flag1(36)
    a(f"""ds_read_b128 v[64:67], v120
    ds_read_b128 v[68:71], v120 offset:64
    L_nohw:""")
    if pace_o > idx['V'] + 32: wait_prog(pace_o)
    ogather()
    if pace_o < NL: wait_prog(NL)
    stamp()
    o2 = base['2'] - base['o']
    for t in range(2):
        for rd in range(2):
            a(f"ds_read_b64_tr_b16 v[{88+4*t+2*rd}:{89+4*t+2*rd}], v25 offset:{o2 + t*4*ST + rd*512}")
    for t in range(4):
        for rd in range(2):
            a(f"ds_read_b64_tr_b16 v[{72+4*t+2*rd}:{73+4*t+2*rd}], v25 offset:{t*4*ST + rd*512}")
    a("s_branch L_go1")
    pad(5, "L_aux", jump=False)
    a(f"""L_go:
    s_sub_u32 s47, s47, 1
    s_cbranch_scc0 L_go2
    v_add_u32 v116, {DL}, v116
    global_store_dwordx2 v46, v[126:127], s[26:27] sc1
    L_go2:""")
    ogather()
    a("L_go1:")
    tmo()
    a(f"""s_waitcnt vmcnt(0)
    v_xor_b32 v4, s40, v48
    v_bitop3_b32 v4, v4, v50, s42 bitop3:0xf6
    v_bitop3_b32 v4, v4, v52, s40 bitop3:0xf6
    v_bitop3_b32 v4, v4, v54, s42 bitop3:0xf6
    v_bitop3_b32 v4, v4, v56, s40 bitop3:0xf6
    v_bitop3_b32 v4, v4, v58, s42 bitop3:0xf6
    v_bitop3_b32 v4, v4, v60, s40 bitop3:0xf6
    v_bitop3_b32 v4, v4, v62, s42 bitop3:0xf6
    v_and_b32 v4, v19, v4
    v_cmp_ne_u32 vcc, 0, v4
    v_perm_b32 v40, v51, v49, v118
    v_perm_b32 v41, v55, v53, v118
    s_cbranch_vccnz L_go
    v_perm_b32 v42, v59, v57, v118
    v_perm_b32 v43, v63, v61, v118
    v_or_b32_dpp v40, v40, v40 quad_perm:[1,0,3,2] row_mask:0xf bank_mask:0xf
    v_or_b32_dpp v41, v41, v41 quad_perm:[1,0,3,2] row_mask:0xf bank_mask:0xf
    v_or_b32_dpp v42, v42, v42 quad_perm:[1,0,3,2] row_mask:0xf bank_mask:0xf
    v_or_b32_dpp v43, v43, v43 quad_perm:[1,0,3,2] row_mask:0xf bank_mask:0xf
    v_max_f32 v5, v40, v41
    v_max3_f32 v5, v5, v42, v43
    s_nop 1
    v_max_f32_dpp v5, v5, v5 row_ror:8 row_mask:0xf bank_mask:0xf
    v_mov_b32 v6, v5
    s_nop 1
    v_permlane16_swap_b32 v5, v6
    v_max_f32 v5, v5, v6
    v_mov_b32 v6, v5
    s_nop 1
    v_permlane32_swap_b32 v5, v6
    v_max_f32 v5, v5, v6
    v_sub_f32 v40, v40, v5
    v_sub_f32 v41, v41, v5
    v_exp_f32 v40, v40
    v_sub_f32 v42, v42, v5
    v_exp_f32 v41, v41
    v_sub_f32 v43, v43, v5
    v_exp_f32 v42, v42
    v_exp_f32 v43, v43
    v_pk_mul_f32 v[32:33], v[48:49], v[40:41] op_sel_hi:[1,0]
    v_pk_mul_f32 v[34:35], v[50:51], v[40:41] op_sel_hi:[1,0]""")
    sel = {1: ("v[40:41]", "op_sel:[0,1,0] op_sel_hi:[1,1,1]"), 2: ("v[42:43]", "op_sel_hi:[1,0,1]"), 3: ("v[42:43]", "op_sel:[0,1,0] op_sel_hi:[1,1,1]")}
    for i in range(1, 4):
        w_, m_ = sel[i]
        a(f"""v_pk_fma_f32 v[32:33], v[{48+4*i}:{49+4*i}], {w_}, v[32:33] {m_}
        v_pk_fma_f32 v[34:35], v[{50+4*i}:{51+4*i}], {w_}, v[34:35] {m_}""")
    a(f"""v_cvt_pk_bf16_f32 v4, v32, v34
    v_cvt_pk_bf16_f32 v5, v33, v35
    ds_write2_b32 v117, v4, v5 offset0:0 offset1:8""")
    stamp()
    a(f"""v_pk_add_f32 v[40:41], v[40:41], v[42:43]
    v_add_f32 v40, v40, v41
    s_waitcnt lgkmcnt(0)
    s_barrier""")
    stamp()
    for t in range(4):
        a(f"ds_read_b128 v[{48+4*t}:{51+4*t}], v119 offset:{64*t}")
    a(f"""s_cmp_ge_u32 s36, 28
    s_cbranch_scc1 L_nog
    v_mfma_f32_16x16x32_bf16 v[36:39], v[64:67], v[88:91], 0
    v_mfma_f32_16x16x32_bf16 v[36:39], v[68:71], v[92:95], v[36:39]
    L_nog:
    v_add_f32_dpp v40, v40, v40 row_ror:8 row_mask:0xf bank_mask:0xf
    v_mov_b32 v41, v40
    s_nop 1
    v_permlane16_swap_b32 v40, v41
    v_add_f32 v40, v40, v41
    v_mov_b32 v41, v40
    s_nop 1
    v_permlane32_swap_b32 v40, v41
    v_add_f32 v40, v40, v41
    v_rcp_f32 v40, v40""")
    for t in range(4):
        c = "0" if t == 0 else "v[32:35]"
        a(f"s_waitcnt lgkmcnt({lgk(3-t)})\nv_mfma_f32_16x16x32_bf16 v[32:35], v[{48+4*t}:{51+4*t}], v[{72+4*t}:{75+4*t}], {c}")
    a(f"""v_mov_b32 v5, v36
    s_nop 6
    v_pk_add_f32 v[32:33], v[32:33], v[34:35]
    v_add_f32 v4, v32, v33
    v_add_f32 v6, v32, v33
    s_nop 1
    v_permlane16_swap_b32 v4, v6
    v_add_f32 v4, v4, v6
    s_mov_b64 exec, 0xffff
    v_mul_f32 v4, v4, v40
    v_bfi_b32 v4, v19, v30, v4
    global_store_dwordx2 v121, v[4:5], s[28:29] sc1
    s_mov_b64 exec, -1""")
    stamp()
    if not noB: a("global_store_dwordx2 v46, v[126:127], s[26:27] sc1")
    a("s_branch L_fin")

    nst[0] = 0
    a("L_aux:")
    common()
    a(f"""v_mov_b32 v4, 0
    v_lshl_add_u32 v5, v2, 2, v3
    ds_write_b32 v5, v4
    ds_write_b32 v5, v4 offset:64
    s_lshl_b32 s38, s36, 7
    v_lshl_add_u32 v6, v2, 1, s38
    s_lshl_b32 s48, s34, 3
    s_add_u32 s48, s48, s30
    s_lshl_b32 s48, s48, 2
    s_and_b32 s38, s31, 3
    s_add_u32 s48, s48, s38
    s_lshl_b32 s38, s48, 3
    v_lshrrev_b32 v20, 5, v2
    v_and_b32 v21, 1, v2
    v_lshlrev_b32 v4, 2, v20
    v_lshl_add_u32 v4, v21, 1, v4
    v_add_u32 v12, s38, v4
    s_waitcnt lgkmcnt(0)
    s_load_dword s37, s[28:29], 0
    s_cmp_ge_u32 s36, 28
    s_cbranch_scc1 L_aux0
    global_load_ushort v8, v6, s[18:19]
    L_aux0:
    global_load_ushort v9, v12, s[4:5]
    global_load_ushort v10, v12, s[22:23]""")
    stamp()
    a(f"""s_barrier
    v_mov_b32 v5, 1
    v_mov_b32 v19, 0xff
    s_lshr_b32 s38, s48, 4
    s_lshl_b32 s38, s38, 14
    s_and_b32 s39, s48, 15
    s_lshl_b32 s39, s39, 5
    s_add_u32 s38, s38, s39
    s_add_u32 s38, s38, {FB}
    v_and_b32 v22, 31, v2
    v_lshlrev_b32 v17, 9, v22
    v_lshl_add_u32 v17, v20, 4, v17
    v_add_u32 v17, s38, v17
    v_cmp_eq_u32 s[46:47], 1, v21
    s_waitcnt lgkmcnt(0)
    s_add_u32 s37, s37, 1
    s_mul_i32 s40, s37, 0x9E3779B1
    v_mov_b32 v4, s40
    ds_write_b64 v3, v[4:5] offset:{256+48}
    s_lshr_b32 s42, s40, 16
    v_and_b32 v4, 3, v2
    v_lshlrev_b32 v4, 3, v4
    v_lshrrev_b32 v29, v4, s40""")
    stamp()
    if extra_dirty:
        a(f"s_lshl_b32 s38, s2, 12\ns_add_u32 s38, s38, 0x400000\nv_lshl_add_u32 v16, v2, 4, s38")
        for i in range(extra_dirty):
            a(f"global_store_dwordx4 v16, v[32:35], s[28:29] offset:{1024*i}")
    a(f"""s_cmp_ge_u32 s36, 28
    s_cbranch_scc1 L_aux1
    s_lshl_b32 s38, s36, 11
    s_add_u32 s38, s38, {HB}
    v_lshl_add_u32 v16, v2, 2, s38
    s_mov_b32 s49, {KSW}""")
    wait_prog(pace_h)
    a(f"""L_gh:
    s_sub_u32 s49, s49, 1
    s_cselect_b32 s39, {DL}, 0
    v_add_u32 v16, s39, v16""")
    for p_ in range(8):
        a(f"global_load_dword v{32+p_}, v16, s[28:29] offset:{256*p_} sc1")
    attempts(0)
    tmo()
    a(f"""s_waitcnt vmcnt(0)
    v_xor_b32 v4, v32, v29""")
    for p_ in range(1, 8):
        a(f"v_bitop3_b32 v4, v4, v{32+p_}, v29 bitop3:0xf6")
    C1 = 0xc0135761
    C2 = 0xbdd2d3e8
    a(f"""v_and_b32 v4, v19, v4
    v_cmp_ne_u32 vcc, 0, v4
    s_cbranch_vccnz L_gh
    v_pk_add_f32 v[32:33], v[32:33], v[34:35]
    v_pk_add_f32 v[36:37], v[36:37], v[38:39]
    v_pk_add_f32 v[32:33], v[32:33], v[36:37]
    v_add_f32 v32, v32, v33
    v_cvt_pk_bf16_f32 v32, v32, v32
    v_and_b32 v32, 0xffff0000, v32
    v_lshlrev_b32 v8, 16, v8
    v_add_f32 v32, v32, v8
    v_cvt_pk_bf16_f32 v32, v32, v32
    v_and_b32 v32, 0xffff0000, v32
    v_mul_f32 v33, v32, v32
    v_mov_b32 v34, {C1}
    v_fmac_f32 v34, {C2}, v33
    v_mul_f32 v33, v34, v32
    v_exp_f32 v33, v33
    v_lshlrev_b32 v5, 1, v2
    v_add_f32 v33, 1.0, v33
    v_rcp_f32 v33, v33
    v_add_u32 v5, {HL}, v5
    v_mul_f32 v32, v32, v33
    v_cvt_pk_bf16_f32 v32, v32, v32
    v_mov_b32 v6, 1
    ds_write_b16 v5, v32
    ds_write_b32 v3, v6 offset:{256+36}
""")
    pad(6, "L_comp")
    a("L_aux1:")
    stamp()
    a(f"""s_waitcnt vmcnt(0) lgkmcnt(0)
    v_lshlrev_b32 v9, 16, v9
    v_lshlrev_b32 v10, 16, v10
    s_barrier
    s_bitcmp1_b32 s31, 2
    s_cbranch_scc1 L_fin""")
    stamp()
    regs = [32 + 4 * i for i in range(nfin)]
    for r in regs[:-1]:
        a(f"global_load_dwordx4 v[{r}:{r+3}], v17, s[28:29] sc1")
    a("L_gf:")
    for k in range(nfin):
        r = regs[k]; rn = regs[(k - 1) % nfin]
        a(f"global_load_dwordx4 v[{rn}:{rn+3}], v17, s[28:29] sc1")
        attempts(2)
        if k == 0: tmo()
        a(f"""s_waitcnt vmcnt({nfin-1})
        v_xor_b32 v4, s40, v{r}
        v_bitop3_b32 v4, v4, v{r+2}, s42 bitop3:0xf6
        v_and_b32 v4, v19, v4
        v_cmp_ne_u32 vcc, 0, v4""")
        for i in range(4):
            a(f"v_add_f32_dpp v{48+i}, v{r+i}, v{r+i} row_ror:1 row_mask:0xf bank_mask:0xf")
        a("s_cbranch_vccz L_gfok" if k < nfin - 1 else "s_cbranch_vccnz L_gf")
    a("L_gfok:")
    stamp()
    for d in (2, 4, 8):
        for i in range(4):
            a(f"v_add_f32_dpp v{48+i}, v{48+i}, v{48+i} row_ror:{d} row_mask:0xf bank_mask:0xf")
    for i in range(4):
        a(f"v_add_f32_dpp v{48+i}, v{48+i}, v{48+i} row_bcast:15 row_mask:0xa bank_mask:0xf")
    a(f"""v_cndmask_b32 v48, v48, v50, s[46:47]
    v_cndmask_b32 v49, v49, v51, s[46:47]
    v_cvt_pk_bf16_f32 v48, v48, v49
    v_and_b32 v49, 0xffff0000, v48
    v_add_f32 v49, v49, v10
    v_cvt_pk_bf16_f32 v49, v49, v49
    v_and_b32 v49, 0xffff0000, v49
    v_mul_f32 v50, 0xbfb8aa3b, v49
    v_exp_f32 v50, v50
    v_lshlrev_b32 v48, 16, v48
    v_add_f32 v50, 1.0, v50
    v_rcp_f32 v50, v50
    s_mov_b32 exec_lo, 0x00030000
    v_mul_f32 v49, v49, v50
    v_cvt_pk_bf16_f32 v49, v49, v49
    v_and_b32 v49, 0xffff0000, v49
    v_mul_f32 v48, v48, v49
    v_cvt_pk_bf16_f32 v48, v48, v48
    s_mov_b32 exec_hi, 0x00030000
    v_and_b32 v48, 0xffff0000, v48
    v_add_f32 v48, v48, v9
    v_cvt_pk_bf16_f32 v48, v48, v48
    @DIAG@
    global_store_short v12, v48, s[24:25]
    s_cmp_lg_u32 s2, 0
    s_cbranch_scc1 L_fin
    v_mov_b32 v4, 0
    v_mov_b32 v5, s37
    s_mov_b64 exec, 0x10000
    global_store_dword v4, v5, s[28:29]""")
    a("L_fin:")
    if stamps:
        a("s_memrealtime s[92:93]")
        a("s_mov_b64 exec, -1\ns_waitcnt lgkmcnt(0)\nv_mov_b32 v5, 0\nv_writelane_b32 v5, s62, 0")
        for i in range(15):
            a(f"v_writelane_b32 v5, s{64+2*i}, {i+1}")
        a(f"""v_writelane_b32 v5, s33, 17
        s_getreg_b32 s38, hwreg(HW_REG_XCC_ID)
        v_writelane_b32 v5, s38, 18
        v_writelane_b32 v5, s56, 19
        v_writelane_b32 v5, s57, 20
        v_writelane_b32 v5, s58, 21
        s_lshl_b32 s38, s2, 10
        s_add_u32 s38, s38, {TS_OFF}
        v_lshrrev_b32 v1, 6, v0
        v_and_b32 v2, 63, v0
        v_lshlrev_b32 v4, 7, v1
        v_lshl_add_u32 v4, v2, 2, v4
        v_add_u32 v4, s38, v4
        s_mov_b64 exec, 0xffffffff
        global_store_dword v4, v5, s[28:29]""")
    a("L_exit:")
    dg = []
    if diag:
        dg = ["L_dg:", f"{diag[0]} s[62:63]", "s_waitcnt lgkmcnt(0)", "s_sub_u32 s62, s62, s60", f"s_cmp_lt_u32 s62, {diag[1]}", "s_cbranch_scc1 L_dg"]
    i_ = L.index("@DIAG@"); L[i_:i_+1] = dg
    body = "\n".join(("" if x.endswith(":") else "    ") + x for x in L)
    return f"""{HEADER}; @launch grid=(256,1,1) block=(384,1,1) lds={LDS_TOTAL}
.amdgcn_target "amdgcn-amd-amdhsa--gfx950"
.text
.globl {KN}_kernel
.p2align 8
.type {KN}_kernel,@function
{KN}_kernel:
{body}
    s_endpgm
.section .rodata,"a"
.p2align 6
.amdhsa_kernel {KN}_kernel
  .amdhsa_next_free_vgpr 136
  .amdhsa_next_free_sgpr 96
  .amdhsa_accum_offset 136
  .amdhsa_group_segment_fixed_size 0
  .amdhsa_kernarg_size 104
  .amdhsa_user_sgpr_count 2
  .amdhsa_user_sgpr_kernarg_segment_ptr 1
  .amdhsa_system_sgpr_workgroup_id_x 1
.end_amdhsa_kernel
"""
if __name__ == "__main__":
    import argparse, json
    ap = argparse.ArgumentParser()
    ap.add_argument("out"); ap.add_argument("--kw", default="{}")
    x = ap.parse_args()
    open(x.out, "w").write(gen(**json.loads(x.kw)))
```

```python
import sys
KN = "recurrent_scan__sliding_block_cached__mixer_channel_mlp__decode"
HEADER = open("cdna_kernels/%s.s.ref" % KN).read().split("; Override launch")[0]

ST = 1088
QB, HB, OB, FB = 0x10000, 0x20000, 0x40000, 0xC0000
DL = 0x100000
TS_OFF = 0x8000000
C_ = [1, 2, 3, 4]
STAMPS = {'wq': (C_, 4), 'qgot': (C_, 7), 'smax': (C_, 9), 'opub': (C_, 10), 'all': ([0], 9), 'ogot': (C_, 12), 'fpub': (C_, 14), 'fgot': ([5], 6)}
WAVE_GROUPS = {'loader': [0], 'comp': [1, 2, 3, 4], 'aux': [5]}

def gen(W=None, nt="nt", stamps=False, budget=20000, pace_h=40, KSW=64, warm=True, qstag=8, nfin=1, extra_dirty=0, pace_o=104, noB=False, diag=None, rot=(3, 1), fpre=True, fst="sc1", omask=True, fmask=True, opre=1, fpre_late=False):
    order = "q1KVo2"
    Wd = {"1": 20, "K": 20, "V": 20, "o": 20, "2": 20}
    if isinstance(W, int): Wd = {k: W for k in Wd}
    elif W: Wd.update(W)
    pol = {t: nt for t in order} if isinstance(nt, str) else {t: nt.get(t, "") for t in order}
    L = []
    def a(s):
        for x in s.split("\n"):
            x = x.strip()
            if x: L.append(x)
    cnt = {"q": 16, "1": 8, "K": 32, "V": 32, "o": 16, "2": 8}
    idx = {}; p = 0
    for t in order:
        idx[t] = p; p += cnt[t]
    NL = p
    base = {t: (idx[t] + 1) * ST for t in order}
    END = (NL + 1) * ST
    PROG = END
    FLG = PROG + 256
    XN = FLG + 64
    YN = XN + 1024
    QL = YN + 1024
    SL = QL + 4 * 288
    AL = SL + 4 * 576
    HL = AL + 8 * 288
    LDS_TOTAL = HL + 128
    assert LDS_TOTAL <= 163840
    nst = [0]
    def stamp():
        if stamps:
            a(f"s_memrealtime s[{64+2*nst[0]}:{65+2*nst[0]}]")
        nst[0] += 1
        assert nst[0] <= 15
    def lgk(n): return 0 if stamps else n
    uid = [0]
    def lab(p):
        uid[0] += 1
        return f"L_{p}{uid[0]}"
    def tmo(padn=None):
        a("s_sub_u32 s33, s33, 1")
        if padn and warm: a(f"L_pad{padn}:")
        a("s_cbranch_scc1 L_fin")
    def pad(n, target, jump=True):
        if warm:
            if jump: a(f"s_branch L_po{n}")
            a(f"L_pad{n}:\ns_branch {target}")
            if jump: a(f"L_po{n}:")
    def wait_prog(th):
        l = lab("wp")
        a(f"{l}:\nds_read_b32 v4, v3")
        tmo()
        a(f"""s_waitcnt lgkmcnt(0)
        v_cmp_gt_u32 vcc, {th}, v4
        s_cbranch_vccnz {l}""")
    def wait_flags(off, padn=None):
        l = lab("wf")
        a(f"{l}:\nds_read_b128 v[4:7], v3 offset:{256+off}")
        tmo(padn)
        a(f"""s_waitcnt lgkmcnt(0)
        v_bitop3_b32 v4, v4, v5, v6 bitop3:0x80
        v_and_b32 v4, v4, v7
        v_cmp_eq_u32 vcc, 0, v4
        s_cbranch_vccnz {l}""")
    def wait_flag1(off):
        l = lab("w1")
        a(f"{l}:\nds_read_b32 v4, v3 offset:{256+off}")
        tmo()
        a(f"""s_waitcnt lgkmcnt(0)
        v_cmp_eq_u32 vcc, 0, v4
        s_cbranch_vccnz {l}""")
    def attempts(i):
        if stamps: a(f"s_add_u32 s{56+i}, s{56+i}, 1")

    if diag: a(f"{diag[0]} s[60:61]")
    if stamps: a("s_memrealtime s[62:63]")
    a(f"""
    s_load_dwordx16 s[4:19], s[0:1], 0
    s_load_dwordx8 s[20:27], s[0:1], 64
    s_load_dwordx2 s[28:29], s[0:1], 96
    v_readfirstlane_b32 s32, v0
    s_lshr_b32 s31, s2, 3
    s_cmp_ge_u32 s31, 32
    s_cbranch_scc1 L_exit
    s_and_b32 s30, s2, 7
    s_lshr_b32 s34, s31, 3
    s_and_b32 s35, s31, 7
    s_lshr_b32 s32, s32, 6
""")
    if warm: a("s_cmp_eq_u32 s32, 1\ns_cbranch_scc1 L_pad1")
    a(f"s_cmp_eq_u32 s32, 5\ns_cbranch_scc1 L_aux\ns_cmp_lg_u32 s32, 0\ns_cbranch_scc1 L_comp")
    a(f"""
    v_lshrrev_b32 v4, 3, v0
    v_and_b32 v5, 7, v0
    v_and_b32 v6, 2, v4
    v_xor_b32 v5, v5, v6
    v_lshlrev_b32 v5, 4, v5
    s_lshl_b32 s37, s34, 20
    s_lshl_b32 s38, s30, 10
    s_lshl_b32 s39, s35, 7
    s_add_u32 s37, s37, s38
    s_add_u32 s37, s37, s39
    v_lshl_add_u32 v10, v4, 13, v5
    v_add_u32 v10, s37, v10
    s_movk_i32 s50, {ST}
    s_lshl_b32 s51, 1, 16
    s_mov_b32 m0, 0
    v_lshlrev_b32 v9, 4, v0
    s_setprio 3
    s_waitcnt lgkmcnt(0)
    """)
    stamp()
    a("global_load_lds_dwordx4 v9, s[4:5]\ns_add_u32 m0, m0, s50\ns_nop 0")
    a(f"""L_ldq:
    global_load_lds_dwordx4 v10, s[10:11] {pol['q']}
    s_add_u32 m0, m0, s50
    v_add_u32 v10, s51, v10
    global_load_lds_dwordx4 v10, s[10:11] {pol['q']}
    s_add_u32 m0, m0, s50
    v_add_u32 v10, s51, v10
    s_cmpk_lt_u32 m0, {17*ST}
    s_cbranch_scc1 L_ldq""")
    stamp()
    a(f"""s_lshl_b32 s36, s30, 2
    s_add_u32 s36, s36, s34
    s_min_u32 s46, s36, 27
    s_cmp_lt_u32 s36, 28
    s_cselect_b64 s[48:49], -1, 1
    v_mov_b32 v3, {PROG}
    v_lshl_add_u32 v3, v0, 2, v3""")
    info = {"1": (11, 16), "K": (12, 6), "V": (13, 8), "o": (14, 12), "2": (15, 20)}
    setup = {
        "1": f"""s_mul_i32 s37, s35, 64*3584
        s_lshl_b32 s38, s46, 7
        s_add_u32 s37, s37, s38
        v_mul_u32_u24 v11, 3584, v4
        v_add3_u32 v11, v11, v5, s37
        s_movk_i32 s51, 28672""",
        "K": f"""s_lshl_b32 s37, s30, 23
        s_lshl_b32 s38, s31, 15
        s_add_u32 s37, s37, s38
        s_add_u32 s47, s37, 0x700000
        v_lshrrev_b32 v8, 4, v0
        v_and_b32 v9, 15, v0
        v_xor_b32 v6, v9, v8
        v_lshlrev_b32 v6, 4, v6
        v_lshl_add_u32 v12, v8, 8, v6
        s_mul_i32 s37, s31, {rot[0]}
        s_mul_i32 s38, s30, {rot[1]}
        s_add_u32 s37, s37, s38
        s_and_b32 s37, s37, 7
        s_lshl_b32 s37, s37, 12
        s_add_u32 s45, s47, s37
        v_add_u32 v12, s45, v12
        v_mov_b32 v16, 0x7fff
        s_movk_i32 s51, 1024""",
        "V": f"""v_lshlrev_b32 v6, 1, v8
        v_xor_b32 v6, v9, v6
        v_lshlrev_b32 v6, 4, v6
        v_lshl_add_u32 v13, v8, 8, v6
        v_add_u32 v13, s45, v13""",
        "o": f"""v_lshl_add_u32 v15, v4, 10, v5
        s_lshl_b32 s37, s36, 17
        s_add_u32 s37, s37, s39
        v_add_u32 v14, s37, v15
        s_movk_i32 s51, 8192""",
        "2": f"""s_lshl_b32 s37, s46, 16
        s_add_u32 s37, s37, s39
        v_add_u32 v15, s37, v15""",
    }
    for t in order[1:]:
        v, s = info[t]; w = Wd[t]
        r = (w - 1 - idx[t]) % 4
        first = idx[t] + r - w + 1
        a(setup[t])
        if t == "1": pad(1, "L_comp")
        if t in "12": a("s_mov_b64 exec, s[48:49]")
        if t == "1":
            nfree = min(8, max(0, w - 16))
            for i in range(8):
                if i == nfree:
                    a(f"s_waitcnt vmcnt({16 + nfree})"); stamp(); a("s_barrier")
                if i >= nfree:
                    a(f"s_waitcnt vmcnt({w-1})")
                    ld_ = 16 + i - w + 1
                    if ld_ > 0 and ld_ % 4 == 0: a(f"v_mov_b32 v7, {ld_}\nds_max_i32 v3, v7")
                a(f"""global_load_lds_dwordx4 v{v}, s[{s}:{s+1}] {pol[t]}
                s_add_u32 m0, m0, s50
                v_add_u32 v{v}, s51, v{v}""")
            if nfree == 8:
                a(f"s_waitcnt vmcnt(24)"); stamp(); a("s_barrier")
        else:
            a(f"v_mov_b32 v7, {first}")
            l = lab("ld")
            a(f"{l}:")
            for i in range(4):
                a(f"s_waitcnt vmcnt({w-1})")
                if i == r: a("ds_max_i32 v3, v7")
                a(f"""global_load_lds_dwordx4 v{v}, s[{s}:{s+1}] {pol[t]}
                s_add_u32 m0, m0, s50
                v_add_u32 v{v}, s51, v{v}""")
            e = base[t] + cnt[t] * ST
            if t in "KV": a(f"v_bfi_b32 v{v}, v16, v{v}, s47")
            a(f"""v_add_u32 v7, 4, v7
            {'s_cmpk_lt_u32' if e < 65536 else 's_cmp_lt_u32'} m0, {e}
            s_cbranch_scc1 {l}""")
        if t in "12": a("s_mov_b64 exec, -1")
        stamp()
    for b in range(4, NL + 1, 4):
        if b > NL - Wd["2"] and (b <= idx['V'] + 32 or b == NL or b == pace_o):
            a(f"v_mov_b32 v7, {b}\ns_waitcnt vmcnt({NL-b})\nds_max_i32 v3, v7")
    stamp()
    a("s_branch L_fin")

    def common():
        a(f"""v_and_b32 v2, 63, v0
        s_lshl_b32 s36, s30, 2
        s_add_u32 s36, s36, s34
        s_mov_b32 s33, {budget}
        v_mov_b32 v3, {PROG}
        """)
        if stamps: a("s_mov_b64 s[56:57], 0\ns_mov_b64 s[58:59], 0")
    nst[0] = 0
    a("L_comp:")
    common()
    a(f"""
    v_lshlrev_b32 v16, 4, v2
    s_sub_u32 s32, s32, 1
    v_and_b32 v20, 15, v2
    v_lshrrev_b32 v21, 4, v2
    v_lshrrev_b32 v22, 2, v20
    v_and_b32 v23, 3, v2
    s_lshl_b32 s38, s30, 13
    s_lshl_b32 s39, s34, 11
    s_add_u32 s38, s38, s39
    s_lshl_b32 s39, s35, 8
    s_lshl_b32 s44, s32, 6
    s_add_u32 s39, s39, s44
    s_add_u32 s38, s38, s39
    s_add_u32 s38, s38, {QB}
    v_lshl_add_u32 v12, v20, 2, s38
    s_lshl_b32 s38, s36, 11
    s_add_u32 s38, s38, s39
    s_add_u32 s38, s38, {HB}
    v_lshl_add_u32 v13, v20, 2, s38
    s_lshl_b32 s38, s30, 16
    s_lshl_b32 s39, s31, 9
    s_add_u32 s38, s38, s39
    s_lshl_b32 s45, s32, 7
    s_add_u32 s38, s38, s45
    s_add_u32 s38, s38, {OB}
    v_lshlrev_b32 v46, 14, v21
    v_lshl_add_u32 v46, v20, 3, v46
    v_add_u32 v46, s38, v46
    s_waitcnt lgkmcnt(0)
    global_load_dword v125, v12, s[28:29] sc1
    global_load_dword v113, v13, s[28:29] sc1
    {"global_load_dword v114, v46, s[28:29] sc1" if opre in (0, 3) else ""}
    """)
    a(f"""
    s_add_u32 s26, s28, {DL}
    s_addc_u32 s27, s29, 0
    s_lshl_b32 s38, s32, 1
    v_lshrrev_b32 v7, 1, v23
    v_add_u32 v4, s38, v7
    v_and_b32 v5, 2, v22
    v_xor_b32 v4, v4, v5
    v_lshlrev_b32 v4, 4, v4
    v_and_b32 v14, 1, v23
    v_lshl_add_u32 v5, v14, 3, v4
    v_lshl_add_u32 v5, v22, 7, v5
    v_mul_u32_u24 v6, {ST}, v21
    v_add_u32 v24, v5, v6
    v_add_u32 v25, {base['o']}, v24
    s_mul_i32 s38, s32, {8*ST}
    s_add_u32 s38, s38, {base['K']}
    v_xor_b32 v4, v21, v23
    v_lshlrev_b32 v4, 4, v4
    v_lshl_add_u32 v4, v23, 8, v4
    v_mul_u32_u24 v5, {ST}, v22
    v_add3_u32 v26, v4, v5, s38
    s_lshl_b32 s38, s32, 2
    v_add_u32 v4, s38, v7
    v_lshlrev_b32 v5, 1, v22
    v_xor_b32 v4, v4, v5
    v_lshlrev_b32 v4, 4, v4
    v_lshl_add_u32 v4, v14, 3, v4
    v_lshl_add_u32 v4, v22, 8, v4
    v_xor_b32 v5, 32, v4
    v_lshlrev_b32 v6, 1, v6
    v_add_u32 v6, {base['V']}, v6
    v_add_u32 v27, v4, v6
    v_add_u32 v28, v5, v6
    v_add_u32 v44, s38, v3""")
    a(f"""v_mov_b32 v19, 0xff
    v_mov_b32 v18, 0x3b000000
    v_mov_b32 v112, v16
    v_add_u32 v16, {XN}, v16
    v_lshlrev_b32 v15, 4, v21
    s_lshl_b32 s38, s34, 8
    s_add_u32 s38, s38, {XN}
    v_add_u32 v17, s38, v15""")
    stamp()
    a("s_barrier")
    stamp()
    a("ds_read_b128 v[8:11], v112\ns_waitcnt lgkmcnt(0)")
    for i in range(4):
        a(f"v_lshlrev_b32 v{32+2*i}, 16, v{8+i}\nv_and_b32 v{33+2*i}, 0xffff0000, v{8+i}")
    a("s_mov_b32 s55, 0\nL_ln:")
    a("""v_pk_mul_f32 v[40:41], v[32:33], v[32:33]
    v_pk_add_f32 v[4:5], v[32:33], v[34:35]
    v_pk_fma_f32 v[40:41], v[34:35], v[34:35], v[40:41]
    v_pk_add_f32 v[6:7], v[36:37], v[38:39]
    v_pk_fma_f32 v[40:41], v[36:37], v[36:37], v[40:41]
    v_pk_add_f32 v[4:5], v[4:5], v[6:7]
    v_pk_fma_f32 v[40:41], v[38:39], v[38:39], v[40:41]
    v_add_f32 v4, v4, v5
    v_add_f32 v5, v40, v41
    s_nop 0""")
    for d in ("row_shr:1", "row_shr:2", "row_shr:4", "row_shr:8"):
        a(f"""v_add_f32_dpp v4, v4, v4 {d} row_mask:0xf bank_mask:0xf bound_ctrl:1
        v_add_f32_dpp v5, v5, v5 {d} row_mask:0xf bank_mask:0xf bound_ctrl:1
        s_nop 0""")
    a(f"""v_add_f32_dpp v4, v4, v4 row_bcast:15 row_mask:0xa bank_mask:0xf
    v_add_f32_dpp v5, v5, v5 row_bcast:15 row_mask:0xa bank_mask:0xf
    s_nop 0
    v_add_f32_dpp v4, v4, v4 row_bcast:31 row_mask:0xc bank_mask:0xf
    v_add_f32_dpp v5, v5, v5 row_bcast:31 row_mask:0xc bank_mask:0xf
    s_nop 0
    v_readlane_b32 s38, v4, 63
    v_readlane_b32 s39, v5, 63
    s_nop 0
    v_mul_f32 v4, s38, v18
    v_mul_f32 v5, s39, v18
    v_fma_f32 v5, -v4, v4, v5
    v_max_f32 v5, 0, v5
    v_cvt_pk_bf16_f32 v4, v4, v5
    v_and_b32 v5, 0xffff0000, v4
    v_lshlrev_b32 v4, 16, v4
    v_add_f32 v5, 0x3727c5ac, v5
    v_cvt_pk_bf16_f32 v5, v5, v5
    v_and_b32 v5, 0xffff0000, v5
    v_sqrt_f32 v6, v5""")
    for i in range(4):
        a(f"v_pk_add_f32 v[{32+2*i}:{33+2*i}], v[{32+2*i}:{33+2*i}], v[4:5] op_sel_hi:[1,0] neg_lo:[0,1] neg_hi:[0,1]")
    a(f"""v_cvt_pk_bf16_f32 v6, v6, v6
    v_and_b32 v6, 0xffff0000, v6
    v_rcp_f32 v6, v6""")
    for i in range(4):
        a(f"v_cvt_pk_bf16_f32 v{40+i}, v{32+2*i}, v{33+2*i}")
    for i in range(4):
        a(f"v_lshlrev_b32 v{32+2*i}, 16, v{40+i}\nv_and_b32 v{33+2*i}, 0xffff0000, v{40+i}")
    for i in range(4):
        a(f"v_pk_mul_f32 v[{32+2*i}:{33+2*i}], v[{32+2*i}:{33+2*i}], v[6:7] op_sel_hi:[1,0]")
    for i in range(4):
        a(f"v_cvt_pk_bf16_f32 v{40+i}, v{32+2*i}, v{33+2*i}")
    a("""ds_write_b128 v16, v[40:43]
    s_cmp_lg_u32 s55, 0
    s_cbranch_scc1 L_ln2""")
    for t in range(4):
        a(f"ds_read_b128 v[{48+4*t}:{51+4*t}], v17 offset:{64*t}")
    for i in range(4):
        a(f"v_lshlrev_b32 v{32+2*i}, 16, v{40+i}\nv_and_b32 v{33+2*i}, 0xffff0000, v{40+i}")
    stamp()
    a(f"""s_lshl_b32 s38, s35, 7
    s_add_u32 s38, s38, {YN}
    v_add_u32 v17, s38, v15
    v_add_u32 v16, 1024, v16
    s_lshl_b32 s38, s30, 13
    s_lshl_b32 s39, s32, 9
    s_add_u32 s38, s38, s39
    s_add_u32 s38, s38, {QB}
    v_lshl_add_u32 v8, v2, 3, s38
    v_add_u32 v9, 4096, v8
    s_mul_i32 s39, s32, 288
    s_add_u32 s39, s39, {QL}
    v_lshl_add_u32 v10, v2, 2, s39
    v_mul_u32_u24 v11, 288, v23
    v_add_u32 v11, v11, v15
    v_add_u32 v11, {QL}, v11
    s_add_u32 s38, s45, {SL}
    v_mul_u32_u24 v47, 576, v23
    v_add3_u32 v47, v47, v15, s38
    v_mul_u32_u24 v115, 576, v22
    v_lshl_add_u32 v115, v23, 7, v115
    v_lshl_add_u32 v115, v21, 5, v115
    v_add_u32 v115, {SL}, v115
    s_lshl_b32 s38, s36, 14
    s_add_u32 s38, s38, s45
    s_add_u32 s38, s38, {OB}
    v_lshrrev_b32 v6, 3, v2
    v_and_b32 v5, 7, v2
    v_lshlrev_b32 v116, 11, v6
    v_lshl_add_u32 v116, v5, 4, v116
    v_add_u32 v116, s38, v116
    s_add_u32 s38, s44, {AL}
    v_mul_u32_u24 v117, 288, v6
    v_lshl_add_u32 v117, v5, 2, v117
    v_add_u32 v117, s38, v117
    v_mov_b32 v118, 0x0c0c0400
    v_mov_b32 v6, 0x04000c0c
    v_cmp_eq_u32 vcc, 1, v14
    v_mul_u32_u24 v119, 288, v5
    v_add_u32 v119, v119, v15
    v_cndmask_b32 v118, v118, v6, vcc
    v_add_u32 v119, {AL}, v119
    v_add_u32 v120, {HL}, v15
    s_lshl_b32 s38, s35, 14
    s_lshl_b32 s39, s36, 9
    s_add_u32 s38, s38, s39
    s_add_u32 s38, s38, s45
    s_add_u32 s38, s38, {FB}
    v_lshl_add_u32 v121, v20, 3, s38
    s_lshl_b32 s52, s32, 3
    s_add_u32 s52, s52, {idx['K'] + 8}""")
    l = lab("wt")
    a(f"{l}:\nds_read_b64 v[4:5], v3 offset:{256+48}")
    tmo()
    a(f"""s_waitcnt lgkmcnt(0)
    v_cmp_eq_u32 vcc, 0, v5
    s_cbranch_vccnz {l}
    v_readfirstlane_b32 s40, v4
    v_lshlrev_b32 v122, 3, v23
    v_lshrrev_b32 v29, v122, v4
    v_lshlrev_b32 v5, 4, v14
    v_lshrrev_b32 v30, v5, v4
    v_lshrrev_b32 v31, 8, v30
    s_lshr_b32 s42, s40, 16
    """)
    wait_prog(idx['q'] + 16)
    stamp()
    for t in range(4):
        for rd in range(2):
            a(f"ds_read_b64_tr_b16 v[{72+4*t+2*rd}:{73+4*t+2*rd}], v24 offset:{base['q'] + t*4*ST + rd*512}")
    for t in range(4):
        c = "0" if t == 0 else "v[4:7]"
        a(f"s_waitcnt lgkmcnt({lgk(6-2*t)})\nv_mfma_f32_16x16x32_bf16 v[4:7], v[{48+4*t}:{51+4*t}], v[{72+4*t}:{75+4*t}], {c}")
    a(f"""s_mov_b64 exec, 0xffff
    s_mov_b32 s55, 1
    s_nop 5
    v_bfi_b32 v123, v19, v29, v4
    global_store_dword v12, v123, s[28:29]
    s_mov_b64 exec, -1""")
    stamp()
    def qissue(r):
        a(f"""global_load_dwordx2 v[{r}:{r+1}], v8, s[28:29] sc1
        global_load_dwordx2 v[{r+2}:{r+3}], v8, s[28:29] offset:2048 sc1
        global_load_dwordx2 v[{r+4}:{r+5}], v9, s[28:29] sc1
        global_load_dwordx2 v[{r+6}:{r+7}], v9, s[28:29] offset:2048 sc1""")
        attempts(0)
    def qcheck(r):
        a(f"v_xor_b32 v4, v{r}, v30")
        for i in range(1, 8):
            a(f"v_bitop3_b32 v4, v4, v{r+i}, v{30 + (i & 1)} bitop3:0xf6")
        a(f"""v_and_b32 v4, v19, v4
        v_cmp_ne_u32 vcc, 0, v4
        v_pk_add_f32 v[40:41], v[{r}:{r+1}], v[{r+2}:{r+3}]
        v_pk_add_f32 v[42:43], v[{r+4}:{r+5}], v[{r+6}:{r+7}]""")
    def qhB():
        a(f"""s_mov_b64 exec, 0xffff
        global_store_dword v12, v123, s[26:27] sc1
        global_store_dword v13, v124, s[26:27] sc1
        s_mov_b64 exec, -1""")
    qissue(128)
    a(f"""s_cmp_lt_u32 s36, 28
    s_cbranch_scc1 L_ln
    s_branch L_nomlp1""")
    pad(3, "L_pad4", jump=False)
    a(f"""L_ln2:
    ds_read_b128 v[64:67], v17
    ds_read_b128 v[68:71], v17 offset:64""")
    wait_prog(idx['1'] + 8)
    for t in range(2):
        for rd in range(2):
            a(f"ds_read_b64_tr_b16 v[{72+4*t+2*rd}:{73+4*t+2*rd}], v24 offset:{base['1'] + t*4*ST + rd*512}")
    a(f"""s_waitcnt lgkmcnt(0)
    v_mfma_f32_16x16x32_bf16 v[4:7], v[64:67], v[72:75], 0
    v_mfma_f32_16x16x32_bf16 v[4:7], v[68:71], v[76:79], v[4:7]
    s_mov_b64 exec, 0xffff
    s_nop 6
    v_bfi_b32 v124, v19, v29, v4
    global_store_dword v13, v124, s[28:29]
    s_mov_b64 exec, -1
    L_nomlp1:""")
    stamp()
    qissue(136)
    if opre == 1: a("global_load_dword v114, v46, s[28:29] sc1")
    a(f"""ds_read_b32 v4, v3
    s_mov_b32 s47, {KSW // 3}
    s_waitcnt lgkmcnt(0)
    v_readfirstlane_b32 s53, v4
    s_add_u32 s53, s53, {qstag}
    s_min_u32 s53, s53, {NL}""")
    wait_prog("s53")
    a("L_gq:")
    qissue(104)
    tmo()
    a("s_waitcnt vmcnt(8)" if opre != 1 else "s_waitcnt vmcnt(8)")
    qcheck(128)
    a("s_cbranch_vccz L_gqok")
    a(f"""s_sub_u32 s47, s47, 1
    s_cbranch_scc0 L_gq2
    v_add_u32 v8, {DL}, v8
    v_add_u32 v9, {DL}, v9""")
    qhB()
    a("L_gq2:")
    qissue(128)
    a("s_waitcnt vmcnt(8)")
    qcheck(136)
    a("s_cbranch_vccz L_gqok")
    qissue(136)
    a("s_waitcnt vmcnt(8)")
    qcheck(104)
    a("s_cbranch_vccnz L_gq")
    a(f"""L_gqok:
    v_pk_add_f32 v[40:41], v[40:41], v[42:43]
    v_mov_b32 v5, 1
    v_cvt_pk_bf16_f32 v40, v40, v41
    ds_write_b32 v10, v40
    ds_write_b32 v44, v5 offset:256""")
    stamp()
    a(f"""L_wk:
    ds_read_b32 v40, v3
    ds_read_b128 v[4:7], v3 offset:256""")
    for t in range(4):
        a(f"ds_read_b128 v[{48+4*t}:{51+4*t}], v11 offset:{64*t}")
    tmo()
    a(f"""s_waitcnt lgkmcnt({lgk(4)})
    v_bitop3_b32 v4, v4, v5, v6 bitop3:0x80
    v_cmp_gt_u32 s[60:61], s52, v40
    v_and_b32 v4, v4, v7
    v_cmp_eq_u32 vcc, 0, v4
    s_or_b64 s[60:61], vcc, s[60:61]
    s_cbranch_scc1 L_wk""")
    for t in range(4):
        for u in range(2):
            r = 72 + 16*u + 4*t
            a(f"ds_read_b128 v[{r}:{r+3}], v26 offset:{u*4*ST + t*64}")
    for t in range(4):
        for u in range(2):
            c = "0" if t == 0 else f"v[{32+4*u}:{35+4*u}]"
            a(f"s_waitcnt lgkmcnt({lgk(7-2*t-u)})")
            a(f"v_mfma_f32_16x16x32_bf16 v[{32+4*u}:{35+4*u}], v[{72+16*u+4*t}:{75+16*u+4*t}], v[{48+4*t}:{51+4*t}], {c}")
    SC = 0x3e0293ee
    a(f"""s_mov_b32 exec_lo, 0x000f000f
    s_mov_b32 exec_hi, 0x000f000f
    v_mov_b32 v5, 1
    s_mov_b32 s46, {SC}
    s_nop 3
    ds_write_b128 v47, v[32:35]
    ds_write_b128 v47, v[36:39] offset:64
    ds_write_b32 v44, v5 offset:272
    s_mov_b64 exec, -1
    v_mov_b32 v64, 0x3f803f80
    v_mov_b32 v65, v64
    v_mov_b32 v66, v64
    v_mov_b32 v67, v64""")
    stamp()
    if opre in (2, 3): a("global_load_dword v114, v46, s[28:29] sc1")
    qhB()
    pad(4, "L_pad5")
    def vread(t, k):
        ntile, rd = k >> 1, k & 1
        r = 72 + 8*t + 4*ntile + 2*rd
        return f"ds_read_b64_tr_b16 v[{r}:{r+1}], v{27+ntile} offset:{t*8*ST + rd*ST}"
    a(f"""L_ws:
    ds_read_b128 v[4:7], v3 offset:272
    ds_read_b32 v40, v3
    ds_read_b128 v[32:35], v115
    ds_read_b128 v[36:39], v115 offset:16""")
    tmo()
    a(f"""s_waitcnt lgkmcnt({lgk(2)})
    v_bitop3_b32 v4, v4, v5, v6 bitop3:0x80
    v_readfirstlane_b32 s53, v40
    v_and_b32 v4, v4, v7
    v_cmp_eq_u32 vcc, 0, v4
    s_cbranch_vccnz L_ws
    s_waitcnt lgkmcnt(0)
    v_max3_f32 v4, v32, v33, v34
    v_max3_f32 v5, v35, v36, v37
    v_max3_f32 v4, v4, v38, v39
    v_max_f32 v4, v4, v5
    {vread(0, 0)}
    {vread(0, 1)}
    v_max_f32_dpp v4, v4, v4 quad_perm:[1,0,3,2] row_mask:0xf bank_mask:0xf
    {vread(0, 2)}
    {vread(0, 3)}
    v_max_f32_dpp v4, v4, v4 quad_perm:[2,3,0,1] row_mask:0xf bank_mask:0xf
    v_mov_b32 v5, v4
    {vread(1, 0)}
    {vread(1, 1)}
    v_permlane16_swap_b32 v4, v5
    v_max_f32 v4, v4, v5
    v_mov_b32 v5, v4
    {vread(1, 2)}
    {vread(1, 3)}
    v_permlane32_swap_b32 v4, v5
    v_max_f32 v4, v4, v5
    v_mul_f32 v6, s46, v4""")
    for i in range(8):
        a(f"v_fma_f32 v{32+i}, v{32+i}, s46, -v6")
        if i == 0: a("ds_bpermute_b32 v45, v15, v6")
    for i in range(8):
        a(f"v_exp_f32 v{32+i}, v{32+i}\n{vread(2 + (i >> 2), i & 3)}")
    for i in range(4):
        a(f"v_cvt_pk_bf16_f32 v{40+i}, v{32+2*i}, v{33+2*i}")
    stamp()
    for t in range(4):
        for i in range(4):
            a(f"v_mov_b32_dpp v{48+4*t+i}, v{40+i} quad_perm:[{t},{t},{t},{t}] row_mask:0xf bank_mask:0xf")
            if t == 0 and i == 1: a("v_mfma_f32_16x16x32_bf16 v[68:71], v[40:43], v[64:67], 0")
        sk = lab("vs")
        a(f"s_cmpk_ge_u32 s53, {idx['V'] + 8*(t+1)}\ns_cbranch_scc1 {sk}")
        wait_prog(idx['V'] + 8*(t+1))
        for k in range(4): a(vread(t, k))
        a(f"{sk}:\ns_waitcnt lgkmcnt(0)")
        for ntile in range(2):
            c = "0" if t == 0 else f"v[{32+4*ntile}:{35+4*ntile}]"
            a(f"v_mfma_f32_16x16x32_bf16 v[{32+4*ntile}:{35+4*ntile}], v[{48+4*t}:{51+4*t}], v[{72+8*t+4*ntile}:{75+8*t+4*ntile}], {c}")
        if t == 1:
            a("""v_pk_add_f32 v[68:69], v[68:69], v[70:71]
            v_add_f32 v68, v68, v69
            v_log_f32 v5, v68
            v_rcp_f32 v6, v68
            v_add_f32 v45, v45, v5
            v_lshrrev_b32 v45, v122, v45""")
    a(f"""s_nop 6
    v_mul_f32 v32, v32, v6
    v_bfi_b32 v126, v19, v30, v32
    v_mul_f32 v36, v36, v6
    v_bfi_b32 v127, v19, v45, v36
    global_store_dwordx2 v46, v[126:127], s[28:29]""")
    stamp()
    def ogather():
        if stamps: a("s_memrealtime s[94:95]")
        for i in range(4):
            a(f"global_load_dwordx4 v[{48+4*i}:{51+4*i}], v116, s[28:29] offset:{512*i} sc1")
        attempts(1)
    if pace_o > idx['V'] + 32: wait_prog(pace_o)
    ogather()
    stamp()
    o2 = base['2'] - base['o']
    a(f"""s_mov_b32 s47, {KSW}
    s_cmp_ge_u32 s36, 28
    s_cbranch_scc1 L_go1""")
    wait_flag1(36)
    a(f"""ds_read_b128 v[64:67], v120
    ds_read_b128 v[68:71], v120 offset:64
    s_branch L_go1""")
    pad(5, "L_pad6", jump=False)
    a(f"""L_go:
    {"s_mov_b64 exec, vcc" if omask else ""}
    s_sub_u32 s47, s47, 1
    s_cbranch_scc0 L_go2
    s_mov_b64 exec, -1
    v_add_u32 v116, {DL}, v116
    global_store_dwordx2 v46, v[126:127], s[26:27] sc1
    L_go2:""")
    ogather()
    a("L_go1:")
    tmo()
    a("s_waitcnt vmcnt(0)")
    if stamps: a("s_memrealtime s[96:97]")
    a(f"""v_xor_b32 v4, s40, v48
    v_bitop3_b32 v4, v4, v50, s42 bitop3:0xf6
    v_bitop3_b32 v4, v4, v52, s40 bitop3:0xf6
    v_bitop3_b32 v4, v4, v54, s42 bitop3:0xf6
    v_bitop3_b32 v4, v4, v56, s40 bitop3:0xf6
    v_bitop3_b32 v4, v4, v58, s42 bitop3:0xf6
    v_bitop3_b32 v4, v4, v60, s40 bitop3:0xf6
    v_bitop3_b32 v4, v4, v62, s42 bitop3:0xf6
    v_and_b32 v4, v19, v4
    v_cmp_ne_u32 vcc, 0, v4
    s_mov_b64 exec, -1
    v_perm_b32 v40, v51, v49, v118
    v_perm_b32 v41, v55, v53, v118
    s_cbranch_vccnz L_go
    v_perm_b32 v42, v59, v57, v118
    v_perm_b32 v43, v63, v61, v118
    v_or_b32_dpp v40, v40, v40 quad_perm:[1,0,3,2] row_mask:0xf bank_mask:0xf
    v_or_b32_dpp v41, v41, v41 quad_perm:[1,0,3,2] row_mask:0xf bank_mask:0xf
    v_or_b32_dpp v42, v42, v42 quad_perm:[1,0,3,2] row_mask:0xf bank_mask:0xf
    v_or_b32_dpp v43, v43, v43 quad_perm:[1,0,3,2] row_mask:0xf bank_mask:0xf
    v_max_f32 v5, v40, v41
    v_max3_f32 v5, v5, v42, v43
    s_nop 1
    v_max_f32_dpp v5, v5, v5 row_ror:8 row_mask:0xf bank_mask:0xf
    v_mov_b32 v6, v5
    s_nop 1
    v_permlane16_swap_b32 v5, v6
    v_max_f32 v5, v5, v6
    v_mov_b32 v6, v5
    s_nop 1
    v_permlane32_swap_b32 v5, v6
    v_max_f32 v5, v5, v6
    v_sub_f32 v40, v40, v5
    v_sub_f32 v41, v41, v5
    v_exp_f32 v40, v40
    v_sub_f32 v42, v42, v5
    v_exp_f32 v41, v41
    v_sub_f32 v43, v43, v5
    v_exp_f32 v42, v42
    v_exp_f32 v43, v43
    v_pk_mul_f32 v[32:33], v[48:49], v[40:41] op_sel_hi:[1,0]
    v_pk_mul_f32 v[34:35], v[50:51], v[40:41] op_sel_hi:[1,0]""")
    sel = {1: ("v[40:41]", "op_sel:[0,1,0] op_sel_hi:[1,1,1]"), 2: ("v[42:43]", "op_sel_hi:[1,0,1]"), 3: ("v[42:43]", "op_sel:[0,1,0] op_sel_hi:[1,1,1]")}
    for i in range(1, 4):
        w_, m_ = sel[i]
        a(f"""v_pk_fma_f32 v[32:33], v[{48+4*i}:{49+4*i}], {w_}, v[32:33] {m_}
        v_pk_fma_f32 v[34:35], v[{50+4*i}:{51+4*i}], {w_}, v[34:35] {m_}""")
    a(f"""v_cvt_pk_bf16_f32 v4, v32, v34
    v_cvt_pk_bf16_f32 v5, v33, v35
    ds_write2_b32 v117, v4, v5 offset0:0 offset1:8""")
    stamp()
    a(f"""v_pk_add_f32 v[40:41], v[40:41], v[42:43]
    v_add_f32 v40, v40, v41
    s_waitcnt lgkmcnt(0)
    s_barrier""")
    stamp()
    for t in range(4):
        a(f"ds_read_b128 v[{48+4*t}:{51+4*t}], v119 offset:{64*t}")
        for rd in range(2):
            a(f"ds_read_b64_tr_b16 v[{72+4*t+2*rd}:{73+4*t+2*rd}], v25 offset:{t*4*ST + rd*512}")
        if t == 0: a("v_add_f32_dpp v40, v40, v40 row_ror:8 row_mask:0xf bank_mask:0xf\nv_mov_b32 v41, v40")
        if t == 1: a("v_permlane16_swap_b32 v40, v41\nv_add_f32 v40, v40, v41\nv_mov_b32 v41, v40")
        if t == 2: a("v_permlane32_swap_b32 v40, v41\nv_add_f32 v40, v40, v41\nv_rcp_f32 v40, v40")
    for t in range(2):
        for rd in range(2):
            a(f"ds_read_b64_tr_b16 v[{88+4*t+2*rd}:{89+4*t+2*rd}], v25 offset:{o2 + t*4*ST + rd*512}")
    for t in range(4):
        c = "0" if t == 0 else "v[32:35]"
        a(f"s_waitcnt lgkmcnt({lgk(13-3*t)})\nv_mfma_f32_16x16x32_bf16 v[32:35], v[{48+4*t}:{51+4*t}], v[{72+4*t}:{75+4*t}], {c}")
    a(f"""s_waitcnt lgkmcnt(0)
    v_mfma_f32_16x16x32_bf16 v[36:39], v[64:67], v[88:91], 0
    v_mfma_f32_16x16x32_bf16 v[36:39], v[68:71], v[92:95], v[36:39]""")
    a(f"""s_nop 4
    v_pk_add_f32 v[32:33], v[32:33], v[34:35]
    v_add_f32 v4, v32, v33
    v_add_f32 v6, v32, v33
    s_cmp_lt_u32 s36, 28
    s_cselect_b32 s38, -1, 0
    v_permlane16_swap_b32 v4, v6
    v_add_f32 v4, v4, v6
    s_mov_b64 exec, 0xffff
    v_mul_f32 v4, v4, v40
    v_and_b32 v5, s38, v36
    v_bfi_b32 v4, v19, v30, v4
    global_store_dwordx2 v121, v[4:5], s[28:29] {fst}
    s_mov_b64 exec, -1""")
    stamp()
    if not noB: a("global_store_dwordx2 v46, v[126:127], s[26:27] sc1")
    a("s_branch L_fin")

    nst[0] = 0
    a("L_aux:")
    common()
    a(f"""v_mov_b32 v4, 0
    v_lshl_add_u32 v5, v2, 2, v3
    ds_write_b32 v5, v4
    ds_write_b32 v5, v4 offset:64
    s_lshl_b32 s38, s36, 7
    v_lshl_add_u32 v6, v2, 1, s38
    s_lshl_b32 s48, s34, 3
    s_add_u32 s48, s48, s30
    s_lshl_b32 s48, s48, 2
    s_and_b32 s38, s31, 3
    s_add_u32 s48, s48, s38
    s_lshl_b32 s38, s48, 3
    v_lshrrev_b32 v20, 5, v2
    v_and_b32 v21, 1, v2
    v_lshlrev_b32 v4, 2, v20
    v_lshl_add_u32 v4, v21, 1, v4
    v_add_u32 v12, s38, v4
    s_waitcnt lgkmcnt(0)
    s_load_dword s37, s[28:29], 0
    s_cmp_ge_u32 s36, 28
    s_cbranch_scc1 L_aux0
    global_load_ushort v8, v6, s[18:19]
    L_aux0:
    global_load_ushort v9, v12, s[4:5]
    global_load_ushort v10, v12, s[22:23]""")
    stamp()
    a(f"""s_barrier
    v_mov_b32 v5, 1
    v_mov_b32 v19, 0xff
    s_lshr_b32 s38, s48, 4
    s_lshl_b32 s38, s38, 14
    s_and_b32 s39, s48, 15
    s_lshl_b32 s39, s39, 5
    s_add_u32 s38, s38, s39
    s_add_u32 s38, s38, {FB}
    v_and_b32 v22, 31, v2
    v_lshlrev_b32 v17, 9, v22
    v_lshl_add_u32 v17, v20, 4, v17
    v_add_u32 v17, s38, v17
    v_cmp_eq_u32 s[46:47], 1, v21
    s_waitcnt lgkmcnt(0)
    s_add_u32 s37, s37, 1
    s_mul_i32 s40, s37, 0x9E3779B1
    v_mov_b32 v4, s40
    ds_write_b64 v3, v[4:5] offset:{256+48}
    s_lshr_b32 s42, s40, 16
    v_and_b32 v4, 3, v2
    v_lshlrev_b32 v4, 3, v4
    v_lshrrev_b32 v29, v4, s40""")
    stamp()
    if fpre and not fpre_late: a("global_load_dword v40, v17, s[28:29] sc1")
    if warm: a("s_branch L_pad3\nL_auxw:")
    stamp()
    if extra_dirty:
        a(f"s_lshl_b32 s38, s2, 12\ns_add_u32 s38, s38, 0x400000\nv_lshl_add_u32 v16, v2, 4, s38")
        for i in range(extra_dirty):
            a(f"global_store_dwordx4 v16, v[32:35], s[28:29] offset:{1024*i}")
    a(f"""s_cmp_ge_u32 s36, 28
    s_cbranch_scc1 L_aux1
    s_lshl_b32 s38, s36, 11
    s_add_u32 s38, s38, {HB}
    v_lshl_add_u32 v16, v2, 2, s38
    s_mov_b32 s49, {KSW}""")
    wait_prog(pace_h)
    a(f"""L_gh:
    s_sub_u32 s49, s49, 1
    s_cselect_b32 s39, {DL}, 0
    v_add_u32 v16, s39, v16""")
    for p_ in range(8):
        a(f"global_load_dword v{32+p_}, v16, s[28:29] offset:{256*p_} sc1")
    attempts(0)
    tmo()
    a(f"""s_waitcnt vmcnt(0)
    v_xor_b32 v4, v32, v29""")
    for p_ in range(1, 8):
        a(f"v_bitop3_b32 v4, v4, v{32+p_}, v29 bitop3:0xf6")
    C1 = 0xc0135761
    C2 = 0xbdd2d3e8
    a(f"""v_and_b32 v4, v19, v4
    v_cmp_ne_u32 vcc, 0, v4
    s_cbranch_vccnz L_gh
    v_pk_add_f32 v[32:33], v[32:33], v[34:35]
    v_pk_add_f32 v[36:37], v[36:37], v[38:39]
    v_pk_add_f32 v[32:33], v[32:33], v[36:37]
    v_add_f32 v32, v32, v33
    v_cvt_pk_bf16_f32 v32, v32, v32
    v_and_b32 v32, 0xffff0000, v32
    v_lshlrev_b32 v8, 16, v8
    v_add_f32 v32, v32, v8
    v_cvt_pk_bf16_f32 v32, v32, v32
    v_and_b32 v32, 0xffff0000, v32
    v_mul_f32 v33, v32, v32
    v_mov_b32 v34, {C1}
    v_fmac_f32 v34, {C2}, v33
    v_mul_f32 v33, v34, v32
    v_exp_f32 v33, v33
    v_lshlrev_b32 v5, 1, v2
    v_add_f32 v33, 1.0, v33
    v_rcp_f32 v33, v33
    v_add_u32 v5, {HL}, v5
    v_mul_f32 v32, v32, v33
    v_cvt_pk_bf16_f32 v32, v32, v32
    v_mov_b32 v6, 1
    ds_write_b16 v5, v32
    ds_write_b32 v3, v6 offset:{256+36}
""")
    pad(6, "L_auxw")
    a("L_aux1:")
    stamp()
    if fpre_late:
        wait_prog(72)
        a("global_load_dword v40, v17, s[28:29] sc1")
    a(f"""s_waitcnt vmcnt(0) lgkmcnt(0)
    v_lshlrev_b32 v9, 16, v9
    v_lshlrev_b32 v10, 16, v10
    s_barrier
    s_bitcmp1_b32 s31, 2
    s_cbranch_scc1 L_fin""")
    stamp()
    if fmask:
        a("L_gf:")
        if stamps: a("s_memrealtime s[94:95]")
        a("global_load_dwordx4 v[32:35], v17, s[28:29] sc1")
        attempts(2)
        tmo()
        a(f"""s_waitcnt vmcnt(0)
        v_xor_b32 v4, s40, v32
        v_bitop3_b32 v4, v4, v34, s42 bitop3:0xf6
        v_and_b32 v4, v19, v4
        v_cmp_ne_u32 vcc, 0, v4
        s_and_b64 exec, exec, vcc
        s_cbranch_scc1 L_gf
        s_mov_b64 exec, -1""")
        for i in range(4):
            a(f"v_add_f32_dpp v{48+i}, v{32+i}, v{32+i} row_ror:1 row_mask:0xf bank_mask:0xf")
    else:
        regs = [32 + 4 * i for i in range(nfin)]
        for r in regs[:-1]:
            a(f"global_load_dwordx4 v[{r}:{r+3}], v17, s[28:29] sc1")
        a("L_gf:")
        for k in range(nfin):
            r = regs[k]; rn = regs[(k - 1) % nfin]
            a(f"global_load_dwordx4 v[{rn}:{rn+3}], v17, s[28:29] sc1")
            attempts(2)
            if k == 0: tmo()
            a(f"""s_waitcnt vmcnt({nfin-1})
            v_xor_b32 v4, s40, v{r}
            v_bitop3_b32 v4, v4, v{r+2}, s42 bitop3:0xf6
            v_and_b32 v4, v19, v4
            v_cmp_ne_u32 vcc, 0, v4""")
            for i in range(4):
                a(f"v_add_f32_dpp v{48+i}, v{r+i}, v{r+i} row_ror:1 row_mask:0xf bank_mask:0xf")
            a("s_cbranch_vccz L_gfok" if k < nfin - 1 else "s_cbranch_vccnz L_gf")
        a("L_gfok:")
    stamp()
    for d in (2, 4, 8):
        for i in range(4):
            a(f"v_add_f32_dpp v{48+i}, v{48+i}, v{48+i} row_ror:{d} row_mask:0xf bank_mask:0xf")
    for i in range(4):
        a(f"v_add_f32_dpp v{48+i}, v{48+i}, v{48+i} row_bcast:15 row_mask:0xa bank_mask:0xf")
    a(f"""v_cndmask_b32 v48, v48, v50, s[46:47]
    v_cndmask_b32 v49, v49, v51, s[46:47]
    v_cvt_pk_bf16_f32 v48, v48, v49
    v_and_b32 v49, 0xffff0000, v48
    v_add_f32 v49, v49, v10
    v_cvt_pk_bf16_f32 v49, v49, v49
    v_and_b32 v49, 0xffff0000, v49
    v_mul_f32 v50, 0xbfb8aa3b, v49
    v_exp_f32 v50, v50
    v_lshlrev_b32 v48, 16, v48
    v_add_f32 v50, 1.0, v50
    v_rcp_f32 v50, v50
    s_mov_b32 exec_lo, 0x00030000
    v_mul_f32 v49, v49, v50
    v_cvt_pk_bf16_f32 v49, v49, v49
    v_and_b32 v49, 0xffff0000, v49
    v_mul_f32 v48, v48, v49
    v_cvt_pk_bf16_f32 v48, v48, v48
    s_mov_b32 exec_hi, 0x00030000
    v_and_b32 v48, 0xffff0000, v48
    v_add_f32 v48, v48, v9
    v_cvt_pk_bf16_f32 v48, v48, v48
    @DIAG@
    global_store_short v12, v48, s[24:25]
    s_cmp_lg_u32 s2, 0
    s_cbranch_scc1 L_fin
    v_mov_b32 v4, 0
    v_mov_b32 v5, s37
    s_mov_b64 exec, 0x10000
    global_store_dword v4, v5, s[28:29]""")
    a("L_fin:")
    if stamps:
        a("s_memrealtime s[92:93]")
        a("s_mov_b64 exec, -1\ns_waitcnt lgkmcnt(0)\nv_mov_b32 v5, 0\nv_writelane_b32 v5, s62, 0")
        for i in range(15):
            a(f"v_writelane_b32 v5, s{64+2*i}, {i+1}")
        a(f"""v_writelane_b32 v5, s33, 17
        s_getreg_b32 s38, hwreg(HW_REG_XCC_ID)
        v_writelane_b32 v5, s38, 18
        v_writelane_b32 v5, s56, 19
        v_writelane_b32 v5, s57, 20
        v_writelane_b32 v5, s58, 21
        v_writelane_b32 v5, s94, 22
        v_writelane_b32 v5, s96, 23
        s_lshl_b32 s38, s2, 10
        s_add_u32 s38, s38, {TS_OFF}
        v_lshrrev_b32 v1, 6, v0
        v_and_b32 v2, 63, v0
        v_lshlrev_b32 v4, 7, v1
        v_lshl_add_u32 v4, v2, 2, v4
        v_add_u32 v4, s38, v4
        s_mov_b64 exec, 0xffffffff
        global_store_dword v4, v5, s[28:29]""")
    a("L_exit:")
    dg = []
    if diag:
        dg = ["L_dg:", f"{diag[0]} s[62:63]", "s_waitcnt lgkmcnt(0)", "s_sub_u32 s62, s62, s60", f"s_cmp_lt_u32 s62, {diag[1]}", "s_cbranch_scc1 L_dg"]
    i_ = L.index("@DIAG@"); L[i_:i_+1] = dg
    body = "\n".join(("" if x.endswith(":") else "    ") + x for x in L)
    return f"""{HEADER}; @launch grid=(256,1,1) block=(384,1,1) lds={LDS_TOTAL}
.amdgcn_target "amdgcn-amd-amdhsa--gfx950"
.text
.globl {KN}_kernel
.p2align 8
.type {KN}_kernel,@function
{KN}_kernel:
{body}
    s_endpgm
.section .rodata,"a"
.p2align 6
.amdhsa_kernel {KN}_kernel
  .amdhsa_next_free_vgpr 144
  .amdhsa_next_free_sgpr 98
  .amdhsa_accum_offset 144
  .amdhsa_group_segment_fixed_size 0
  .amdhsa_kernarg_size 104
  .amdhsa_user_sgpr_count 2
  .amdhsa_user_sgpr_kernarg_segment_ptr 1
  .amdhsa_system_sgpr_workgroup_id_x 1
.end_amdhsa_kernel
"""
if __name__ == "__main__":
    import argparse, json
    ap = argparse.ArgumentParser()
    ap.add_argument("out"); ap.add_argument("--kw", default="{}")
    x = ap.parse_args()
    open(x.out, "w").write(gen(**json.loads(x.kw)))
```

```python
import sys
KN = "recurrent_scan__sliding_block_cached__mixer_channel_mlp__decode"
HEADER = open("cdna_kernels/%s.s.ref" % KN).read().split("; Override launch")[0]

ST = 1088
QB, HB, OB, FB = 0x10000, 0x20000, 0x40000, 0xC0000
DL = 0x100000
TS_OFF = 0x8000000
C_ = [1, 2, 3, 4]
STAMPS = {'wq': (C_, 4), 'qgot': (C_, 7), 'smax': (C_, 9), 'opub': (C_, 10), 'all': ([0], 9), 'ogot': (C_, 12), 'fpub': (C_, 14), 'fgot': ([5], 6)}
WAVE_GROUPS = {'loader': [0], 'comp': [1, 2, 3, 4], 'aux': [5]}

def gen(W=20, nt="nt", stamps=False, budget=1000000, pace_h=40, KSW=64, warm=True, qstag=8, nfin=1, extra_dirty=0, pace_o=104, noB=False, diag=None, rot=(3, 1), fpre=True, fst="sc1", opre=2, fpre_late=False, ast="", outst="", unq=4):
    order = "q1KVo2"
    Wd = {"1": 20, "K": 20, "V": 20, "o": 20, "2": 20}
    if isinstance(W, int): Wd = {k: W for k in Wd}
    elif W: Wd.update(W)
    pol = {t: nt for t in order} if isinstance(nt, str) else {t: nt.get(t, "") for t in order}
    L = []
    def a(s):
        for x in s.split("\n"):
            x = x.strip()
            if x: L.append(x)
    cnt = {"q": 16, "1": 8, "K": 32, "V": 32, "o": 16, "2": 8}
    idx = {}; p = 0
    for t in order:
        idx[t] = p; p += cnt[t]
    NL = p
    base = {t: (idx[t] + 1) * ST for t in order}
    END = (NL + 1) * ST
    PROG = END
    FLG = PROG + 256
    XN = FLG + 64
    YN = XN + 1024
    QL = YN + 1024
    SL = QL + 4 * 288
    AL = SL + 4 * 576
    HL = AL + 8 * 288
    LDS_TOTAL = HL + 128
    assert LDS_TOTAL <= 163840
    nst = [0]
    def stamp():
        if stamps:
            a(f"s_memrealtime s[{64+2*nst[0]}:{65+2*nst[0]}]")
        nst[0] += 1
        assert nst[0] <= 15
    def lgk(n): return 0 if stamps else n
    uid = [0]
    def lab(p):
        uid[0] += 1
        return f"L_{p}{uid[0]}"
    def tmo(padn=None):
        a("s_sub_u32 s33, s33, 1")
        if padn and warm: a(f"L_pad{padn}:")
        a("s_cbranch_scc1 L_fin")
    def pad(n, target, jump=True):
        if warm:
            if jump: a(f"s_branch L_po{n}")
            a(f"L_pad{n}:\ns_branch {target}")
            if jump: a(f"L_po{n}:")
    def wait_prog(th):
        l = lab("wp")
        a(f"{l}:\nds_read_b32 v4, v3")
        tmo()
        a(f"""s_waitcnt lgkmcnt(0)
        v_cmp_gt_u32 vcc, {th}, v4
        s_cbranch_vccnz {l}""")
    def wait_flags(off, padn=None):
        l = lab("wf")
        a(f"{l}:\nds_read_b128 v[4:7], v3 offset:{256+off}")
        tmo(padn)
        a(f"""s_waitcnt lgkmcnt(0)
        v_bitop3_b32 v4, v4, v5, v6 bitop3:0x80
        v_and_b32 v4, v4, v7
        v_cmp_eq_u32 vcc, 0, v4
        s_cbranch_vccnz {l}""")
    def wait_flag1(off):
        l = lab("w1")
        a(f"{l}:\nds_read_b32 v4, v3 offset:{256+off}")
        tmo()
        a(f"""s_waitcnt lgkmcnt(0)
        v_cmp_eq_u32 vcc, 0, v4
        s_cbranch_vccnz {l}""")
    def attempts(i):
        if stamps: a(f"s_add_u32 s{56+i}, s{56+i}, 1")

    if diag: a(f"{diag[0]} s[60:61]")
    if stamps: a("s_memrealtime s[62:63]")
    a(f"""
    s_load_dwordx16 s[4:19], s[0:1], 0
    s_load_dwordx8 s[20:27], s[0:1], 64
    s_load_dwordx2 s[28:29], s[0:1], 96
    v_readfirstlane_b32 s32, v0
    s_lshr_b32 s31, s2, 3
    s_cmp_ge_u32 s31, 32
    s_cbranch_scc1 L_exit
    s_and_b32 s30, s2, 7
    s_lshr_b32 s34, s31, 3
    s_and_b32 s35, s31, 7
    s_lshr_b32 s32, s32, 6
""")
    if warm: a("s_cmp_eq_u32 s32, 1\ns_cbranch_scc1 L_pad1")
    a(f"s_cmp_eq_u32 s32, 5\ns_cbranch_scc1 L_aux\ns_cmp_lg_u32 s32, 0\ns_cbranch_scc1 L_comp")
    a(f"""
    v_lshrrev_b32 v4, 3, v0
    v_and_b32 v5, 7, v0
    v_and_b32 v6, 2, v4
    v_xor_b32 v5, v5, v6
    v_lshlrev_b32 v5, 4, v5
    s_lshl_b32 s37, s34, 20
    s_lshl_b32 s38, s30, 10
    s_lshl_b32 s39, s35, 7
    s_add_u32 s37, s37, s38
    s_add_u32 s37, s37, s39
    v_lshl_add_u32 v10, v4, 13, v5
    v_add_u32 v10, s37, v10
    s_movk_i32 s50, {ST}
    s_lshl_b32 s51, 1, 16
    s_mov_b32 m0, 0
    v_lshlrev_b32 v9, 4, v0
    s_setprio 3
    s_waitcnt lgkmcnt(0)
    """)
    stamp()
    a("global_load_lds_dwordx4 v9, s[4:5]\ns_add_u32 m0, m0, s50\ns_nop 0")
    a("L_ldq:")
    for i in range(unq):
        a(f"""global_load_lds_dwordx4 v10, s[10:11] {pol['q']}
        s_add_u32 m0, m0, s50
        v_add_u32 v10, s51, v10""")
    a(f"""s_cmpk_lt_u32 m0, {17*ST}
    s_cbranch_scc1 L_ldq""")
    stamp()
    a(f"""s_lshl_b32 s36, s30, 2
    s_add_u32 s36, s36, s34
    s_min_u32 s46, s36, 27
    s_cmp_lt_u32 s36, 28
    s_cselect_b64 s[48:49], -1, 1
    v_mov_b32 v3, {PROG}
    v_lshl_add_u32 v3, v0, 2, v3""")
    info = {"1": (11, 16), "K": (12, 6), "V": (13, 8), "o": (14, 12), "2": (15, 20)}
    setup = {
        "1": f"""s_mul_i32 s37, s35, 64*3584
        s_lshl_b32 s38, s46, 7
        s_add_u32 s37, s37, s38
        v_mul_u32_u24 v11, 3584, v4
        v_add3_u32 v11, v11, v5, s37
        s_movk_i32 s51, 28672""",
        "K": f"""s_lshl_b32 s37, s30, 23
        s_lshl_b32 s38, s31, 15
        s_add_u32 s37, s37, s38
        s_add_u32 s47, s37, 0x700000
        v_lshrrev_b32 v8, 4, v0
        v_and_b32 v9, 15, v0
        v_xor_b32 v6, v9, v8
        v_lshlrev_b32 v6, 4, v6
        v_lshl_add_u32 v12, v8, 8, v6
        s_mul_i32 s37, s31, {rot[0]}
        s_mul_i32 s38, s30, {rot[1]}
        s_add_u32 s37, s37, s38
        s_and_b32 s37, s37, 7
        s_lshl_b32 s37, s37, 12
        s_add_u32 s45, s47, s37
        v_add_u32 v12, s45, v12
        v_mov_b32 v16, 0x7fff
        s_movk_i32 s51, 1024""",
        "V": f"""v_lshlrev_b32 v6, 1, v8
        v_xor_b32 v6, v9, v6
        v_lshlrev_b32 v6, 4, v6
        v_lshl_add_u32 v13, v8, 8, v6
        v_add_u32 v13, s45, v13""",
        "o": f"""v_lshl_add_u32 v15, v4, 10, v5
        s_lshl_b32 s37, s36, 17
        s_add_u32 s37, s37, s39
        v_add_u32 v14, s37, v15
        s_movk_i32 s51, 8192""",
        "2": f"""s_lshl_b32 s37, s46, 16
        s_add_u32 s37, s37, s39
        v_add_u32 v15, s37, v15""",
    }
    for t in order[1:]:
        v, s = info[t]; w = Wd[t]
        r = (w - 1 - idx[t]) % 4
        first = idx[t] + r - w + 1
        a(setup[t])
        if t == "1": pad(1, "L_comp")
        if t in "12": a("s_mov_b64 exec, s[48:49]")
        if t == "1":
            nfree = min(8, max(0, w - 16))
            for i in range(8):
                if i == nfree:
                    a(f"s_waitcnt vmcnt({16 + nfree})"); stamp(); a("s_barrier")
                if i >= nfree:
                    a(f"s_waitcnt vmcnt({w-1})")
                    ld_ = 16 + i - w + 1
                    if ld_ > 0 and ld_ % 4 == 0: a(f"v_mov_b32 v7, {ld_}\nds_max_i32 v3, v7")
                a(f"""global_load_lds_dwordx4 v{v}, s[{s}:{s+1}] {pol[t]}
                s_add_u32 m0, m0, s50
                v_add_u32 v{v}, s51, v{v}""")
            if nfree == 8:
                a(f"s_waitcnt vmcnt(24)"); stamp(); a("s_barrier")
        else:
            a(f"v_mov_b32 v7, {first}")
            l = lab("ld")
            a(f"{l}:")
            for i in range(4):
                a(f"s_waitcnt vmcnt({w-1})")
                if i == r: a("ds_max_i32 v3, v7")
                a(f"""global_load_lds_dwordx4 v{v}, s[{s}:{s+1}] {pol[t]}
                s_add_u32 m0, m0, s50
                v_add_u32 v{v}, s51, v{v}""")
            e = base[t] + cnt[t] * ST
            if t in "KV": a(f"v_bfi_b32 v{v}, v16, v{v}, s47")
            a(f"""v_add_u32 v7, 4, v7
            {'s_cmpk_lt_u32' if e < 65536 else 's_cmp_lt_u32'} m0, {e}
            s_cbranch_scc1 {l}""")
        if t in "12": a("s_mov_b64 exec, -1")
        stamp()
    for b in range(4, NL + 1, 4):
        if b > NL - Wd["2"] and (b <= idx['V'] + 32 or b == NL or b == pace_o):
            a(f"v_mov_b32 v7, {b}\ns_waitcnt vmcnt({NL-b})\nds_max_i32 v3, v7")
    stamp()
    a("s_branch L_fin")

    def common():
        a(f"""v_and_b32 v2, 63, v0
        s_lshl_b32 s36, s30, 2
        s_add_u32 s36, s36, s34
        s_mov_b32 s33, {budget}
        v_mov_b32 v3, {PROG}
        """)
        if stamps: a("s_mov_b64 s[56:57], 0\ns_mov_b64 s[58:59], 0")
    nst[0] = 0
    a("L_comp:")
    common()
    a(f"""
    v_lshlrev_b32 v16, 4, v2
    s_sub_u32 s32, s32, 1
    v_and_b32 v20, 15, v2
    v_lshrrev_b32 v21, 4, v2
    v_lshrrev_b32 v22, 2, v20
    v_and_b32 v23, 3, v2
    s_lshl_b32 s38, s30, 13
    s_lshl_b32 s39, s34, 11
    s_add_u32 s38, s38, s39
    s_lshl_b32 s39, s35, 8
    s_lshl_b32 s44, s32, 6
    s_add_u32 s39, s39, s44
    s_add_u32 s38, s38, s39
    s_add_u32 s38, s38, {QB}
    v_lshl_add_u32 v12, v20, 2, s38
    s_lshl_b32 s38, s36, 11
    s_add_u32 s38, s38, s39
    s_add_u32 s38, s38, {HB}
    v_lshl_add_u32 v13, v20, 2, s38
    s_lshl_b32 s38, s30, 16
    s_lshl_b32 s39, s31, 9
    s_add_u32 s38, s38, s39
    s_lshl_b32 s45, s32, 7
    s_add_u32 s38, s38, s45
    s_add_u32 s38, s38, {OB}
    v_lshlrev_b32 v46, 14, v21
    v_lshl_add_u32 v46, v20, 3, v46
    v_add_u32 v46, s38, v46
    s_waitcnt lgkmcnt(0)
    global_load_dword v125, v12, s[28:29] sc1
    global_load_dword v125, v13, s[28:29] sc1
    {"global_load_dword v114, v46, s[28:29] sc1" if opre in (0, 3) else ""}
    """)
    a(f"""
    s_add_u32 s26, s28, {DL}
    s_addc_u32 s27, s29, 0
    s_lshl_b32 s38, s32, 1
    v_lshrrev_b32 v7, 1, v23
    v_add_u32 v4, s38, v7
    v_and_b32 v5, 2, v22
    v_xor_b32 v4, v4, v5
    v_lshlrev_b32 v4, 4, v4
    v_and_b32 v14, 1, v23
    v_lshl_add_u32 v5, v14, 3, v4
    v_lshl_add_u32 v5, v22, 7, v5
    v_mul_u32_u24 v6, {ST}, v21
    v_add_u32 v24, v5, v6
    v_add_u32 v25, {base['o']}, v24
    s_mul_i32 s38, s32, {8*ST}
    s_add_u32 s38, s38, {base['K']}
    v_xor_b32 v4, v21, v23
    v_lshlrev_b32 v4, 4, v4
    v_lshl_add_u32 v4, v23, 8, v4
    v_mul_u32_u24 v5, {ST}, v22
    v_add3_u32 v26, v4, v5, s38
    s_lshl_b32 s38, s32, 2
    v_add_u32 v4, s38, v7
    v_lshlrev_b32 v5, 1, v22
    v_xor_b32 v4, v4, v5
    v_lshlrev_b32 v4, 4, v4
    v_lshl_add_u32 v4, v14, 3, v4
    v_lshl_add_u32 v4, v22, 8, v4
    v_xor_b32 v5, 32, v4
    v_lshlrev_b32 v6, 1, v6
    v_add_u32 v6, {base['V']}, v6
    v_add_u32 v27, v4, v6
    v_add_u32 v28, v5, v6
    v_add_u32 v44, s38, v3""")
    a(f"""v_mov_b32 v19, 0xff
    v_mov_b32 v18, 0x3b000000
    v_mov_b32 v112, v16
    v_add_u32 v16, {XN}, v16
    v_lshlrev_b32 v15, 4, v21
    s_lshl_b32 s38, s34, 8
    s_add_u32 s38, s38, {XN}
    v_add_u32 v17, s38, v15""")
    stamp()
    a("s_barrier")
    stamp()
    a("ds_read_b128 v[8:11], v112\ns_waitcnt lgkmcnt(0)")
    for i in range(4):
        a(f"v_lshlrev_b32 v{32+2*i}, 16, v{8+i}\nv_and_b32 v{33+2*i}, 0xffff0000, v{8+i}")
    a("s_mov_b32 s55, 0\nL_ln:")
    a("""v_pk_mul_f32 v[40:41], v[32:33], v[32:33]
    v_pk_add_f32 v[4:5], v[32:33], v[34:35]
    v_pk_fma_f32 v[40:41], v[34:35], v[34:35], v[40:41]
    v_pk_add_f32 v[6:7], v[36:37], v[38:39]
    v_pk_fma_f32 v[40:41], v[36:37], v[36:37], v[40:41]
    v_pk_add_f32 v[4:5], v[4:5], v[6:7]
    v_pk_fma_f32 v[40:41], v[38:39], v[38:39], v[40:41]
    v_add_f32 v4, v4, v5
    v_add_f32 v5, v40, v41
    s_nop 0""")
    for d in ("row_shr:1", "row_shr:2", "row_shr:4", "row_shr:8"):
        a(f"""v_add_f32_dpp v4, v4, v4 {d} row_mask:0xf bank_mask:0xf bound_ctrl:1
        v_add_f32_dpp v5, v5, v5 {d} row_mask:0xf bank_mask:0xf bound_ctrl:1
        s_nop 0""")
    a(f"""v_add_f32_dpp v4, v4, v4 row_bcast:15 row_mask:0xa bank_mask:0xf
    v_add_f32_dpp v5, v5, v5 row_bcast:15 row_mask:0xa bank_mask:0xf
    s_nop 0
    v_add_f32_dpp v4, v4, v4 row_bcast:31 row_mask:0xc bank_mask:0xf
    v_add_f32_dpp v5, v5, v5 row_bcast:31 row_mask:0xc bank_mask:0xf
    s_nop 0
    v_readlane_b32 s38, v4, 63
    v_readlane_b32 s39, v5, 63
    s_nop 0
    v_mul_f32 v4, s38, v18
    v_mul_f32 v5, s39, v18
    v_fma_f32 v5, -v4, v4, v5
    v_max_f32 v5, 0, v5
    v_cvt_pk_bf16_f32 v4, v4, v5
    v_and_b32 v5, 0xffff0000, v4
    v_lshlrev_b32 v4, 16, v4
    v_add_f32 v5, 0x3727c5ac, v5
    v_cvt_pk_bf16_f32 v5, v5, v5
    v_and_b32 v5, 0xffff0000, v5
    v_sqrt_f32 v6, v5""")
    for i in range(4):
        a(f"v_pk_add_f32 v[{32+2*i}:{33+2*i}], v[{32+2*i}:{33+2*i}], v[4:5] op_sel_hi:[1,0] neg_lo:[0,1] neg_hi:[0,1]")
    a(f"""v_cvt_pk_bf16_f32 v6, v6, v6
    v_and_b32 v6, 0xffff0000, v6
    v_rcp_f32 v6, v6""")
    for i in range(4):
        a(f"v_cvt_pk_bf16_f32 v{40+i}, v{32+2*i}, v{33+2*i}")
    for i in range(4):
        a(f"v_lshlrev_b32 v{32+2*i}, 16, v{40+i}\nv_and_b32 v{33+2*i}, 0xffff0000, v{40+i}")
    for i in range(4):
        a(f"v_pk_mul_f32 v[{32+2*i}:{33+2*i}], v[{32+2*i}:{33+2*i}], v[6:7] op_sel_hi:[1,0]")
    for i in range(4):
        a(f"v_cvt_pk_bf16_f32 v{40+i}, v{32+2*i}, v{33+2*i}")
    a("""ds_write_b128 v16, v[40:43]
    s_cmp_lg_u32 s55, 0
    s_cbranch_scc1 L_ln2""")
    for t in range(4):
        a(f"ds_read_b128 v[{48+4*t}:{51+4*t}], v17 offset:{64*t}")
    for i in range(4):
        a(f"v_lshlrev_b32 v{32+2*i}, 16, v{40+i}\nv_and_b32 v{33+2*i}, 0xffff0000, v{40+i}")
    stamp()
    a(f"""s_lshl_b32 s38, s35, 7
    s_add_u32 s38, s38, {YN}
    v_add_u32 v17, s38, v15
    v_add_u32 v16, 1024, v16
    s_lshl_b32 s38, s30, 13
    s_lshl_b32 s39, s32, 9
    s_add_u32 s38, s38, s39
    s_add_u32 s38, s38, {QB}
    v_lshl_add_u32 v8, v2, 3, s38
    v_add_u32 v9, 4096, v8
    s_mul_i32 s39, s32, 288
    s_add_u32 s39, s39, {QL}
    v_lshl_add_u32 v10, v2, 2, s39
    v_mul_u32_u24 v11, 288, v23
    v_add_u32 v11, v11, v15
    v_add_u32 v11, {QL}, v11
    s_add_u32 s38, s45, {SL}
    v_mul_u32_u24 v47, 576, v23
    v_add3_u32 v47, v47, v15, s38
    v_mul_u32_u24 v115, 576, v22
    v_lshl_add_u32 v115, v23, 7, v115
    v_lshl_add_u32 v115, v21, 5, v115
    v_add_u32 v115, {SL}, v115
    s_lshl_b32 s38, s36, 14
    s_add_u32 s38, s38, s45
    s_add_u32 s38, s38, {OB}
    v_lshrrev_b32 v6, 3, v2
    v_and_b32 v5, 7, v2
    v_lshlrev_b32 v116, 11, v6
    v_lshl_add_u32 v116, v5, 4, v116
    v_add_u32 v116, s38, v116
    s_add_u32 s38, s44, {AL}
    v_mul_u32_u24 v117, 288, v6
    v_lshl_add_u32 v117, v5, 2, v117
    v_add_u32 v117, s38, v117
    v_mov_b32 v118, 0x0c0c0400
    v_mov_b32 v6, 0x04000c0c
    v_cmp_eq_u32 vcc, 1, v14
    v_mul_u32_u24 v119, 288, v5
    v_add_u32 v119, v119, v15
    v_cndmask_b32 v118, v118, v6, vcc
    v_add_u32 v119, {AL}, v119
    v_add_u32 v120, {HL}, v15
    s_lshl_b32 s38, s35, 14
    s_lshl_b32 s39, s36, 9
    s_add_u32 s38, s38, s39
    s_add_u32 s38, s38, s45
    s_add_u32 s38, s38, {FB}
    v_lshl_add_u32 v121, v20, 3, s38
    s_lshl_b32 s52, s32, 3
    s_add_u32 s52, s52, {idx['K'] + 8}""")
    l = lab("wt")
    a(f"{l}:\nds_read_b64 v[4:5], v3 offset:{256+48}")
    tmo()
    a(f"""s_waitcnt lgkmcnt(0)
    v_cmp_eq_u32 vcc, 0, v5
    s_cbranch_vccnz {l}
    v_readfirstlane_b32 s40, v4
    v_lshlrev_b32 v122, 3, v23
    v_lshrrev_b32 v29, v122, v4
    v_lshlrev_b32 v5, 4, v14
    v_lshrrev_b32 v30, v5, v4
    v_lshrrev_b32 v31, 8, v30
    s_getreg_b32 s38, hwreg(HW_REG_XCC_ID, 0, 4)
    s_lshr_b32 s42, s40, 16
    v_mul_u32_u24 v5, s38, v14
    s_xor_b32 s42, s42, s38
    v_xor_b32 v113, v30, v5
    """)
    wait_prog(idx['q'] + 16)
    stamp()
    for t in range(4):
        for rd in range(2):
            a(f"ds_read_b64_tr_b16 v[{72+4*t+2*rd}:{73+4*t+2*rd}], v24 offset:{base['q'] + t*4*ST + rd*512}")
    for t in range(4):
        c = "0" if t == 0 else "v[4:7]"
        a(f"s_waitcnt lgkmcnt({lgk(6-2*t)})\nv_mfma_f32_16x16x32_bf16 v[4:7], v[{48+4*t}:{51+4*t}], v[{72+4*t}:{75+4*t}], {c}")
    a(f"""s_mov_b64 exec, 0xffff
    s_mov_b32 s55, 1
    s_nop 5
    v_bfi_b32 v123, v19, v29, v4
    global_store_dword v12, v123, s[28:29] {ast}
    s_mov_b64 exec, -1""")
    stamp()
    def qissue(r):
        a(f"""global_load_dwordx2 v[{r}:{r+1}], v8, s[28:29] sc1
        global_load_dwordx2 v[{r+2}:{r+3}], v8, s[28:29] offset:2048 sc1
        global_load_dwordx2 v[{r+4}:{r+5}], v9, s[28:29] sc1
        global_load_dwordx2 v[{r+6}:{r+7}], v9, s[28:29] offset:2048 sc1""")
        attempts(0)
    def qcheck(r):
        a(f"v_xor_b32 v4, v{r}, v30")
        for i in range(1, 8):
            a(f"v_bitop3_b32 v4, v4, v{r+i}, v{30 + (i & 1)} bitop3:0xf6")
        a(f"""v_and_b32 v4, v19, v4
        v_cmp_ne_u32 vcc, 0, v4
        v_pk_add_f32 v[40:41], v[{r}:{r+1}], v[{r+2}:{r+3}]
        v_pk_add_f32 v[42:43], v[{r+4}:{r+5}], v[{r+6}:{r+7}]""")
    def qhB():
        a(f"""s_mov_b64 exec, 0xffff
        global_store_dword v12, v123, s[26:27] sc1
        global_store_dword v13, v124, s[26:27] sc1
        s_mov_b64 exec, -1""")
    qissue(128)
    a(f"""s_cmp_lt_u32 s36, 28
    s_cbranch_scc1 L_ln
    s_branch L_nomlp1""")
    pad(3, "L_pad4", jump=False)
    a(f"""L_ln2:
    ds_read_b128 v[64:67], v17
    ds_read_b128 v[68:71], v17 offset:64""")
    wait_prog(idx['1'] + 8)
    for t in range(2):
        for rd in range(2):
            a(f"ds_read_b64_tr_b16 v[{72+4*t+2*rd}:{73+4*t+2*rd}], v24 offset:{base['1'] + t*4*ST + rd*512}")
    a(f"""s_waitcnt lgkmcnt(0)
    v_mfma_f32_16x16x32_bf16 v[4:7], v[64:67], v[72:75], 0
    v_mfma_f32_16x16x32_bf16 v[4:7], v[68:71], v[76:79], v[4:7]
    s_mov_b64 exec, 0xffff
    s_nop 6
    v_bfi_b32 v124, v19, v29, v4
    global_store_dword v13, v124, s[28:29] {ast}
    s_mov_b64 exec, -1
    L_nomlp1:""")
    stamp()
    qissue(136)
    if opre == 1: a("global_load_dword v114, v46, s[28:29] sc1")
    a(f"""ds_read_b32 v4, v3
    s_mov_b32 s47, {KSW // 3}
    s_waitcnt lgkmcnt(0)
    v_readfirstlane_b32 s53, v4
    s_add_u32 s53, s53, {qstag}
    s_min_u32 s53, s53, {NL}""")
    wait_prog("s53")
    a("L_gq:")
    qissue(104)
    tmo()
    a("s_waitcnt vmcnt(8)" if opre != 1 else "s_waitcnt vmcnt(8)")
    qcheck(128)
    a("s_cbranch_vccz L_gqok")
    a(f"""s_sub_u32 s47, s47, 1
    s_cbranch_scc0 L_gq2
    v_add_u32 v8, {DL}, v8
    v_add_u32 v9, {DL}, v9""")
    qhB()
    a("L_gq2:")
    qissue(128)
    a("s_waitcnt vmcnt(8)")
    qcheck(136)
    a("s_cbranch_vccz L_gqok")
    qissue(136)
    a("s_waitcnt vmcnt(8)")
    qcheck(104)
    a("s_cbranch_vccnz L_gq")
    a(f"""L_gqok:
    v_pk_add_f32 v[40:41], v[40:41], v[42:43]
    v_mov_b32 v5, 1
    v_cvt_pk_bf16_f32 v40, v40, v41
    ds_write_b32 v10, v40
    ds_write_b32 v44, v5 offset:256""")
    stamp()
    a(f"""L_wk:
    ds_read_b32 v40, v3
    ds_read_b128 v[4:7], v3 offset:256""")
    for t in range(4):
        a(f"ds_read_b128 v[{48+4*t}:{51+4*t}], v11 offset:{64*t}")
    tmo()
    a(f"""s_waitcnt lgkmcnt({lgk(4)})
    v_bitop3_b32 v4, v4, v5, v6 bitop3:0x80
    v_cmp_gt_u32 s[60:61], s52, v40
    v_and_b32 v4, v4, v7
    v_cmp_eq_u32 vcc, 0, v4
    s_or_b64 s[60:61], vcc, s[60:61]
    s_cbranch_scc1 L_wk""")
    for t in range(4):
        for u in range(2):
            r = 72 + 16*u + 4*t
            a(f"ds_read_b128 v[{r}:{r+3}], v26 offset:{u*4*ST + t*64}")
    for t in range(4):
        for u in range(2):
            c = "0" if t == 0 else f"v[{32+4*u}:{35+4*u}]"
            a(f"s_waitcnt lgkmcnt({lgk(7-2*t-u)})")
            a(f"v_mfma_f32_16x16x32_bf16 v[{32+4*u}:{35+4*u}], v[{72+16*u+4*t}:{75+16*u+4*t}], v[{48+4*t}:{51+4*t}], {c}")
    SC = 0x3e0293ee
    a(f"""s_mov_b32 exec_lo, 0x000f000f
    s_mov_b32 exec_hi, 0x000f000f
    v_mov_b32 v5, 1
    s_mov_b32 s46, {SC}
    s_nop 3
    ds_write_b128 v47, v[32:35]
    ds_write_b128 v47, v[36:39] offset:64
    ds_write_b32 v44, v5 offset:272
    s_mov_b64 exec, -1
    v_mov_b32 v64, 0x3f803f80
    v_mov_b32 v65, v64
    v_mov_b32 v66, v64
    v_mov_b32 v67, v64""")
    stamp()
    if opre in (2, 3): a("global_load_dword v114, v46, s[28:29] sc1")
    qhB()
    pad(4, "L_pad5")
    def vread(t, k):
        ntile, rd = k >> 1, k & 1
        r = 72 + 8*t + 4*ntile + 2*rd
        return f"ds_read_b64_tr_b16 v[{r}:{r+1}], v{27+ntile} offset:{t*8*ST + rd*ST}"
    a(f"""L_ws:
    ds_read_b128 v[4:7], v3 offset:272
    ds_read_b32 v40, v3
    ds_read_b128 v[32:35], v115
    ds_read_b128 v[36:39], v115 offset:16""")
    tmo()
    a(f"""s_waitcnt lgkmcnt({lgk(2)})
    v_bitop3_b32 v4, v4, v5, v6 bitop3:0x80
    v_readfirstlane_b32 s53, v40
    v_and_b32 v4, v4, v7
    v_cmp_eq_u32 vcc, 0, v4
    s_cbranch_vccnz L_ws
    s_waitcnt lgkmcnt(0)
    v_max3_f32 v4, v32, v33, v34
    v_max3_f32 v5, v35, v36, v37
    v_max3_f32 v4, v4, v38, v39
    v_max_f32 v4, v4, v5
    {vread(0, 0)}
    {vread(0, 1)}
    v_max_f32_dpp v4, v4, v4 quad_perm:[1,0,3,2] row_mask:0xf bank_mask:0xf
    {vread(0, 2)}
    {vread(0, 3)}
    v_max_f32_dpp v4, v4, v4 quad_perm:[2,3,0,1] row_mask:0xf bank_mask:0xf
    v_mov_b32 v5, v4
    {vread(1, 0)}
    {vread(1, 1)}
    v_permlane16_swap_b32 v4, v5
    v_max_f32 v4, v4, v5
    v_mov_b32 v5, v4
    {vread(1, 2)}
    {vread(1, 3)}
    v_permlane32_swap_b32 v4, v5
    v_max_f32 v4, v4, v5
    v_mul_f32 v6, s46, v4""")
    for i in range(8):
        a(f"v_fma_f32 v{32+i}, v{32+i}, s46, -v6")
        if i == 0: a("ds_bpermute_b32 v45, v15, v6")
    for i in range(8):
        a(f"v_exp_f32 v{32+i}, v{32+i}\n{vread(2 + (i >> 2), i & 3)}")
    for i in range(4):
        a(f"v_cvt_pk_bf16_f32 v{40+i}, v{32+2*i}, v{33+2*i}")
    stamp()
    for t in range(4):
        for i in range(4):
            a(f"v_mov_b32_dpp v{48+4*t+i}, v{40+i} quad_perm:[{t},{t},{t},{t}] row_mask:0xf bank_mask:0xf")
            if t == 0 and i == 1: a("v_mfma_f32_16x16x32_bf16 v[68:71], v[40:43], v[64:67], 0")
        sk = lab("vs")
        a(f"s_cmpk_ge_u32 s53, {idx['V'] + 8*(t+1)}\ns_cbranch_scc1 {sk}")
        wait_prog(idx['V'] + 8*(t+1))
        for k in range(4): a(vread(t, k))
        a(f"{sk}:\ns_waitcnt lgkmcnt(0)")
        for ntile in range(2):
            c = "0" if t == 0 else f"v[{32+4*ntile}:{35+4*ntile}]"
            a(f"v_mfma_f32_16x16x32_bf16 v[{32+4*ntile}:{35+4*ntile}], v[{48+4*t}:{51+4*t}], v[{72+8*t+4*ntile}:{75+8*t+4*ntile}], {c}")
        if t == 1:
            a("""v_pk_add_f32 v[68:69], v[68:69], v[70:71]
            v_add_f32 v68, v68, v69
            v_log_f32 v5, v68
            v_rcp_f32 v6, v68
            v_add_f32 v45, v45, v5
            v_lshrrev_b32 v45, v122, v45""")
    a(f"""s_nop 6
    v_mul_f32 v32, v32, v6
    v_bfi_b32 v126, v19, v113, v32
    v_mul_f32 v36, v36, v6
    v_bfi_b32 v127, v19, v45, v36
    global_store_dwordx2 v46, v[126:127], s[28:29] {ast}""")
    stamp()
    def ogather():
        if stamps: a("s_memrealtime s[94:95]")
        for i in range(4):
            a(f"global_load_dwordx4 v[{48+4*i}:{51+4*i}], v116, s[28:29] offset:{512*i} sc1")
        attempts(1)
    if pace_o > idx['V'] + 32: wait_prog(pace_o)
    ogather()
    stamp()
    o2 = base['2'] - base['o']
    a(f"""s_mov_b32 s47, {KSW}
    s_cmp_ge_u32 s36, 28
    s_cbranch_scc1 L_go1""")
    wait_flag1(36)
    a(f"""ds_read_b128 v[64:67], v120
    ds_read_b128 v[68:71], v120 offset:64
    s_branch L_go1""")
    pad(5, "L_pad6", jump=False)
    a(f"""L_go:
    s_sub_u32 s47, s47, 1
    s_cbranch_scc0 L_go2
    v_add_u32 v116, {DL}, v116
    global_store_dwordx2 v46, v[126:127], s[26:27] sc1
    L_go2:""")
    ogather()
    a("L_go1:")
    tmo()
    a("s_waitcnt vmcnt(0)")
    if stamps: a("s_memrealtime s[96:97]")
    a(f"""v_xor_b32 v7, s42, v50
    v_xor_b32 v4, s40, v48
    v_bitop3_b32 v7, v7, v54, s42 bitop3:0xf6
    v_bitop3_b32 v4, v4, v52, s40 bitop3:0xf6
    v_bitop3_b32 v7, v7, v58, s42 bitop3:0xf6
    v_bitop3_b32 v4, v4, v56, s40 bitop3:0xf6
    v_bitop3_b32 v7, v7, v62, s42 bitop3:0xf6
    v_bitop3_b32 v4, v4, v60, s40 bitop3:0xf6
    v_and_b32 v6, 0xf0, v7
    v_and_or_b32 v4, v4, v19, v6
    v_cmp_ne_u32 vcc, 0, v4
    v_perm_b32 v40, v51, v49, v118
    v_perm_b32 v41, v55, v53, v118
    s_cbranch_vccnz L_go
    v_perm_b32 v42, v59, v57, v118
    v_perm_b32 v43, v63, v61, v118
    v_or_b32_dpp v40, v40, v40 quad_perm:[1,0,3,2] row_mask:0xf bank_mask:0xf
    v_or_b32_dpp v41, v41, v41 quad_perm:[1,0,3,2] row_mask:0xf bank_mask:0xf
    v_or_b32_dpp v42, v42, v42 quad_perm:[1,0,3,2] row_mask:0xf bank_mask:0xf
    v_or_b32_dpp v43, v43, v43 quad_perm:[1,0,3,2] row_mask:0xf bank_mask:0xf
    v_max_f32 v5, v40, v41
    v_max3_f32 v5, v5, v42, v43
    v_and_b32 v7, 15, v7
    v_cmp_ne_u32 vcc, 0, v7
    v_max_f32_dpp v5, v5, v5 row_ror:8 row_mask:0xf bank_mask:0xf
    v_mov_b32 v6, v5
    s_nop 1
    v_permlane16_swap_b32 v5, v6
    v_max_f32 v5, v5, v6
    v_mov_b32 v6, v5
    s_nop 1
    v_permlane32_swap_b32 v5, v6
    v_max_f32 v5, v5, v6
    v_sub_f32 v40, v40, v5
    v_sub_f32 v41, v41, v5
    v_exp_f32 v40, v40
    v_sub_f32 v42, v42, v5
    v_exp_f32 v41, v41
    v_sub_f32 v43, v43, v5
    v_exp_f32 v42, v42
    v_exp_f32 v43, v43
    v_pk_mul_f32 v[32:33], v[48:49], v[40:41] op_sel_hi:[1,0]
    v_pk_mul_f32 v[34:35], v[50:51], v[40:41] op_sel_hi:[1,0]""")
    sel = {1: ("v[40:41]", "op_sel:[0,1,0] op_sel_hi:[1,1,1]"), 2: ("v[42:43]", "op_sel_hi:[1,0,1]"), 3: ("v[42:43]", "op_sel:[0,1,0] op_sel_hi:[1,1,1]")}
    for i in range(1, 4):
        w_, m_ = sel[i]
        a(f"""v_pk_fma_f32 v[32:33], v[{48+4*i}:{49+4*i}], {w_}, v[32:33] {m_}
        v_pk_fma_f32 v[34:35], v[{50+4*i}:{51+4*i}], {w_}, v[34:35] {m_}""")
    a(f"""v_cvt_pk_bf16_f32 v4, v32, v34
    v_cvt_pk_bf16_f32 v5, v33, v35
    ds_write2_b32 v117, v4, v5 offset0:0 offset1:8""")
    stamp()
    a(f"""v_pk_add_f32 v[40:41], v[40:41], v[42:43]
    v_add_f32 v40, v40, v41
    s_waitcnt lgkmcnt(0)
    s_barrier""")
    stamp()
    for t in range(4):
        a(f"ds_read_b128 v[{48+4*t}:{51+4*t}], v119 offset:{64*t}")
        for rd in range(2):
            a(f"ds_read_b64_tr_b16 v[{72+4*t+2*rd}:{73+4*t+2*rd}], v25 offset:{t*4*ST + rd*512}")
        if t == 0: a("v_add_f32_dpp v40, v40, v40 row_ror:8 row_mask:0xf bank_mask:0xf\nv_mov_b32 v41, v40")
        if t == 1: a("v_permlane16_swap_b32 v40, v41\nv_add_f32 v40, v40, v41\nv_mov_b32 v41, v40")
        if t == 2: a("v_permlane32_swap_b32 v40, v41\nv_add_f32 v40, v40, v41\nv_rcp_f32 v40, v40")
    for t in range(2):
        for rd in range(2):
            a(f"ds_read_b64_tr_b16 v[{88+4*t+2*rd}:{89+4*t+2*rd}], v25 offset:{o2 + t*4*ST + rd*512}")
    for t in range(4):
        c = "0" if t == 0 else "v[32:35]"
        a(f"s_waitcnt lgkmcnt({lgk(13-3*t)})\nv_mfma_f32_16x16x32_bf16 v[32:35], v[{48+4*t}:{51+4*t}], v[{72+4*t}:{75+4*t}], {c}")
    a(f"""s_waitcnt lgkmcnt(0)
    v_mfma_f32_16x16x32_bf16 v[36:39], v[64:67], v[88:91], 0
    v_mfma_f32_16x16x32_bf16 v[36:39], v[68:71], v[92:95], v[36:39]""")
    a(f"""s_nop 4
    v_pk_add_f32 v[32:33], v[32:33], v[34:35]
    v_add_f32 v4, v32, v33
    v_add_f32 v6, v32, v33
    s_cmp_lt_u32 s36, 28
    s_cselect_b32 s38, -1, 0
    v_permlane16_swap_b32 v4, v6
    v_add_f32 v4, v4, v6
    s_mov_b64 exec, 0xffff
    v_mul_f32 v4, v4, v40
    v_and_b32 v5, s38, v36
    v_bfi_b32 v4, v19, v30, v4
    v_bfi_b32 v5, v19, v31, v5
    global_store_dwordx2 v121, v[4:5], s[28:29] {fst}
    s_mov_b64 exec, -1""")
    stamp()
    if not noB: a("s_cbranch_vccz L_fin\nglobal_store_dwordx2 v46, v[126:127], s[26:27] sc1")
    a("s_branch L_fin")

    nst[0] = 0
    a("L_aux:")
    common()
    a(f"""v_mov_b32 v4, 0
    v_lshl_add_u32 v5, v2, 2, v3
    ds_write_b32 v5, v4
    ds_write_b32 v5, v4 offset:64
    s_lshl_b32 s38, s36, 7
    v_lshl_add_u32 v6, v2, 1, s38
    s_lshl_b32 s48, s34, 3
    s_add_u32 s48, s48, s30
    s_lshl_b32 s48, s48, 2
    s_and_b32 s38, s31, 3
    s_add_u32 s48, s48, s38
    s_lshl_b32 s38, s48, 3
    v_lshrrev_b32 v20, 5, v2
    v_and_b32 v21, 1, v2
    v_lshlrev_b32 v4, 2, v20
    v_lshl_add_u32 v4, v21, 1, v4
    v_add_u32 v12, s38, v4
    s_waitcnt lgkmcnt(0)
    s_load_dword s37, s[28:29], 0
    s_cmp_ge_u32 s36, 28
    s_cbranch_scc1 L_aux0
    global_load_ushort v8, v6, s[18:19]
    L_aux0:
    global_load_ushort v9, v12, s[4:5]
    global_load_ushort v10, v12, s[22:23]""")
    stamp()
    a(f"""s_barrier
    v_mov_b32 v5, 1
    v_mov_b32 v19, 0xff
    s_lshr_b32 s38, s48, 4
    s_lshl_b32 s38, s38, 14
    s_and_b32 s39, s48, 15
    s_lshl_b32 s39, s39, 5
    s_add_u32 s38, s38, s39
    s_add_u32 s38, s38, {FB}
    v_and_b32 v22, 31, v2
    v_lshlrev_b32 v17, 9, v22
    v_lshl_add_u32 v17, v20, 4, v17
    v_add_u32 v17, s38, v17
    v_cmp_eq_u32 s[46:47], 1, v21
    s_waitcnt lgkmcnt(0)
    s_add_u32 s37, s37, 1
    s_mul_i32 s40, s37, 0x9E3779B1
    v_mov_b32 v4, s40
    ds_write_b64 v3, v[4:5] offset:{256+48}
    s_lshr_b32 s41, s40, 8
    s_lshr_b32 s42, s40, 16
    s_lshr_b32 s43, s40, 24
    v_and_b32 v4, 3, v2
    v_lshlrev_b32 v4, 3, v4
    v_lshrrev_b32 v29, v4, s40""")
    stamp()
    if fpre and not fpre_late: a("global_load_dword v40, v17, s[28:29] sc1")
    if warm: a("s_branch L_pad3\nL_auxw:")
    stamp()
    if extra_dirty:
        a(f"s_lshl_b32 s38, s2, 12\ns_add_u32 s38, s38, 0x400000\nv_lshl_add_u32 v16, v2, 4, s38")
        for i in range(extra_dirty):
            a(f"global_store_dwordx4 v16, v[32:35], s[28:29] offset:{1024*i}")
    a(f"""s_cmp_ge_u32 s36, 28
    s_cbranch_scc1 L_aux1
    s_lshl_b32 s38, s36, 11
    s_add_u32 s38, s38, {HB}
    v_lshl_add_u32 v16, v2, 2, s38
    s_mov_b32 s49, {KSW}""")
    wait_prog(pace_h)
    a(f"""L_gh:
    s_sub_u32 s49, s49, 1
    s_cselect_b32 s39, {DL}, 0
    v_add_u32 v16, s39, v16""")
    for p_ in range(8):
        a(f"global_load_dword v{32+p_}, v16, s[28:29] offset:{256*p_} sc1")
    attempts(0)
    tmo()
    a(f"""s_waitcnt vmcnt(0)
    v_xor_b32 v4, v32, v29""")
    for p_ in range(1, 8):
        a(f"v_bitop3_b32 v4, v4, v{32+p_}, v29 bitop3:0xf6")
    C1 = 0xc0135761
    C2 = 0xbdd2d3e8
    a(f"""v_and_b32 v4, v19, v4
    v_cmp_ne_u32 vcc, 0, v4
    s_cbranch_vccnz L_gh
    v_pk_add_f32 v[32:33], v[32:33], v[34:35]
    v_pk_add_f32 v[36:37], v[36:37], v[38:39]
    v_pk_add_f32 v[32:33], v[32:33], v[36:37]
    v_add_f32 v32, v32, v33
    v_cvt_pk_bf16_f32 v32, v32, v32
    v_and_b32 v32, 0xffff0000, v32
    v_lshlrev_b32 v8, 16, v8
    v_add_f32 v32, v32, v8
    v_cvt_pk_bf16_f32 v32, v32, v32
    v_and_b32 v32, 0xffff0000, v32
    v_mul_f32 v33, v32, v32
    v_mov_b32 v34, {C1}
    v_fmac_f32 v34, {C2}, v33
    v_mul_f32 v33, v34, v32
    v_exp_f32 v33, v33
    v_lshlrev_b32 v5, 1, v2
    v_add_f32 v33, 1.0, v33
    v_rcp_f32 v33, v33
    v_add_u32 v5, {HL}, v5
    v_mul_f32 v32, v32, v33
    v_cvt_pk_bf16_f32 v32, v32, v32
    v_mov_b32 v6, 1
    ds_write_b16 v5, v32
    ds_write_b32 v3, v6 offset:{256+36}
""")
    pad(6, "L_auxw")
    a("L_aux1:")
    stamp()
    if fpre_late:
        wait_prog(72)
        a("global_load_dword v40, v17, s[28:29] sc1")
    a(f"""s_waitcnt vmcnt(0) lgkmcnt(0)
    v_lshlrev_b32 v9, 16, v9
    v_lshlrev_b32 v10, 16, v10
    s_barrier
    s_bitcmp1_b32 s31, 2
    s_cbranch_scc1 L_fin""")
    stamp()
    regs = [32 + 4 * i for i in range(nfin)]
    for r in regs[:-1]:
        a(f"global_load_dwordx4 v[{r}:{r+3}], v17, s[28:29] sc1")
    a("L_gf:")
    for k in range(nfin):
        r = regs[k]; rn = regs[(k - 1) % nfin]
        if stamps: a("s_memrealtime s[94:95]")
        a(f"global_load_dwordx4 v[{rn}:{rn+3}], v17, s[28:29] sc1")
        attempts(2)
        if k == 0: tmo()
        a(f"""s_waitcnt vmcnt({nfin-1})
        v_xor_b32 v4, s40, v{r}
        v_bitop3_b32 v4, v4, v{r+1}, s41 bitop3:0xf6
    v_bitop3_b32 v4, v4, v{r+2}, s42 bitop3:0xf6
    v_bitop3_b32 v4, v4, v{r+3}, s43 bitop3:0xf6
        v_and_b32 v4, v19, v4
        v_cmp_ne_u32 vcc, 0, v4""")
        for i in range(4):
            a(f"v_add_f32_dpp v{48+i}, v{r+i}, v{r+i} row_ror:1 row_mask:0xf bank_mask:0xf")
        a("s_cbranch_vccz L_gfok" if k < nfin - 1 else "s_cbranch_vccnz L_gf")
    a("L_gfok:")
    stamp()
    for d in (2, 4, 8):
        for i in range(4):
            a(f"v_add_f32_dpp v{48+i}, v{48+i}, v{48+i} row_ror:{d} row_mask:0xf bank_mask:0xf")
    for i in range(4):
        a(f"v_add_f32_dpp v{48+i}, v{48+i}, v{48+i} row_bcast:15 row_mask:0xa bank_mask:0xf")
    a(f"""v_cndmask_b32 v48, v48, v50, s[46:47]
    v_cndmask_b32 v49, v49, v51, s[46:47]
    v_cvt_pk_bf16_f32 v48, v48, v49
    v_and_b32 v49, 0xffff0000, v48
    v_add_f32 v49, v49, v10
    v_cvt_pk_bf16_f32 v49, v49, v49
    v_and_b32 v49, 0xffff0000, v49
    v_mul_f32 v50, 0xbfb8aa3b, v49
    v_exp_f32 v50, v50
    v_lshlrev_b32 v48, 16, v48
    v_add_f32 v50, 1.0, v50
    v_rcp_f32 v50, v50
    s_mov_b32 exec_lo, 0x00030000
    v_mul_f32 v49, v49, v50
    v_cvt_pk_bf16_f32 v49, v49, v49
    v_and_b32 v49, 0xffff0000, v49
    v_mul_f32 v48, v48, v49
    v_cvt_pk_bf16_f32 v48, v48, v48
    s_mov_b32 exec_hi, 0x00030000
    v_and_b32 v48, 0xffff0000, v48
    v_add_f32 v48, v48, v9
    v_cvt_pk_bf16_f32 v48, v48, v48
    @DIAG@
    global_store_short v12, v48, s[24:25] {outst}
    s_cmp_lg_u32 s2, 0
    s_cbranch_scc1 L_fin
    v_mov_b32 v4, 0
    v_mov_b32 v5, s37
    s_mov_b64 exec, 0x10000
    global_store_dword v4, v5, s[28:29]""")
    a("L_fin:")
    if stamps:
        a("s_memrealtime s[92:93]")
        a("s_mov_b64 exec, -1\ns_waitcnt lgkmcnt(0)\nv_mov_b32 v5, 0\nv_writelane_b32 v5, s62, 0")
        for i in range(15):
            a(f"v_writelane_b32 v5, s{64+2*i}, {i+1}")
        a(f"""v_writelane_b32 v5, s33, 17
        s_getreg_b32 s38, hwreg(HW_REG_XCC_ID)
        v_writelane_b32 v5, s38, 18
        v_writelane_b32 v5, s56, 19
        v_writelane_b32 v5, s57, 20
        v_writelane_b32 v5, s58, 21
        v_writelane_b32 v5, s94, 22
        v_writelane_b32 v5, s96, 23
        s_lshl_b32 s38, s2, 10
        s_add_u32 s38, s38, {TS_OFF}
        v_lshrrev_b32 v1, 6, v0
        v_and_b32 v2, 63, v0
        v_lshlrev_b32 v4, 7, v1
        v_lshl_add_u32 v4, v2, 2, v4
        v_add_u32 v4, s38, v4
        s_mov_b64 exec, 0xffffffff
        global_store_dword v4, v5, s[28:29]""")
    a("L_exit:")
    dg = []
    if diag:
        dg = ["L_dg:", f"{diag[0]} s[62:63]", "s_waitcnt lgkmcnt(0)", "s_sub_u32 s62, s62, s60", f"s_cmp_lt_u32 s62, {diag[1]}", "s_cbranch_scc1 L_dg"]
    i_ = L.index("@DIAG@"); L[i_:i_+1] = dg
    body = "\n".join(("" if x.endswith(":") else "    ") + x for x in L)
    return f"""{HEADER}; @launch grid=(256,1,1) block=(384,1,1) lds={LDS_TOTAL}
.amdgcn_target "amdgcn-amd-amdhsa--gfx950"
.text
.globl {KN}_kernel
.p2align 8
.type {KN}_kernel,@function
{KN}_kernel:
{body}
    s_endpgm
.section .rodata,"a"
.p2align 6
.amdhsa_kernel {KN}_kernel
  .amdhsa_next_free_vgpr 144
  .amdhsa_next_free_sgpr 98
  .amdhsa_accum_offset 144
  .amdhsa_group_segment_fixed_size 0
  .amdhsa_kernarg_size 104
  .amdhsa_user_sgpr_count 2
  .amdhsa_user_sgpr_kernarg_segment_ptr 1
  .amdhsa_system_sgpr_workgroup_id_x 1
.end_amdhsa_kernel
"""
if __name__ == "__main__":
    import argparse, json
    ap = argparse.ArgumentParser()
    ap.add_argument("out"); ap.add_argument("--kw", default="{}")
    x = ap.parse_args()
    open(x.out, "w").write(gen(**json.loads(x.kw)))
```

```python
import sys
KN = "recurrent_scan__sliding_block_cached__mixer_channel_mlp__decode"
HEADER = open("cdna_kernels/%s.s.ref" % KN).read().split("; Override launch")[0]

ST = 1088
QB, HB, OB, FB = 0x10000, 0x20000, 0x40000, 0xC0000
DL = 0x100000
TS_OFF = 0x8000000
C_ = [1, 2, 3, 4]
STAMPS = {'wq': (C_, 4), 'qgot': (C_, 7), 'smax': (C_, 9), 'opub': (C_, 10), 'all': ([0], 9), 'ogot': (C_, 12), 'hdone': ([5], 4), 'fpub': (C_, 14), 'fgot': ([5], 6)}
WAVE_GROUPS = {'loader': [0], 'comp': [1, 2, 3, 4], 'aux': [5]}

def gen(W=None, nt="nt", stamps=False, budget=1000000, pace_h=56, KSW=64, warm=True, qstag=12, nfin=1, extra_dirty=0, pace_o=88, noB=False, diag=None, rot=(3, 1), fpre=True, fst="sc1", opre=2, fpre_late=False, ast="", outst="", unq=2, late1=False, evt=None):
    order = "qKV1o2" if late1 else "q1KVo2"
    Wd = {"1": 20, "K": 20, "V": 22, "o": 16, "2": 12}
    if isinstance(W, int): Wd = {k: W for k in Wd}
    elif W: Wd.update(W)
    pol = {t: nt for t in order} if isinstance(nt, str) else {t: nt.get(t, "") for t in order}
    L = []
    def a(s):
        for x in s.split("\n"):
            x = x.strip()
            if x: L.append(x)
    cnt = {"q": 16, "1": 8, "K": 32, "V": 32, "o": 16, "2": 8}
    idx = {}; p = 0
    for t in order:
        idx[t] = p; p += cnt[t]
    NL = p
    base = {t: (idx[t] + 1) * ST for t in order}
    END = (NL + 1) * ST
    PROG = END
    FLG = PROG + 256
    XN = FLG + 64
    YN = XN + 1024
    QL = YN + 1024
    SL = QL + 4 * 288
    AL = SL + 4 * 576
    HL = AL + 8 * 288
    LDS_TOTAL = HL + 128
    assert LDS_TOTAL <= 163840
    nst = [0]
    def stamp():
        if stamps:
            a(f"s_memrealtime s[{64+2*nst[0]}:{65+2*nst[0]}]")
        nst[0] += 1
        assert nst[0] <= 15
    def lgk(n): return 0 if stamps else n
    def event(name):
        if evt and evt[0] == name:
            a(f"""s_memrealtime s[62:63]
            v_mov_b32 v4, {FLG + 40}
            s_waitcnt lgkmcnt(0)
            v_mov_b32 v5, s62
            ds_max_u32 v4, v5
            s_waitcnt lgkmcnt(0)""")
    uid = [0]
    def lab(p):
        uid[0] += 1
        return f"L_{p}{uid[0]}"
    def tmo(padn=None):
        a("s_sub_u32 s33, s33, 1")
        if padn and warm: a(f"L_pad{padn}:")
        a("s_cbranch_scc1 L_fin")
    def pad(n, target, jump=True):
        if warm:
            if jump: a(f"s_branch L_po{n}")
            a(f"L_pad{n}:\ns_branch {target}")
            if jump: a(f"L_po{n}:")
    def wait_prog(th):
        l = lab("wp")
        a(f"{l}:\nds_read_b32 v4, v3")
        tmo()
        a(f"""s_waitcnt lgkmcnt(0)
        v_cmp_gt_u32 vcc, {th}, v4
        s_cbranch_vccnz {l}""")
    def wait_flags(off, padn=None):
        l = lab("wf")
        a(f"{l}:\nds_read_b128 v[4:7], v3 offset:{256+off}")
        tmo(padn)
        a(f"""s_waitcnt lgkmcnt(0)
        v_bitop3_b32 v4, v4, v5, v6 bitop3:0x80
        v_and_b32 v4, v4, v7
        v_cmp_eq_u32 vcc, 0, v4
        s_cbranch_vccnz {l}""")
    def wait_flag1(off):
        l = lab("w1")
        a(f"{l}:\nds_read_b32 v4, v3 offset:{256+off}")
        tmo()
        a(f"""s_waitcnt lgkmcnt(0)
        v_cmp_eq_u32 vcc, 0, v4
        s_cbranch_vccnz {l}""")
    def attempts(i):
        if stamps: a(f"s_add_u32 s{56+i}, s{56+i}, 1")

    if diag: a(f"{diag[0]} s[60:61]")
    if stamps: a("s_memrealtime s[62:63]")
    a(f"""
    s_load_dwordx16 s[4:19], s[0:1], 0
    s_load_dwordx8 s[20:27], s[0:1], 64
    s_load_dwordx2 s[28:29], s[0:1], 96
    v_readfirstlane_b32 s32, v0
    s_lshr_b32 s31, s2, 3
    s_cmp_ge_u32 s31, 32
    s_cbranch_scc1 L_exit
    s_and_b32 s30, s2, 7
    s_lshr_b32 s34, s31, 3
    s_and_b32 s35, s31, 7
    s_lshr_b32 s32, s32, 6
""")
    if warm: a("s_cmp_eq_u32 s32, 1\ns_cbranch_scc1 L_pad1")
    a(f"s_cmp_eq_u32 s32, 5\ns_cbranch_scc1 L_aux\ns_cmp_lg_u32 s32, 0\ns_cbranch_scc1 L_comp")
    a(f"""
    v_lshrrev_b32 v4, 3, v0
    v_and_b32 v5, 7, v0
    v_and_b32 v6, 2, v4
    v_xor_b32 v5, v5, v6
    v_lshlrev_b32 v5, 4, v5
    s_lshl_b32 s37, s34, 20
    s_lshl_b32 s38, s30, 10
    s_lshl_b32 s39, s35, 7
    s_add_u32 s37, s37, s38
    s_add_u32 s37, s37, s39
    v_lshl_add_u32 v10, v4, 13, v5
    v_add_u32 v10, s37, v10
    s_movk_i32 s50, {ST}
    s_lshl_b32 s51, 1, 16
    s_mov_b32 m0, 0
    v_lshlrev_b32 v9, 4, v0
    s_setprio 3
    s_waitcnt lgkmcnt(0)
    """)
    stamp()
    a("global_load_lds_dwordx4 v9, s[4:5]\ns_add_u32 m0, m0, s50\ns_nop 0")
    a("L_ldq:")
    for i in range(unq):
        a(f"""global_load_lds_dwordx4 v10, s[10:11] {pol['q']}
        s_add_u32 m0, m0, s50
        v_add_u32 v10, s51, v10""")
    a(f"""s_cmpk_lt_u32 m0, {17*ST}
    s_cbranch_scc1 L_ldq""")
    stamp()
    a(f"""s_lshl_b32 s36, s30, 2
    s_add_u32 s36, s36, s34
    s_min_u32 s46, s36, 27""")
    if warm: a("s_branch L_po1\n.p2align 8,,64\nL_pad1:\ns_branch L_comp\nL_po1:")
    a(f"""s_cmp_lt_u32 s36, 28
    s_cselect_b64 s[48:49], -1, 1
    v_mov_b32 v3, {PROG}
    v_lshl_add_u32 v3, v0, 2, v3""")
    info = {"1": (11, 16), "K": (12, 6), "V": (13, 8), "o": (14, 12), "2": (15, 20)}
    setup = {
        "1": f"""s_mul_i32 s37, s35, 64*3584
        s_lshl_b32 s38, s46, 7
        s_add_u32 s37, s37, s38
        v_mul_u32_u24 v11, 3584, v4
        v_add3_u32 v11, v11, v5, s37
        s_movk_i32 s51, 28672""",
        "K": f"""s_lshl_b32 s37, s30, 23
        s_lshl_b32 s38, s31, 15
        s_add_u32 s37, s37, s38
        s_add_u32 s47, s37, 0x700000
        v_lshrrev_b32 v8, 4, v0
        v_and_b32 v9, 15, v0
        v_xor_b32 v6, v9, v8
        v_lshlrev_b32 v6, 4, v6
        v_lshl_add_u32 v12, v8, 8, v6
        s_mul_i32 s37, s31, {rot[0]}
        s_mul_i32 s38, s30, {rot[1]}
        s_add_u32 s37, s37, s38
        s_and_b32 s37, s37, 7
        s_lshl_b32 s37, s37, 12
        s_add_u32 s45, s47, s37
        v_add_u32 v12, s45, v12
        v_mov_b32 v16, 0x7fff
        s_movk_i32 s51, 1024""",
        "V": f"""v_lshlrev_b32 v6, 1, v8
        v_xor_b32 v6, v9, v6
        v_lshlrev_b32 v6, 4, v6
        v_lshl_add_u32 v13, v8, 8, v6
        v_add_u32 v13, s45, v13""",
        "o": f"""v_lshl_add_u32 v15, v4, 10, v5
        s_lshl_b32 s37, s36, 17
        s_add_u32 s37, s37, s39
        v_add_u32 v14, s37, v15
        s_movk_i32 s51, 8192""",
        "2": f"""s_lshl_b32 s37, s46, 16
        s_add_u32 s37, s37, s39
        v_add_u32 v15, s37, v15""",
    }
    for t in order[1:]:
        v, s = info[t]; w = Wd[t]
        r = (w - 1 - idx[t]) % 4
        first = idx[t] + r - w + 1
        a(setup[t])
        if t in "12": a("s_mov_b64 exec, s[48:49]")
        def one():
            a(f"""global_load_lds_dwordx4 v{v}, s[{s}:{s+1}] {pol[t]}
            s_add_u32 m0, m0, s50
            v_add_u32 v{v}, s51, v{v}""")
        nfree = 0
        if t == order[1]:
            nfree = min(8, max(0, w - 16)) // 4 * 4
            for i in range(nfree):
                one()
                if t in "KV" and i % 4 == 3: a(f"v_bfi_b32 v{v}, v16, v{v}, s47")
            a(f"s_waitcnt vmcnt({16 + nfree})"); stamp(); a("s_barrier")
        if nfree < cnt[t]:
            a(f"v_mov_b32 v7, {first + nfree}")
            l = lab("ld")
            a(f"{l}:")
            for i in range(4):
                a(f"s_waitcnt vmcnt({w-1})")
                if i == r: a("ds_max_i32 v3, v7")
                one()
            e = base[t] + cnt[t] * ST
            if t in "KV": a(f"v_bfi_b32 v{v}, v16, v{v}, s47")
            a(f"""v_add_u32 v7, 4, v7
            {'s_cmpk_lt_u32' if e < 65536 else 's_cmp_lt_u32'} m0, {e}
            s_cbranch_scc1 {l}""")
        if t in "12": a("s_mov_b64 exec, -1")
        stamp()
    for b in range(4, NL + 1, 4):
        if b > NL - Wd["2"] and (b <= max(idx['V'] + 32, idx['1'] + 8) or b in (NL, pace_o, pace_h)):
            a(f"v_mov_b32 v7, {b}\ns_waitcnt vmcnt({NL-b})\nds_max_i32 v3, v7")
    stamp()
    event("all")
    a("s_branch L_fin")

    def common():
        a(f"""v_and_b32 v2, 63, v0
        s_lshl_b32 s36, s30, 2
        s_add_u32 s36, s36, s34
        s_mov_b32 s33, {budget}
        v_mov_b32 v3, {PROG}
        """)
        if stamps: a("s_mov_b64 s[56:57], 0\ns_mov_b64 s[58:59], 0")
    nst[0] = 0
    a("L_comp:")
    common()
    a(f"""
    v_lshlrev_b32 v16, 4, v2
    s_sub_u32 s32, s32, 1
    v_and_b32 v20, 15, v2
    v_lshrrev_b32 v21, 4, v2
    v_lshrrev_b32 v22, 2, v20
    v_and_b32 v23, 3, v2
    s_lshl_b32 s38, s30, 13
    s_lshl_b32 s39, s34, 11
    s_add_u32 s38, s38, s39
    s_lshl_b32 s39, s35, 8
    s_lshl_b32 s44, s32, 6
    s_add_u32 s39, s39, s44
    s_add_u32 s38, s38, s39
    s_add_u32 s38, s38, {QB}
    v_lshl_add_u32 v12, v20, 2, s38
    s_lshl_b32 s38, s36, 11
    s_add_u32 s38, s38, s39
    s_add_u32 s38, s38, {HB}
    v_lshl_add_u32 v13, v20, 2, s38
    s_lshl_b32 s38, s30, 16
    s_lshl_b32 s39, s31, 9
    s_add_u32 s38, s38, s39
    s_lshl_b32 s45, s32, 7
    s_add_u32 s38, s38, s45
    s_add_u32 s38, s38, {OB}
    v_lshlrev_b32 v46, 14, v21
    v_lshl_add_u32 v46, v20, 3, v46
    v_add_u32 v46, s38, v46
    s_waitcnt lgkmcnt(0)
    global_load_dword v125, v12, s[28:29] sc1
    global_load_dword v125, v13, s[28:29] sc1
    {"global_load_dword v114, v46, s[28:29] sc1" if opre in (0, 3) else ""}
    """)
    a(f"""
    s_add_u32 s26, s28, {DL}
    s_addc_u32 s27, s29, 0
    s_lshl_b32 s38, s32, 1
    v_lshrrev_b32 v7, 1, v23
    v_add_u32 v4, s38, v7
    v_and_b32 v5, 2, v22
    v_xor_b32 v4, v4, v5
    v_lshlrev_b32 v4, 4, v4
    v_and_b32 v14, 1, v23
    v_lshl_add_u32 v5, v14, 3, v4
    v_lshl_add_u32 v5, v22, 7, v5
    v_mul_u32_u24 v6, {ST}, v21
    v_add_u32 v24, v5, v6
    v_add_u32 v25, {base['o']}, v24
    s_mul_i32 s38, s32, {8*ST}
    s_add_u32 s38, s38, {base['K']}
    v_xor_b32 v4, v21, v23
    v_lshlrev_b32 v4, 4, v4
    v_lshl_add_u32 v4, v23, 8, v4
    v_mul_u32_u24 v5, {ST}, v22
    v_add3_u32 v26, v4, v5, s38
    s_lshl_b32 s38, s32, 2
    v_add_u32 v4, s38, v7
    v_lshlrev_b32 v5, 1, v22
    v_xor_b32 v4, v4, v5
    v_lshlrev_b32 v4, 4, v4
    v_lshl_add_u32 v4, v14, 3, v4
    v_lshl_add_u32 v4, v22, 8, v4
    v_xor_b32 v5, 32, v4
    v_lshlrev_b32 v6, 1, v6
    v_add_u32 v6, {base['V']}, v6
    v_add_u32 v27, v4, v6
    v_add_u32 v28, v5, v6
    v_add_u32 v44, s38, v3""")
    a(f"""v_mov_b32 v19, 0xff
    v_mov_b32 v18, 0x3b000000
    v_mov_b32 v112, v16
    v_add_u32 v16, {XN}, v16
    v_lshlrev_b32 v15, 4, v21
    s_lshl_b32 s38, s34, 8
    s_add_u32 s38, s38, {XN}
    v_add_u32 v17, s38, v15""")
    stamp()
    a("s_barrier")
    stamp()
    a("ds_read_b128 v[8:11], v112\ns_waitcnt lgkmcnt(0)")
    for i in range(4):
        a(f"v_lshlrev_b32 v{32+2*i}, 16, v{8+i}\nv_and_b32 v{33+2*i}, 0xffff0000, v{8+i}")
    a("s_mov_b32 s55, 0\nL_ln:")
    a("""v_pk_mul_f32 v[40:41], v[32:33], v[32:33]
    v_pk_add_f32 v[4:5], v[32:33], v[34:35]
    v_pk_fma_f32 v[40:41], v[34:35], v[34:35], v[40:41]
    v_pk_add_f32 v[6:7], v[36:37], v[38:39]
    v_pk_fma_f32 v[40:41], v[36:37], v[36:37], v[40:41]
    v_pk_add_f32 v[4:5], v[4:5], v[6:7]
    v_pk_fma_f32 v[40:41], v[38:39], v[38:39], v[40:41]
    v_add_f32 v4, v4, v5
    v_add_f32 v5, v40, v41
    s_nop 0""")
    for d in ("row_shr:1", "row_shr:2", "row_shr:4", "row_shr:8"):
        a(f"""v_add_f32_dpp v4, v4, v4 {d} row_mask:0xf bank_mask:0xf bound_ctrl:1
        v_add_f32_dpp v5, v5, v5 {d} row_mask:0xf bank_mask:0xf bound_ctrl:1
        s_nop 0""")
    a(f"""v_add_f32_dpp v4, v4, v4 row_bcast:15 row_mask:0xa bank_mask:0xf
    v_add_f32_dpp v5, v5, v5 row_bcast:15 row_mask:0xa bank_mask:0xf
    s_nop 0
    v_add_f32_dpp v4, v4, v4 row_bcast:31 row_mask:0xc bank_mask:0xf
    v_add_f32_dpp v5, v5, v5 row_bcast:31 row_mask:0xc bank_mask:0xf
    s_nop 0
    v_readlane_b32 s38, v4, 63
    v_readlane_b32 s39, v5, 63
    s_nop 0
    v_mul_f32 v4, s38, v18
    v_mul_f32 v5, s39, v18
    v_fma_f32 v5, -v4, v4, v5
    v_max_f32 v5, 0, v5
    v_cvt_pk_bf16_f32 v4, v4, v5
    v_and_b32 v5, 0xffff0000, v4
    v_lshlrev_b32 v4, 16, v4
    v_add_f32 v5, 0x3727c5ac, v5
    v_cvt_pk_bf16_f32 v5, v5, v5
    v_and_b32 v5, 0xffff0000, v5
    v_sqrt_f32 v6, v5""")
    for i in range(4):
        a(f"v_pk_add_f32 v[{32+2*i}:{33+2*i}], v[{32+2*i}:{33+2*i}], v[4:5] op_sel_hi:[1,0] neg_lo:[0,1] neg_hi:[0,1]")
    a(f"""v_cvt_pk_bf16_f32 v6, v6, v6
    v_and_b32 v6, 0xffff0000, v6
    v_rcp_f32 v6, v6""")
    for i in range(4):
        a(f"v_cvt_pk_bf16_f32 v{40+i}, v{32+2*i}, v{33+2*i}")
    for i in range(4):
        a(f"v_lshlrev_b32 v{32+2*i}, 16, v{40+i}\nv_and_b32 v{33+2*i}, 0xffff0000, v{40+i}")
    for i in range(4):
        a(f"v_pk_mul_f32 v[{32+2*i}:{33+2*i}], v[{32+2*i}:{33+2*i}], v[6:7] op_sel_hi:[1,0]")
    for i in range(4):
        a(f"v_cvt_pk_bf16_f32 v{40+i}, v{32+2*i}, v{33+2*i}")
    a("""ds_write_b128 v16, v[40:43]
    s_cmp_lg_u32 s55, 0
    s_cbranch_scc1 L_ln2""")
    for t in range(4):
        a(f"ds_read_b128 v[{48+4*t}:{51+4*t}], v17 offset:{64*t}")
    for i in range(4):
        a(f"v_lshlrev_b32 v{32+2*i}, 16, v{40+i}\nv_and_b32 v{33+2*i}, 0xffff0000, v{40+i}")
    stamp()
    a(f"""s_lshl_b32 s38, s35, 7
    s_add_u32 s38, s38, {YN}
    v_add_u32 v17, s38, v15
    v_add_u32 v16, 1024, v16
    s_lshl_b32 s38, s30, 13
    s_lshl_b32 s39, s32, 9
    s_add_u32 s38, s38, s39
    s_add_u32 s38, s38, {QB}
    v_lshl_add_u32 v8, v2, 3, s38
    v_add_u32 v9, 4096, v8
    s_mul_i32 s39, s32, 288
    s_add_u32 s39, s39, {QL}
    v_lshl_add_u32 v10, v2, 2, s39
    v_mul_u32_u24 v11, 288, v23
    v_add_u32 v11, v11, v15
    v_add_u32 v11, {QL}, v11
    s_add_u32 s38, s45, {SL}
    v_mul_u32_u24 v47, 576, v23
    v_add3_u32 v47, v47, v15, s38
    v_mul_u32_u24 v115, 576, v22
    v_lshl_add_u32 v115, v23, 7, v115
    v_lshl_add_u32 v115, v21, 5, v115
    v_add_u32 v115, {SL}, v115
    s_lshl_b32 s38, s36, 14
    s_add_u32 s38, s38, s45
    s_add_u32 s38, s38, {OB}
    v_lshrrev_b32 v6, 3, v2
    v_and_b32 v5, 7, v2
    v_lshlrev_b32 v116, 11, v6
    v_lshl_add_u32 v116, v5, 4, v116
    v_add_u32 v116, s38, v116
    s_add_u32 s38, s44, {AL}
    v_mul_u32_u24 v117, 288, v6
    v_lshl_add_u32 v117, v5, 2, v117
    v_add_u32 v117, s38, v117
    v_mov_b32 v118, 0x0c0c0400
    v_mov_b32 v6, 0x04000c0c
    v_cmp_eq_u32 vcc, 1, v14
    v_mul_u32_u24 v119, 288, v5
    v_add_u32 v119, v119, v15
    v_cndmask_b32 v118, v118, v6, vcc
    v_add_u32 v119, {AL}, v119
    v_add_u32 v120, {HL}, v15
    s_lshl_b32 s38, s35, 14
    s_lshl_b32 s39, s36, 9
    s_add_u32 s38, s38, s39
    s_add_u32 s38, s38, s45
    s_add_u32 s38, s38, {FB}
    v_lshl_add_u32 v121, v20, 3, s38
    s_lshl_b32 s52, s32, 3
    s_add_u32 s52, s52, {idx['K'] + 8}""")
    l = lab("wt")
    a(f"{l}:\nds_read_b64 v[4:5], v3 offset:{256+48}")
    tmo()
    a(f"""s_waitcnt lgkmcnt(0)
    v_cmp_eq_u32 vcc, 0, v5
    s_cbranch_vccnz {l}
    v_readfirstlane_b32 s40, v4
    v_lshlrev_b32 v122, 3, v23
    v_lshrrev_b32 v29, v122, v4
    v_lshlrev_b32 v5, 4, v14
    v_lshrrev_b32 v30, v5, v4
    v_lshrrev_b32 v31, 8, v30
    s_getreg_b32 s38, hwreg(HW_REG_XCC_ID, 0, 4)
    s_lshr_b32 s42, s40, 16
    v_mul_u32_u24 v5, s38, v14
    s_xor_b32 s42, s42, s38
    v_xor_b32 v113, v30, v5
    """)
    wait_prog(idx['q'] + 16)
    stamp()
    event('wq')
    for t in range(4):
        for rd in range(2):
            a(f"ds_read_b64_tr_b16 v[{72+4*t+2*rd}:{73+4*t+2*rd}], v24 offset:{base['q'] + t*4*ST + rd*512}")
    for t in range(4):
        c = "0" if t == 0 else "v[4:7]"
        a(f"s_waitcnt lgkmcnt({lgk(6-2*t)})\nv_mfma_f32_16x16x32_bf16 v[4:7], v[{48+4*t}:{51+4*t}], v[{72+4*t}:{75+4*t}], {c}")
    a(f"""s_mov_b64 exec, 0xffff
    s_mov_b32 s55, 1
    s_nop 5
    v_bfi_b32 v123, v19, v29, v4
    global_store_dword v12, v123, s[28:29] {ast}
    s_mov_b64 exec, -1""")
    stamp()
    def qissue(r):
        a(f"""global_load_dwordx2 v[{r}:{r+1}], v8, s[28:29] sc1
        global_load_dwordx2 v[{r+2}:{r+3}], v8, s[28:29] offset:2048 sc1
        global_load_dwordx2 v[{r+4}:{r+5}], v9, s[28:29] sc1
        global_load_dwordx2 v[{r+6}:{r+7}], v9, s[28:29] offset:2048 sc1""")
        attempts(0)
    def qcheck(r):
        a(f"v_xor_b32 v4, v{r}, v30")
        for i in range(1, 8):
            a(f"v_bitop3_b32 v4, v4, v{r+i}, v{30 + (i & 1)} bitop3:0xf6")
        a(f"""v_and_b32 v4, v19, v4
        v_cmp_ne_u32 vcc, 0, v4
        v_pk_add_f32 v[40:41], v[{r}:{r+1}], v[{r+2}:{r+3}]
        v_pk_add_f32 v[42:43], v[{r+4}:{r+5}], v[{r+6}:{r+7}]""")
    def qhB():
        a(f"""s_mov_b64 exec, 0xffff
        global_store_dword v12, v123, s[26:27] sc1
        {"" if late1 else "global_store_dword v13, v124, s[26:27] sc1"}
        s_mov_b64 exec, -1""")
    def ohB():
        a("global_store_dwordx2 v46, v[126:127], s[26:27] sc1")
        if late1:
            a(f"""s_mov_b64 exec, 0xffff
            global_store_dword v13, v124, s[26:27] sc1
            s_mov_b64 exec, -1""")
    qissue(128)
    a(f"""s_cmp_lt_u32 s36, 28
    s_cbranch_scc1 L_ln
    s_branch L_nomlp1""")
    pad(3, "L_pad4", jump=False)
    def mlp1():
        a(f"""ds_read_b128 v[64:67], v17
        ds_read_b128 v[68:71], v17 offset:64""")
        wait_prog(idx['1'] + 8)
        vb, ob = (24, base['1']) if base['1'] + 8 * ST < 65536 else (112, 0)
        for t in range(2):
            for rd in range(2):
                a(f"ds_read_b64_tr_b16 v[{72+4*t+2*rd}:{73+4*t+2*rd}], v{vb} offset:{ob + t*4*ST + rd*512}")
        a(f"""s_waitcnt lgkmcnt(0)
        v_mfma_f32_16x16x32_bf16 v[4:7], v[64:67], v[72:75], 0
        v_mfma_f32_16x16x32_bf16 v[4:7], v[68:71], v[76:79], v[4:7]
        s_mov_b64 exec, 0xffff
        s_nop 6
        v_bfi_b32 v124, v19, v29, v4
        global_store_dword v13, v124, s[28:29] {ast}
        s_mov_b64 exec, -1""")
    a("L_ln2:")
    if not late1: mlp1()
    a(f"L_nomlp1:\nv_add_u32 v112, {base['1']}, v24")
    stamp()
    qissue(136)
    if opre == 1: a("global_load_dword v114, v46, s[28:29] sc1")
    a(f"""ds_read_b32 v4, v3
    s_mov_b32 s47, {KSW // 3}
    s_waitcnt lgkmcnt(0)
    v_readfirstlane_b32 s53, v4
    s_add_u32 s53, s53, {qstag}
    s_min_u32 s53, s53, {NL}""")
    wait_prog("s53")
    a("L_gq:")
    qissue(104)
    tmo()
    a("s_waitcnt vmcnt(8)" if opre != 1 else "s_waitcnt vmcnt(8)")
    qcheck(128)
    a("s_cbranch_vccz L_gqok")
    a(f"""s_sub_u32 s47, s47, 1
    s_cbranch_scc0 L_gq2
    v_add_u32 v8, {DL}, v8
    v_add_u32 v9, {DL}, v9""")
    qhB()
    a("L_gq2:")
    qissue(128)
    a("s_waitcnt vmcnt(8)")
    qcheck(136)
    a("s_cbranch_vccz L_gqok")
    qissue(136)
    a("s_waitcnt vmcnt(8)")
    qcheck(104)
    a("s_cbranch_vccnz L_gq")
    a(f"""L_gqok:
    v_pk_add_f32 v[40:41], v[40:41], v[42:43]
    v_mov_b32 v5, 1
    v_cvt_pk_bf16_f32 v40, v40, v41
    ds_write_b32 v10, v40
    ds_write_b32 v44, v5 offset:256""")
    stamp()
    event('qgot')
    qhB()
    a(f"""L_wk:
    ds_read_b32 v40, v3
    ds_read_b128 v[4:7], v3 offset:256""")
    for t in range(4):
        a(f"ds_read_b128 v[{48+4*t}:{51+4*t}], v11 offset:{64*t}")
    tmo()
    a(f"""s_waitcnt lgkmcnt({lgk(4)})
    v_bitop3_b32 v4, v4, v5, v6 bitop3:0x80
    v_cmp_gt_u32 s[60:61], s52, v40
    v_and_b32 v4, v4, v7
    v_cmp_eq_u32 vcc, 0, v4
    s_or_b64 s[60:61], vcc, s[60:61]
    s_cbranch_scc1 L_wk""")
    for t in range(4):
        for u in range(2):
            r = 72 + 16*u + 4*t
            a(f"ds_read_b128 v[{r}:{r+3}], v26 offset:{u*4*ST + t*64}")
    for t in range(4):
        for u in range(2):
            c = "0" if t == 0 else f"v[{32+4*u}:{35+4*u}]"
            a(f"s_waitcnt lgkmcnt({lgk(7-2*t-u)})")
            a(f"v_mfma_f32_16x16x32_bf16 v[{32+4*u}:{35+4*u}], v[{72+16*u+4*t}:{75+16*u+4*t}], v[{48+4*t}:{51+4*t}], {c}")
    SC = 0x3e0293ee
    a(f"""s_mov_b32 exec_lo, 0x000f000f
    s_mov_b32 exec_hi, 0x000f000f
    v_mov_b32 v5, 1
    s_mov_b32 s46, {SC}
    s_nop 3
    ds_write_b128 v47, v[32:35]
    ds_write_b128 v47, v[36:39] offset:64
    ds_write_b32 v44, v5 offset:272
    s_mov_b64 exec, -1
    v_mov_b32 v64, 0x3f803f80
    v_mov_b32 v65, v64
    v_mov_b32 v66, v64
    v_mov_b32 v67, v64""")
    stamp()
    if opre in (2, 3): a("global_load_dword v114, v46, s[28:29] sc1")
    pad(4, "L_pad5")
    def vread(t, k):
        ntile, rd = k >> 1, k & 1
        r = 72 + 8*t + 4*ntile + 2*rd
        return f"ds_read_b64_tr_b16 v[{r}:{r+1}], v{27+ntile} offset:{t*8*ST + rd*ST}"
    a(f"""L_ws:
    ds_read_b128 v[4:7], v3 offset:272
    ds_read_b32 v40, v3
    ds_read_b128 v[32:35], v115
    ds_read_b128 v[36:39], v115 offset:16""")
    tmo()
    a(f"""s_waitcnt lgkmcnt({lgk(2)})
    v_bitop3_b32 v4, v4, v5, v6 bitop3:0x80
    v_readfirstlane_b32 s53, v40
    v_and_b32 v4, v4, v7
    v_cmp_eq_u32 vcc, 0, v4
    s_cbranch_vccnz L_ws
    s_waitcnt lgkmcnt(0)
    v_max3_f32 v4, v32, v33, v34
    v_max3_f32 v5, v35, v36, v37
    v_max3_f32 v4, v4, v38, v39
    v_max_f32 v4, v4, v5
    {vread(0, 0)}
    {vread(0, 1)}
    v_max_f32_dpp v4, v4, v4 quad_perm:[1,0,3,2] row_mask:0xf bank_mask:0xf
    {vread(0, 2)}
    {vread(0, 3)}
    v_max_f32_dpp v4, v4, v4 quad_perm:[2,3,0,1] row_mask:0xf bank_mask:0xf
    v_mov_b32 v5, v4
    {vread(1, 0)}
    {vread(1, 1)}
    v_permlane16_swap_b32 v4, v5
    v_max_f32 v4, v4, v5
    v_mov_b32 v5, v4
    {vread(1, 2)}
    {vread(1, 3)}
    v_permlane32_swap_b32 v4, v5
    v_max_f32 v4, v4, v5
    v_mul_f32 v6, s46, v4""")
    for i in range(8):
        a(f"v_fma_f32 v{32+i}, v{32+i}, s46, -v6")
        if i == 0: a("ds_bpermute_b32 v45, v15, v6")
    for i in range(8):
        a(f"v_exp_f32 v{32+i}, v{32+i}\n{vread(2 + (i >> 2), i & 3)}")
    for i in range(4):
        a(f"v_cvt_pk_bf16_f32 v{40+i}, v{32+2*i}, v{33+2*i}")
    stamp()
    for t in range(4):
        for i in range(4):
            a(f"v_mov_b32_dpp v{48+4*t+i}, v{40+i} quad_perm:[{t},{t},{t},{t}] row_mask:0xf bank_mask:0xf")
            if t == 0 and i == 1: a("v_mfma_f32_16x16x32_bf16 v[68:71], v[40:43], v[64:67], 0")
        sk = lab("vs")
        a(f"s_cmpk_ge_u32 s53, {idx['V'] + 8*(t+1)}\ns_cbranch_scc1 {sk}")
        wait_prog(idx['V'] + 8*(t+1))
        for k in range(4): a(vread(t, k))
        a(f"{sk}:\ns_waitcnt lgkmcnt(0)")
        for ntile in range(2):
            c = "0" if t == 0 else f"v[{32+4*ntile}:{35+4*ntile}]"
            a(f"v_mfma_f32_16x16x32_bf16 v[{32+4*ntile}:{35+4*ntile}], v[{48+4*t}:{51+4*t}], v[{72+8*t+4*ntile}:{75+8*t+4*ntile}], {c}")
        if t == 1:
            a("""v_pk_add_f32 v[68:69], v[68:69], v[70:71]
            v_add_f32 v68, v68, v69
            v_log_f32 v5, v68
            v_rcp_f32 v6, v68
            v_add_f32 v45, v45, v5
            v_lshrrev_b32 v45, v122, v45""")
    a(f"""s_nop 6
    v_mul_f32 v32, v32, v6
    v_bfi_b32 v126, v19, v113, v32
    v_mul_f32 v36, v36, v6
    v_bfi_b32 v127, v19, v45, v36
    global_store_dwordx2 v46, v[126:127], s[28:29] {ast}""")
    stamp()
    event('opub')
    def ogather():
        if stamps: a("s_memrealtime s[94:95]")
        for i in range(4):
            a(f"global_load_dwordx4 v[{48+4*i}:{51+4*i}], v116, s[28:29] offset:{512*i} sc1")
        attempts(1)
    if late1:
        a("s_cmp_ge_u32 s36, 28\ns_cbranch_scc1 L_nomlp1b")
        mlp1()
        a("L_nomlp1b:")
    if pace_o > idx['V'] + 32: wait_prog(pace_o)
    ogather()
    stamp()
    o2 = base['2'] - base['o']
    a(f"""s_mov_b32 s47, {KSW}
    s_branch L_go1""")
    pad(5, "L_pad6", jump=False)
    a(f"""L_go:
    s_sub_u32 s47, s47, 1
    s_cbranch_scc0 L_go2
    v_add_u32 v116, {DL}, v116""")
    ohB()
    a("L_go2:")
    ogather()
    a("L_go1:")
    tmo()
    a("s_waitcnt vmcnt(0)")
    if stamps: a("s_memrealtime s[96:97]")
    a(f"""v_xor_b32 v7, s42, v50
    v_xor_b32 v4, s40, v48
    v_bitop3_b32 v7, v7, v54, s42 bitop3:0xf6
    v_bitop3_b32 v4, v4, v52, s40 bitop3:0xf6
    v_bitop3_b32 v7, v7, v58, s42 bitop3:0xf6
    v_bitop3_b32 v4, v4, v56, s40 bitop3:0xf6
    v_bitop3_b32 v7, v7, v62, s42 bitop3:0xf6
    v_bitop3_b32 v4, v4, v60, s40 bitop3:0xf6
    v_and_b32 v6, 0xf0, v7
    v_and_or_b32 v4, v4, v19, v6
    v_cmp_ne_u32 vcc, 0, v4
    v_perm_b32 v40, v51, v49, v118
    v_perm_b32 v41, v55, v53, v118
    s_cbranch_vccnz L_go
    v_perm_b32 v42, v59, v57, v118
    v_perm_b32 v43, v63, v61, v118
    v_or_b32_dpp v40, v40, v40 quad_perm:[1,0,3,2] row_mask:0xf bank_mask:0xf
    v_or_b32_dpp v41, v41, v41 quad_perm:[1,0,3,2] row_mask:0xf bank_mask:0xf
    v_or_b32_dpp v42, v42, v42 quad_perm:[1,0,3,2] row_mask:0xf bank_mask:0xf
    v_or_b32_dpp v43, v43, v43 quad_perm:[1,0,3,2] row_mask:0xf bank_mask:0xf
    v_max_f32 v5, v40, v41
    v_max3_f32 v5, v5, v42, v43
    v_and_b32 v7, 15, v7
    v_cmp_ne_u32 vcc, 0, v7
    v_max_f32_dpp v5, v5, v5 row_ror:8 row_mask:0xf bank_mask:0xf
    v_mov_b32 v6, v5
    s_nop 1
    v_permlane16_swap_b32 v5, v6
    v_max_f32 v5, v5, v6
    v_mov_b32 v6, v5
    s_nop 1
    v_permlane32_swap_b32 v5, v6
    v_max_f32 v5, v5, v6
    v_sub_f32 v40, v40, v5
    v_sub_f32 v41, v41, v5
    v_exp_f32 v40, v40
    v_sub_f32 v42, v42, v5
    v_exp_f32 v41, v41
    v_sub_f32 v43, v43, v5
    v_exp_f32 v42, v42
    v_exp_f32 v43, v43
    v_pk_mul_f32 v[32:33], v[48:49], v[40:41] op_sel_hi:[1,0]
    v_pk_mul_f32 v[34:35], v[50:51], v[40:41] op_sel_hi:[1,0]""")
    sel = {1: ("v[40:41]", "op_sel:[0,1,0] op_sel_hi:[1,1,1]"), 2: ("v[42:43]", "op_sel_hi:[1,0,1]"), 3: ("v[42:43]", "op_sel:[0,1,0] op_sel_hi:[1,1,1]")}
    for i in range(1, 4):
        w_, m_ = sel[i]
        a(f"""v_pk_fma_f32 v[32:33], v[{48+4*i}:{49+4*i}], {w_}, v[32:33] {m_}
        v_pk_fma_f32 v[34:35], v[{50+4*i}:{51+4*i}], {w_}, v[34:35] {m_}""")
    a(f"""v_cvt_pk_bf16_f32 v4, v32, v34
    v_cvt_pk_bf16_f32 v5, v33, v35
    ds_write2_b32 v117, v4, v5 offset0:0 offset1:8""")
    stamp()
    event('ogot')
    a(f"""v_pk_add_f32 v[40:41], v[40:41], v[42:43]
    v_add_f32 v40, v40, v41
    s_cbranch_vccz L_coloc""")
    ohB()
    a(f"""L_coloc:
    s_waitcnt lgkmcnt(0)
    s_barrier""")
    stamp()
    for t in range(4):
        a(f"ds_read_b128 v[{48+4*t}:{51+4*t}], v119 offset:{64*t}")
        for rd in range(2):
            a(f"ds_read_b64_tr_b16 v[{72+4*t+2*rd}:{73+4*t+2*rd}], v25 offset:{t*4*ST + rd*512}")
        if t == 0: a("v_add_f32_dpp v40, v40, v40 row_ror:8 row_mask:0xf bank_mask:0xf\nv_mov_b32 v41, v40")
        if t == 1: a("v_permlane16_swap_b32 v40, v41\nv_add_f32 v40, v40, v41\nv_mov_b32 v41, v40")
        if t == 2: a("v_permlane32_swap_b32 v40, v41\nv_add_f32 v40, v40, v41\nv_rcp_f32 v40, v40")
    a(f"s_waitcnt lgkmcnt({lgk(9)})\nv_mfma_f32_16x16x32_bf16 v[32:35], v[48:51], v[72:75], 0")
    for t in range(2):
        a(f"ds_read_b128 v[{64+4*t}:{67+4*t}], v120 offset:{64*t}")
        for rd in range(2):
            a(f"ds_read_b64_tr_b16 v[{88+4*t+2*rd}:{89+4*t+2*rd}], v25 offset:{o2 + t*4*ST + rd*512}")
    for t in range(1, 4):
        c = "v[32:35]"
        a(f"s_waitcnt lgkmcnt({lgk(15-3*t)})\nv_mfma_f32_16x16x32_bf16 v[32:35], v[{48+4*t}:{51+4*t}], v[{72+4*t}:{75+4*t}], {c}")
    a(f"""s_waitcnt lgkmcnt(0)
    v_mfma_f32_16x16x32_bf16 v[36:39], v[64:67], v[88:91], 0
    v_mfma_f32_16x16x32_bf16 v[36:39], v[68:71], v[92:95], v[36:39]""")
    a(f"""s_nop 4
    v_pk_add_f32 v[32:33], v[32:33], v[34:35]
    v_add_f32 v4, v32, v33
    v_add_f32 v6, v32, v33
    s_cmp_lt_u32 s36, 28
    s_cselect_b32 s38, -1, 0
    v_permlane16_swap_b32 v4, v6
    v_add_f32 v4, v4, v6
    s_mov_b64 exec, 0xffff
    v_mul_f32 v4, v4, v40
    v_and_b32 v5, s38, v36
    v_bfi_b32 v4, v19, v30, v4
    v_bfi_b32 v5, v19, v31, v5
    global_store_dwordx2 v121, v[4:5], s[28:29] {fst}
    s_mov_b64 exec, -1""")
    stamp()
    a("s_branch L_fin")

    nst[0] = 0
    a("L_aux:")
    common()
    a(f"""v_mov_b32 v4, 0
    v_lshl_add_u32 v5, v2, 2, v3
    ds_write_b32 v5, v4
    ds_write_b32 v5, v4 offset:64
    s_lshl_b32 s38, s36, 7
    v_lshl_add_u32 v6, v2, 1, s38
    s_lshl_b32 s48, s34, 3
    s_add_u32 s48, s48, s30
    s_lshl_b32 s48, s48, 2
    s_and_b32 s38, s31, 3
    s_add_u32 s48, s48, s38
    s_lshl_b32 s38, s48, 3
    v_lshrrev_b32 v20, 5, v2
    v_and_b32 v21, 1, v2
    v_lshlrev_b32 v4, 2, v20
    v_lshl_add_u32 v4, v21, 1, v4
    v_add_u32 v12, s38, v4
    s_waitcnt lgkmcnt(0)
    s_load_dword s37, s[28:29], 0
    s_cmp_ge_u32 s36, 28
    s_cbranch_scc1 L_aux0
    global_load_ushort v8, v6, s[18:19]
    L_aux0:
    global_load_ushort v9, v12, s[4:5]
    global_load_ushort v10, v12, s[22:23]""")
    stamp()
    a(f"""s_barrier
    v_mov_b32 v5, 1
    v_mov_b32 v19, 0xff
    s_lshr_b32 s38, s48, 4
    s_lshl_b32 s38, s38, 14
    s_and_b32 s39, s48, 15
    s_lshl_b32 s39, s39, 5
    s_add_u32 s38, s38, s39
    s_add_u32 s38, s38, {FB}
    v_and_b32 v22, 31, v2
    v_lshlrev_b32 v17, 9, v22
    v_lshl_add_u32 v17, v20, 4, v17
    v_add_u32 v17, s38, v17
    v_cmp_eq_u32 s[46:47], 1, v21
    s_waitcnt lgkmcnt(0)
    s_add_u32 s37, s37, 1
    s_mul_i32 s40, s37, 0x9E3779B1
    v_mov_b32 v4, s40
    ds_write_b64 v3, v[4:5] offset:{256+48}
    s_lshr_b32 s41, s40, 8
    s_lshr_b32 s42, s40, 16
    s_lshr_b32 s43, s40, 24
    v_and_b32 v4, 3, v2
    v_lshlrev_b32 v4, 3, v4
    v_lshrrev_b32 v29, v4, s40""")
    stamp()
    if fpre and not fpre_late: a("global_load_dword v40, v17, s[28:29] sc1")
    if warm: a("s_branch L_pad3\nL_auxw:")
    stamp()
    if extra_dirty:
        a(f"s_lshl_b32 s38, s2, 12\ns_add_u32 s38, s38, 0x400000\nv_lshl_add_u32 v16, v2, 4, s38")
        for i in range(extra_dirty):
            a(f"global_store_dwordx4 v16, v[32:35], s[28:29] offset:{1024*i}")
    a(f"""s_cmp_ge_u32 s36, 28
    s_cbranch_scc1 L_aux1
    s_lshl_b32 s38, s36, 11
    s_add_u32 s38, s38, {HB}
    v_lshl_add_u32 v16, v2, 2, s38
    s_mov_b32 s49, {KSW}""")
    wait_prog(pace_h)
    a(f"""L_gh:
    s_sub_u32 s49, s49, 1
    s_cselect_b32 s39, {DL}, 0
    v_add_u32 v16, s39, v16""")
    for p_ in range(8):
        a(f"global_load_dword v{32+p_}, v16, s[28:29] offset:{256*p_} sc1")
    attempts(0)
    tmo()
    a(f"""s_waitcnt vmcnt(0)
    v_xor_b32 v4, v32, v29""")
    for p_ in range(1, 8):
        a(f"v_bitop3_b32 v4, v4, v{32+p_}, v29 bitop3:0xf6")
    C1 = 0xc0135761
    C2 = 0xbdd2d3e8
    a(f"""v_and_b32 v4, v19, v4
    v_cmp_ne_u32 vcc, 0, v4
    s_cbranch_vccnz L_gh
    v_pk_add_f32 v[32:33], v[32:33], v[34:35]
    v_pk_add_f32 v[36:37], v[36:37], v[38:39]
    v_pk_add_f32 v[32:33], v[32:33], v[36:37]
    v_add_f32 v32, v32, v33
    v_cvt_pk_bf16_f32 v32, v32, v32
    v_and_b32 v32, 0xffff0000, v32
    v_lshlrev_b32 v8, 16, v8
    v_add_f32 v32, v32, v8
    v_cvt_pk_bf16_f32 v32, v32, v32
    v_and_b32 v32, 0xffff0000, v32
    v_mul_f32 v33, v32, v32
    v_mov_b32 v34, {C1}
    v_fmac_f32 v34, {C2}, v33
    v_mul_f32 v33, v34, v32
    v_exp_f32 v33, v33
    v_lshlrev_b32 v5, 1, v2
    v_add_f32 v33, 1.0, v33
    v_rcp_f32 v33, v33
    v_add_u32 v5, {HL}, v5
    v_mul_f32 v32, v32, v33
    v_cvt_pk_bf16_f32 v32, v32, v32
    ds_write_b16 v5, v32
""")
    pad(6, "L_auxw")
    a("L_aux1:")
    stamp()
    if fpre_late:
        wait_prog(72)
        a("global_load_dword v40, v17, s[28:29] sc1")
    a(f"""s_waitcnt vmcnt(0) lgkmcnt(0)
    v_lshlrev_b32 v9, 16, v9
    v_lshlrev_b32 v10, 16, v10
    s_barrier
    s_bitcmp1_b32 s31, 2
    s_cbranch_scc1 L_fin""")
    stamp()
    regs = [32 + 4 * i for i in range(nfin)]
    for r in regs[:-1]:
        a(f"global_load_dwordx4 v[{r}:{r+3}], v17, s[28:29] sc1")
    a("L_gf:")
    for k in range(nfin):
        r = regs[k]; rn = regs[(k - 1) % nfin]
        if stamps: a("s_memrealtime s[94:95]")
        a(f"global_load_dwordx4 v[{rn}:{rn+3}], v17, s[28:29] sc1")
        attempts(2)
        if k == 0: tmo()
        a(f"""s_waitcnt vmcnt({nfin-1})
        v_xor_b32 v4, s40, v{r}
        v_bitop3_b32 v4, v4, v{r+1}, s41 bitop3:0xf6
    v_bitop3_b32 v4, v4, v{r+2}, s42 bitop3:0xf6
    v_bitop3_b32 v4, v4, v{r+3}, s43 bitop3:0xf6
        v_and_b32 v4, v19, v4
        v_cmp_ne_u32 vcc, 0, v4""")
        for i in range(4):
            a(f"v_add_f32_dpp v{48+i}, v{r+i}, v{r+i} row_ror:1 row_mask:0xf bank_mask:0xf")
        a("s_cbranch_vccz L_gfok" if k < nfin - 1 else "s_cbranch_vccnz L_gf")
    a("L_gfok:")
    stamp()
    for d in (2, 4, 8):
        for i in range(4):
            a(f"v_add_f32_dpp v{48+i}, v{48+i}, v{48+i} row_ror:{d} row_mask:0xf bank_mask:0xf")
    for i in range(4):
        a(f"v_add_f32_dpp v{48+i}, v{48+i}, v{48+i} row_bcast:15 row_mask:0xa bank_mask:0xf")
    a(f"""v_cndmask_b32 v48, v48, v50, s[46:47]
    v_cndmask_b32 v49, v49, v51, s[46:47]
    v_cvt_pk_bf16_f32 v48, v48, v49
    v_and_b32 v49, 0xffff0000, v48
    v_add_f32 v49, v49, v10
    v_cvt_pk_bf16_f32 v49, v49, v49
    v_and_b32 v49, 0xffff0000, v49
    v_mul_f32 v50, 0xbfb8aa3b, v49
    v_exp_f32 v50, v50
    v_lshlrev_b32 v48, 16, v48
    v_add_f32 v50, 1.0, v50
    v_rcp_f32 v50, v50
    s_mov_b32 exec_lo, 0x00030000
    v_mul_f32 v49, v49, v50
    v_cvt_pk_bf16_f32 v49, v49, v49
    v_and_b32 v49, 0xffff0000, v49
    v_mul_f32 v48, v48, v49
    v_cvt_pk_bf16_f32 v48, v48, v48
    s_mov_b32 exec_hi, 0x00030000
    v_and_b32 v48, 0xffff0000, v48
    v_add_f32 v48, v48, v9
    v_cvt_pk_bf16_f32 v48, v48, v48
    @DIAG@
    global_store_short v12, v48, s[24:25] {outst}
    s_cmp_lg_u32 s2, 0
    s_cbranch_scc1 L_fin
    v_mov_b32 v4, 0
    v_mov_b32 v5, s37
    s_mov_b64 exec, 0x10000
    global_store_dword v4, v5, s[28:29]""")
    a("L_fin:")
    if stamps:
        a("s_memrealtime s[92:93]")
        a("s_mov_b64 exec, -1\ns_waitcnt lgkmcnt(0)\nv_mov_b32 v5, 0\nv_writelane_b32 v5, s62, 0")
        for i in range(15):
            a(f"v_writelane_b32 v5, s{64+2*i}, {i+1}")
        a(f"""v_writelane_b32 v5, s33, 17
        s_getreg_b32 s38, hwreg(HW_REG_XCC_ID)
        v_writelane_b32 v5, s38, 18
        v_writelane_b32 v5, s56, 19
        v_writelane_b32 v5, s57, 20
        v_writelane_b32 v5, s58, 21
        v_writelane_b32 v5, s94, 22
        v_writelane_b32 v5, s96, 23
        s_lshl_b32 s38, s2, 10
        s_add_u32 s38, s38, {TS_OFF}
        v_lshrrev_b32 v1, 6, v0
        v_and_b32 v2, 63, v0
        v_lshlrev_b32 v4, 7, v1
        v_lshl_add_u32 v4, v2, 2, v4
        v_add_u32 v4, s38, v4
        s_mov_b64 exec, 0xffffffff
        global_store_dword v4, v5, s[28:29]""")
    a("L_exit:")
    dg = []
    if diag:
        dg = ["L_dg:", f"{diag[0]} s[62:63]", "s_waitcnt lgkmcnt(0)", "s_sub_u32 s62, s62, s60", f"s_cmp_lt_u32 s62, {diag[1]}", "s_cbranch_scc1 L_dg"]
    if evt:
        dg = ["s_mov_b64 s[64:65], exec", "s_mov_b64 exec, -1", f"ds_read_b32 v4, v3 offset:{256+40}", "s_waitcnt lgkmcnt(0)", "v_readfirstlane_b32 s60, v4", "s_mov_b64 exec, s[64:65]",
              "L_dg:", "s_memrealtime s[62:63]", "s_waitcnt lgkmcnt(0)", "s_sub_u32 s62, s62, s60", f"s_cmp_lt_u32 s62, {evt[1]}", "s_cbranch_scc1 L_dg"]
    i_ = L.index("@DIAG@"); L[i_:i_+1] = dg
    body = "\n".join(("" if x.endswith(":") else "    ") + x for x in L)
    return f"""{HEADER}; @launch grid=(256,1,1) block=(384,1,1) lds={LDS_TOTAL}
.amdgcn_target "amdgcn-amd-amdhsa--gfx950"
.text
.globl {KN}_kernel
.p2align 8
.type {KN}_kernel,@function
{KN}_kernel:
{body}
    s_endpgm
.section .rodata,"a"
.p2align 6
.amdhsa_kernel {KN}_kernel
  .amdhsa_next_free_vgpr 144
  .amdhsa_next_free_sgpr 98
  .amdhsa_accum_offset 144
  .amdhsa_group_segment_fixed_size 0
  .amdhsa_kernarg_size 104
  .amdhsa_user_sgpr_count 2
  .amdhsa_user_sgpr_kernarg_segment_ptr 1
  .amdhsa_system_sgpr_workgroup_id_x 1
.end_amdhsa_kernel
"""
if __name__ == "__main__":
    import argparse, json
    ap = argparse.ArgumentParser()
    ap.add_argument("out"); ap.add_argument("--kw", default="{}")
    x = ap.parse_args()
    open(x.out, "w").write(gen(**json.loads(x.kw)))
```

```python
import sys
KN = "recurrent_scan__sliding_block_cached__mixer_channel_mlp__decode"
HEADER = open("cdna_kernels/%s.s.ref" % KN).read().split("; Override launch")[0]

ST = 1088
QB, HB, OB, FB = 0x10000, 0x20000, 0x40000, 0xC0000
DL = 0x100000
TS_OFF = 0x8000000
C_ = [1, 2, 3, 4]
STAMPS = {'wq': (C_, 4), 'qgot': (C_, 7), 'smax': (C_, 9), 'opub': (C_, 10), 'all': ([0], 9), 'ogot': (C_, 12), 'hdone': ([5], 4), 'fpub': (C_, 14), 'fgot': ([5], 6)}
WAVE_GROUPS = {'loader': [0], 'comp': [1, 2, 3, 4], 'aux': [5]}

def gen(W=None, nt="nt", stamps=False, budget=1000000, pace_h=56, KSW=64, warm=True, qstag=12, nfin=1, extra_dirty=0, pace_o=88, noB=False, diag=None, rot=(3, 1), fpre=True, fst="sc1", opre=2, fpre_late=False, ast="", outst="", unq=2, late1=False, evt=None, light=7):
    order = "qKV1o2" if late1 else "q1KVo2"
    Wd = {"1": 20, "K": 20, "V": 22, "o": 16, "2": 12}
    if isinstance(W, int): Wd = {k: W for k in Wd}
    elif W: Wd.update(W)
    pol = {t: nt for t in order} if isinstance(nt, str) else {t: nt.get(t, "") for t in order}
    L = []
    def a(s):
        for x in s.split("\n"):
            x = x.strip()
            if x: L.append(x)
    cnt = {"q": 16, "1": 8, "K": 32, "V": 32, "o": 16, "2": 8}
    idx = {}; p = 0
    for t in order:
        idx[t] = p; p += cnt[t]
    NL = p
    base = {t: (idx[t] + 1) * ST for t in order}
    END = (NL + 1) * ST
    PROG = END
    FLG = PROG + 256
    XN = FLG + 64
    YN = XN + 1024
    QL = YN + 1024
    SL = QL + 4 * 288
    AL = SL + 4 * 576
    HL = AL + 8 * 288
    LDS_TOTAL = HL + 128
    assert LDS_TOTAL <= 163840
    nst = [0]
    def stamp():
        if stamps:
            a(f"s_memrealtime s[{64+2*nst[0]}:{65+2*nst[0]}]")
        nst[0] += 1
        assert nst[0] <= 15
    def lgk(n): return 0 if stamps else n
    def event(name):
        if evt and evt[0] == name:
            a(f"""s_memrealtime s[62:63]
            v_mov_b32 v4, {FLG + 40}
            s_waitcnt lgkmcnt(0)
            v_mov_b32 v5, s62
            ds_max_u32 v4, v5
            s_waitcnt lgkmcnt(0)""")
    uid = [0]
    def lab(p):
        uid[0] += 1
        return f"L_{p}{uid[0]}"
    def tmo(padn=None):
        a("s_sub_u32 s33, s33, 1")
        if padn and warm: a(f"L_pad{padn}:")
        a("s_cbranch_scc1 L_fin")
    def pad(n, target, jump=True):
        if warm:
            if jump: a(f"s_branch L_po{n}")
            a(f"L_pad{n}:\ns_branch {target}")
            if jump: a(f"L_po{n}:")
    def wait_prog(th):
        l = lab("wp")
        a(f"{l}:\nds_read_b32 v4, v3")
        tmo()
        a(f"""s_waitcnt lgkmcnt(0)
        v_cmp_gt_u32 vcc, {th}, v4
        s_cbranch_vccnz {l}""")
    def wait_flags(off, padn=None):
        l = lab("wf")
        a(f"{l}:\nds_read_b128 v[4:7], v3 offset:{256+off}")
        tmo(padn)
        a(f"""s_waitcnt lgkmcnt(0)
        v_bitop3_b32 v4, v4, v5, v6 bitop3:0x80
        v_and_b32 v4, v4, v7
        v_cmp_eq_u32 vcc, 0, v4
        s_cbranch_vccnz {l}""")
    def wait_flag1(off):
        l = lab("w1")
        a(f"{l}:\nds_read_b32 v4, v3 offset:{256+off}")
        tmo()
        a(f"""s_waitcnt lgkmcnt(0)
        v_cmp_eq_u32 vcc, 0, v4
        s_cbranch_vccnz {l}""")
    def attempts(i):
        if stamps: a(f"s_add_u32 s{56+i}, s{56+i}, 1")

    if diag: a(f"{diag[0]} s[60:61]")
    if stamps: a("s_memrealtime s[62:63]")
    a(f"""
    s_load_dwordx16 s[4:19], s[0:1], 0
    s_load_dwordx8 s[20:27], s[0:1], 64
    s_load_dwordx2 s[28:29], s[0:1], 96
    v_readfirstlane_b32 s32, v0
    s_lshr_b32 s31, s2, 3
    s_cmp_ge_u32 s31, 32
    s_cbranch_scc1 L_exit
    s_and_b32 s30, s2, 7
    s_lshr_b32 s34, s31, 3
    s_and_b32 s35, s31, 7
    s_lshr_b32 s32, s32, 6
""")
    if warm: a("s_cmp_eq_u32 s32, 1\ns_cbranch_scc1 L_pad1")
    a(f"s_cmp_eq_u32 s32, 5\ns_cbranch_scc1 L_aux\ns_cmp_lg_u32 s32, 0\ns_cbranch_scc1 L_comp")
    a(f"""
    v_lshrrev_b32 v4, 3, v0
    v_and_b32 v5, 7, v0
    v_and_b32 v6, 2, v4
    v_xor_b32 v5, v5, v6
    v_lshlrev_b32 v5, 4, v5
    s_lshl_b32 s37, s34, 20
    s_lshl_b32 s38, s30, 10
    s_lshl_b32 s39, s35, 7
    s_add_u32 s37, s37, s38
    s_add_u32 s37, s37, s39
    v_lshl_add_u32 v10, v4, 13, v5
    v_add_u32 v10, s37, v10
    s_movk_i32 s50, {ST}
    s_lshl_b32 s51, 1, 16
    s_mov_b32 m0, 0
    v_lshlrev_b32 v9, 4, v0
    s_setprio 3
    s_waitcnt lgkmcnt(0)
    """)
    stamp()
    a("global_load_lds_dwordx4 v9, s[4:5]\ns_add_u32 m0, m0, s50\ns_nop 0")
    a("L_ldq:")
    for i in range(unq):
        a(f"""global_load_lds_dwordx4 v10, s[10:11] {pol['q']}
        s_add_u32 m0, m0, s50
        v_add_u32 v10, s51, v10""")
    a(f"""s_cmpk_lt_u32 m0, {17*ST}
    s_cbranch_scc1 L_ldq""")
    stamp()
    a(f"""s_lshl_b32 s36, s30, 2
    s_add_u32 s36, s36, s34
    s_cmp_ge_u32 s30, {max(light, 1)}""")
    if warm: a("s_branch L_po1\n.p2align 8,,64\nL_pad1:\ns_branch L_comp\nL_po1:")
    a(f"""s_cselect_b32 s46, 4, 0
    s_sub_u32 s46, s36, s46
    s_cmp_lg_u32 s30, {light}
    s_cselect_b64 s[48:49], -1, 1
    v_mov_b32 v3, {PROG}
    v_lshl_add_u32 v3, v0, 2, v3""")
    info = {"1": (11, 16), "K": (12, 6), "V": (13, 8), "o": (14, 12), "2": (15, 20)}
    setup = {
        "1": f"""s_mul_i32 s37, s35, 64*3584
        s_lshl_b32 s38, s46, 7
        s_add_u32 s37, s37, s38
        v_mul_u32_u24 v11, 3584, v4
        v_add3_u32 v11, v11, v5, s37
        s_movk_i32 s51, 28672""",
        "K": f"""s_lshl_b32 s37, s30, 23
        s_lshl_b32 s38, s31, 15
        s_add_u32 s37, s37, s38
        s_add_u32 s47, s37, 0x700000
        v_lshrrev_b32 v8, 4, v0
        v_and_b32 v9, 15, v0
        v_xor_b32 v6, v9, v8
        v_lshlrev_b32 v6, 4, v6
        v_lshl_add_u32 v12, v8, 8, v6
        s_mul_i32 s37, s31, {rot[0]}
        s_mul_i32 s38, s30, {rot[1]}
        s_add_u32 s37, s37, s38
        s_and_b32 s37, s37, 7
        s_lshl_b32 s37, s37, 12
        s_add_u32 s45, s47, s37
        v_add_u32 v12, s45, v12
        v_mov_b32 v16, 0x7fff
        s_movk_i32 s51, 1024""",
        "V": f"""v_lshlrev_b32 v6, 1, v8
        v_xor_b32 v6, v9, v6
        v_lshlrev_b32 v6, 4, v6
        v_lshl_add_u32 v13, v8, 8, v6
        v_add_u32 v13, s45, v13""",
        "o": f"""v_lshl_add_u32 v15, v4, 10, v5
        s_lshl_b32 s37, s36, 17
        s_add_u32 s37, s37, s39
        v_add_u32 v14, s37, v15
        s_movk_i32 s51, 8192""",
        "2": f"""s_lshl_b32 s37, s46, 16
        s_add_u32 s37, s37, s39
        v_add_u32 v15, s37, v15""",
    }
    for t in order[1:]:
        v, s = info[t]; w = Wd[t]
        r = (w - 1 - idx[t]) % 4
        first = idx[t] + r - w + 1
        a(setup[t])
        if t in "12": a("s_mov_b64 exec, s[48:49]")
        def one():
            a(f"""global_load_lds_dwordx4 v{v}, s[{s}:{s+1}] {pol[t]}
            s_add_u32 m0, m0, s50
            v_add_u32 v{v}, s51, v{v}""")
        nfree = 0
        if t == order[1]:
            nfree = min(8, max(0, w - 16)) // 4 * 4
            for i in range(nfree):
                one()
                if t in "KV" and i % 4 == 3: a(f"v_bfi_b32 v{v}, v16, v{v}, s47")
            a(f"s_waitcnt vmcnt({16 + nfree})"); stamp(); a("s_barrier")
        if nfree < cnt[t]:
            a(f"v_mov_b32 v7, {first + nfree}")
            l = lab("ld")
            a(f"{l}:")
            for i in range(4):
                a(f"s_waitcnt vmcnt({w-1})")
                if i == r: a("ds_max_i32 v3, v7")
                one()
            e = base[t] + cnt[t] * ST
            if t in "KV": a(f"v_bfi_b32 v{v}, v16, v{v}, s47")
            a(f"""v_add_u32 v7, 4, v7
            {'s_cmpk_lt_u32' if e < 65536 else 's_cmp_lt_u32'} m0, {e}
            s_cbranch_scc1 {l}""")
        if t in "12": a("s_mov_b64 exec, -1")
        stamp()
    for b in range(4, NL + 1, 4):
        if b > NL - Wd["2"] and (b <= max(idx['V'] + 32, idx['1'] + 8) or b in (NL, pace_o, pace_h)):
            a(f"v_mov_b32 v7, {b}\ns_waitcnt vmcnt({NL-b})\nds_max_i32 v3, v7")
    stamp()
    event("all")
    a("s_branch L_fin")

    def common():
        a(f"""v_and_b32 v2, 63, v0
        s_lshl_b32 s36, s30, 2
        s_add_u32 s36, s36, s34
        s_mov_b32 s33, {budget}
        v_mov_b32 v3, {PROG}
        """)
        if stamps: a("s_mov_b64 s[56:57], 0\ns_mov_b64 s[58:59], 0")
    nst[0] = 0
    a("L_comp:")
    common()
    a(f"""
    v_lshlrev_b32 v16, 4, v2
    s_sub_u32 s32, s32, 1
    v_and_b32 v20, 15, v2
    v_lshrrev_b32 v21, 4, v2
    v_lshrrev_b32 v22, 2, v20
    v_and_b32 v23, 3, v2
    s_lshl_b32 s38, s30, 13
    s_lshl_b32 s39, s34, 11
    s_add_u32 s38, s38, s39
    s_lshl_b32 s39, s35, 8
    s_lshl_b32 s44, s32, 6
    s_add_u32 s39, s39, s44
    s_add_u32 s38, s38, s39
    s_add_u32 s38, s38, {QB}
    v_lshl_add_u32 v12, v20, 2, s38
    s_lshl_b32 s38, s36, 11
    s_add_u32 s38, s38, s39
    s_add_u32 s38, s38, {HB}
    v_lshl_add_u32 v13, v20, 2, s38
    s_lshl_b32 s38, s30, 16
    s_lshl_b32 s39, s31, 9
    s_add_u32 s38, s38, s39
    s_lshl_b32 s45, s32, 7
    s_add_u32 s38, s38, s45
    s_add_u32 s38, s38, {OB}
    v_lshlrev_b32 v46, 14, v21
    v_lshl_add_u32 v46, v20, 3, v46
    v_add_u32 v46, s38, v46
    s_waitcnt lgkmcnt(0)
    global_load_dword v125, v12, s[28:29] sc1
    global_load_dword v125, v13, s[28:29] sc1
    {"global_load_dword v114, v46, s[28:29] sc1" if opre in (0, 3) else ""}
    """)
    a(f"""
    s_add_u32 s26, s28, {DL}
    s_addc_u32 s27, s29, 0
    s_lshl_b32 s38, s32, 1
    v_lshrrev_b32 v7, 1, v23
    v_add_u32 v4, s38, v7
    v_and_b32 v5, 2, v22
    v_xor_b32 v4, v4, v5
    v_lshlrev_b32 v4, 4, v4
    v_and_b32 v14, 1, v23
    v_lshl_add_u32 v5, v14, 3, v4
    v_lshl_add_u32 v5, v22, 7, v5
    v_mul_u32_u24 v6, {ST}, v21
    v_add_u32 v24, v5, v6
    v_add_u32 v25, {base['o']}, v24
    s_mul_i32 s38, s32, {8*ST}
    s_add_u32 s38, s38, {base['K']}
    v_xor_b32 v4, v21, v23
    v_lshlrev_b32 v4, 4, v4
    v_lshl_add_u32 v4, v23, 8, v4
    v_mul_u32_u24 v5, {ST}, v22
    v_add3_u32 v26, v4, v5, s38
    s_lshl_b32 s38, s32, 2
    v_add_u32 v4, s38, v7
    v_lshlrev_b32 v5, 1, v22
    v_xor_b32 v4, v4, v5
    v_lshlrev_b32 v4, 4, v4
    v_lshl_add_u32 v4, v14, 3, v4
    v_lshl_add_u32 v4, v22, 8, v4
    v_xor_b32 v5, 32, v4
    v_lshlrev_b32 v6, 1, v6
    v_add_u32 v6, {base['V']}, v6
    v_add_u32 v27, v4, v6
    v_add_u32 v28, v5, v6
    v_add_u32 v44, s38, v3""")
    a(f"""v_mov_b32 v19, 0xff
    v_mov_b32 v18, 0x3b000000
    v_mov_b32 v112, v16
    v_add_u32 v16, {XN}, v16
    v_lshlrev_b32 v15, 4, v21
    s_lshl_b32 s38, s34, 8
    s_add_u32 s38, s38, {XN}
    v_add_u32 v17, s38, v15""")
    stamp()
    a("s_barrier")
    stamp()
    a("ds_read_b128 v[8:11], v112\ns_waitcnt lgkmcnt(0)")
    for i in range(4):
        a(f"v_lshlrev_b32 v{32+2*i}, 16, v{8+i}\nv_and_b32 v{33+2*i}, 0xffff0000, v{8+i}")
    a("s_mov_b32 s55, 0\nL_ln:")
    a("""v_pk_mul_f32 v[40:41], v[32:33], v[32:33]
    v_pk_add_f32 v[4:5], v[32:33], v[34:35]
    v_pk_fma_f32 v[40:41], v[34:35], v[34:35], v[40:41]
    v_pk_add_f32 v[6:7], v[36:37], v[38:39]
    v_pk_fma_f32 v[40:41], v[36:37], v[36:37], v[40:41]
    v_pk_add_f32 v[4:5], v[4:5], v[6:7]
    v_pk_fma_f32 v[40:41], v[38:39], v[38:39], v[40:41]
    v_add_f32 v4, v4, v5
    v_add_f32 v5, v40, v41
    s_nop 0""")
    for d in ("row_shr:1", "row_shr:2", "row_shr:4", "row_shr:8"):
        a(f"""v_add_f32_dpp v4, v4, v4 {d} row_mask:0xf bank_mask:0xf bound_ctrl:1
        v_add_f32_dpp v5, v5, v5 {d} row_mask:0xf bank_mask:0xf bound_ctrl:1
        s_nop 0""")
    a(f"""v_add_f32_dpp v4, v4, v4 row_bcast:15 row_mask:0xa bank_mask:0xf
    v_add_f32_dpp v5, v5, v5 row_bcast:15 row_mask:0xa bank_mask:0xf
    s_nop 0
    v_add_f32_dpp v4, v4, v4 row_bcast:31 row_mask:0xc bank_mask:0xf
    v_add_f32_dpp v5, v5, v5 row_bcast:31 row_mask:0xc bank_mask:0xf
    s_nop 0
    v_readlane_b32 s38, v4, 63
    v_readlane_b32 s39, v5, 63
    s_nop 0
    v_mul_f32 v4, s38, v18
    v_mul_f32 v5, s39, v18
    v_fma_f32 v5, -v4, v4, v5
    v_max_f32 v5, 0, v5
    v_cvt_pk_bf16_f32 v4, v4, v5
    v_and_b32 v5, 0xffff0000, v4
    v_lshlrev_b32 v4, 16, v4
    v_add_f32 v5, 0x3727c5ac, v5
    v_cvt_pk_bf16_f32 v5, v5, v5
    v_and_b32 v5, 0xffff0000, v5
    v_sqrt_f32 v6, v5""")
    for i in range(4):
        a(f"v_pk_add_f32 v[{32+2*i}:{33+2*i}], v[{32+2*i}:{33+2*i}], v[4:5] op_sel_hi:[1,0] neg_lo:[0,1] neg_hi:[0,1]")
    a(f"""v_cvt_pk_bf16_f32 v6, v6, v6
    v_and_b32 v6, 0xffff0000, v6
    v_rcp_f32 v6, v6""")
    for i in range(4):
        a(f"v_cvt_pk_bf16_f32 v{40+i}, v{32+2*i}, v{33+2*i}")
    for i in range(4):
        a(f"v_lshlrev_b32 v{32+2*i}, 16, v{40+i}\nv_and_b32 v{33+2*i}, 0xffff0000, v{40+i}")
    for i in range(4):
        a(f"v_pk_mul_f32 v[{32+2*i}:{33+2*i}], v[{32+2*i}:{33+2*i}], v[6:7] op_sel_hi:[1,0]")
    for i in range(4):
        a(f"v_cvt_pk_bf16_f32 v{40+i}, v{32+2*i}, v{33+2*i}")
    a("""ds_write_b128 v16, v[40:43]
    s_cmp_lg_u32 s55, 0
    s_cbranch_scc1 L_ln2""")
    for t in range(4):
        a(f"ds_read_b128 v[{48+4*t}:{51+4*t}], v17 offset:{64*t}")
    for i in range(4):
        a(f"v_lshlrev_b32 v{32+2*i}, 16, v{40+i}\nv_and_b32 v{33+2*i}, 0xffff0000, v{40+i}")
    stamp()
    a(f"""s_lshl_b32 s38, s35, 7
    s_add_u32 s38, s38, {YN}
    v_add_u32 v17, s38, v15
    v_add_u32 v16, 1024, v16
    s_lshl_b32 s38, s30, 13
    s_lshl_b32 s39, s32, 9
    s_add_u32 s38, s38, s39
    s_add_u32 s38, s38, {QB}
    v_lshl_add_u32 v8, v2, 3, s38
    v_add_u32 v9, 4096, v8
    s_mul_i32 s39, s32, 288
    s_add_u32 s39, s39, {QL}
    v_lshl_add_u32 v10, v2, 2, s39
    v_mul_u32_u24 v11, 288, v23
    v_add_u32 v11, v11, v15
    v_add_u32 v11, {QL}, v11
    s_add_u32 s38, s45, {SL}
    v_mul_u32_u24 v47, 576, v23
    v_add3_u32 v47, v47, v15, s38
    v_mul_u32_u24 v115, 576, v22
    v_lshl_add_u32 v115, v23, 7, v115
    v_lshl_add_u32 v115, v21, 5, v115
    v_add_u32 v115, {SL}, v115
    s_lshl_b32 s38, s36, 14
    s_add_u32 s38, s38, s45
    s_add_u32 s38, s38, {OB}
    v_lshrrev_b32 v6, 3, v2
    v_and_b32 v5, 7, v2
    v_lshlrev_b32 v116, 11, v6
    v_lshl_add_u32 v116, v5, 4, v116
    v_add_u32 v116, s38, v116
    s_add_u32 s38, s44, {AL}
    v_mul_u32_u24 v117, 288, v6
    v_lshl_add_u32 v117, v5, 2, v117
    v_add_u32 v117, s38, v117
    v_mov_b32 v118, 0x0c0c0400
    v_mov_b32 v6, 0x04000c0c
    v_cmp_eq_u32 vcc, 1, v14
    v_mul_u32_u24 v119, 288, v5
    v_add_u32 v119, v119, v15
    v_cndmask_b32 v118, v118, v6, vcc
    v_add_u32 v119, {AL}, v119
    v_add_u32 v120, {HL}, v15
    s_lshl_b32 s38, s35, 14
    s_lshl_b32 s39, s36, 9
    s_add_u32 s38, s38, s39
    s_add_u32 s38, s38, s45
    s_add_u32 s38, s38, {FB}
    v_lshl_add_u32 v121, v20, 3, s38
    s_lshl_b32 s52, s32, 3
    s_add_u32 s52, s52, {idx['K'] + 8}""")
    l = lab("wt")
    a(f"{l}:\nds_read_b64 v[4:5], v3 offset:{256+48}")
    tmo()
    a(f"""s_waitcnt lgkmcnt(0)
    v_cmp_eq_u32 vcc, 0, v5
    s_cbranch_vccnz {l}
    v_readfirstlane_b32 s40, v4
    v_lshlrev_b32 v122, 3, v23
    v_lshrrev_b32 v29, v122, v4
    v_lshlrev_b32 v5, 4, v14
    v_lshrrev_b32 v30, v5, v4
    v_lshrrev_b32 v31, 8, v30
    s_getreg_b32 s38, hwreg(HW_REG_XCC_ID, 0, 4)
    s_lshr_b32 s42, s40, 16
    v_mul_u32_u24 v5, s38, v14
    s_xor_b32 s42, s42, s38
    v_xor_b32 v113, v30, v5
    """)
    a("; ---- q partial: xn(128 rows) x wq tile")
    wait_prog(idx['q'] + 16)
    stamp()
    event('wq')
    for t in range(4):
        for rd in range(2):
            a(f"ds_read_b64_tr_b16 v[{72+4*t+2*rd}:{73+4*t+2*rd}], v24 offset:{base['q'] + t*4*ST + rd*512}")
    for t in range(4):
        c = "0" if t == 0 else "v[4:7]"
        a(f"s_waitcnt lgkmcnt({lgk(6-2*t)})\nv_mfma_f32_16x16x32_bf16 v[4:7], v[{48+4*t}:{51+4*t}], v[{72+4*t}:{75+4*t}], {c}")
    a(f"""s_mov_b64 exec, 0xffff
    s_mov_b32 s55, 1
    s_nop 5
    v_bfi_b32 v123, v19, v29, v4
    global_store_dword v12, v123, s[28:29] {ast}
    s_mov_b64 exec, -1""")
    stamp()
    def qissue(r):
        a(f"""global_load_dwordx2 v[{r}:{r+1}], v8, s[28:29] sc1
        global_load_dwordx2 v[{r+2}:{r+3}], v8, s[28:29] offset:2048 sc1
        global_load_dwordx2 v[{r+4}:{r+5}], v9, s[28:29] sc1
        global_load_dwordx2 v[{r+6}:{r+7}], v9, s[28:29] offset:2048 sc1""")
        attempts(0)
    def qcheck(r):
        a(f"v_xor_b32 v4, v{r}, v30")
        for i in range(1, 8):
            a(f"v_bitop3_b32 v4, v4, v{r+i}, v{30 + (i & 1)} bitop3:0xf6")
        a(f"""v_and_b32 v4, v19, v4
        v_cmp_ne_u32 vcc, 0, v4
        v_pk_add_f32 v[40:41], v[{r}:{r+1}], v[{r+2}:{r+3}]
        v_pk_add_f32 v[42:43], v[{r+4}:{r+5}], v[{r+6}:{r+7}]""")
    def qhB():
        a(f"""s_mov_b64 exec, 0xffff
        global_store_dword v12, v123, s[26:27] sc1
        {"" if late1 else "global_store_dword v13, v124, s[26:27] sc1"}
        s_mov_b64 exec, -1""")
    def ohB():
        a("global_store_dwordx2 v46, v[126:127], s[26:27] sc1")
        if late1:
            a(f"""s_mov_b64 exec, 0xffff
            global_store_dword v13, v124, s[26:27] sc1
            s_mov_b64 exec, -1""")
    qissue(128)
    a(f"""s_cmp_lg_u32 s30, {light}
    s_cbranch_scc1 L_ln
    s_branch L_nomlp1""")
    pad(3, "L_pad4", jump=False)
    def mlp1():
        a(f"""ds_read_b128 v[64:67], v17
        ds_read_b128 v[68:71], v17 offset:64""")
        wait_prog(idx['1'] + 8)
        vb, ob = (24, base['1']) if base['1'] + 8 * ST < 65536 else (112, 0)
        for t in range(2):
            for rd in range(2):
                a(f"ds_read_b64_tr_b16 v[{72+4*t+2*rd}:{73+4*t+2*rd}], v{vb} offset:{ob + t*4*ST + rd*512}")
        a(f"""s_waitcnt lgkmcnt(0)
        v_mfma_f32_16x16x32_bf16 v[4:7], v[64:67], v[72:75], 0
        v_mfma_f32_16x16x32_bf16 v[4:7], v[68:71], v[76:79], v[4:7]
        s_mov_b64 exec, 0xffff
        s_nop 6
        v_bfi_b32 v124, v19, v29, v4
        global_store_dword v13, v124, s[28:29] {ast}
        s_mov_b64 exec, -1""")
    a("L_ln2:")
    if not late1: mlp1()
    a(f"L_nomlp1:\nv_add_u32 v112, {base['1']}, v24")
    stamp()
    qissue(136)
    if opre == 1: a("global_load_dword v114, v46, s[28:29] sc1")
    a(f"""ds_read_b32 v4, v3
    s_mov_b32 s47, {KSW // 3}
    s_waitcnt lgkmcnt(0)
    v_readfirstlane_b32 s53, v4
    s_add_u32 s53, s53, {qstag}
    s_min_u32 s53, s53, {NL}""")
    wait_prog("s53")
    a("L_gq:")
    qissue(104)
    tmo()
    a("s_waitcnt vmcnt(8)" if opre != 1 else "s_waitcnt vmcnt(8)")
    qcheck(128)
    a("s_cbranch_vccz L_gqok")
    a(f"""s_sub_u32 s47, s47, 1
    s_cbranch_scc0 L_gq2
    v_add_u32 v8, {DL}, v8
    v_add_u32 v9, {DL}, v9""")
    qhB()
    a("L_gq2:")
    qissue(128)
    a("s_waitcnt vmcnt(8)")
    qcheck(136)
    a("s_cbranch_vccz L_gqok")
    qissue(136)
    a("s_waitcnt vmcnt(8)")
    qcheck(104)
    a("s_cbranch_vccnz L_gq")
    a(f"""L_gqok:
    v_pk_add_f32 v[40:41], v[40:41], v[42:43]
    v_mov_b32 v5, 1
    v_cvt_pk_bf16_f32 v40, v40, v41
    ds_write_b32 v10, v40
    ds_write_b32 v44, v5 offset:256""")
    stamp()
    event('qgot')
    qhB()
    a(f"""L_wk:
    ds_read_b32 v40, v3
    ds_read_b128 v[4:7], v3 offset:256""")
    for t in range(4):
        a(f"ds_read_b128 v[{48+4*t}:{51+4*t}], v11 offset:{64*t}")
    tmo()
    a(f"""s_waitcnt lgkmcnt({lgk(4)})
    v_bitop3_b32 v4, v4, v5, v6 bitop3:0x80
    v_cmp_gt_u32 s[60:61], s52, v40
    v_and_b32 v4, v4, v7
    v_cmp_eq_u32 vcc, 0, v4
    s_or_b64 s[60:61], vcc, s[60:61]
    s_cbranch_scc1 L_wk""")
    for t in range(4):
        for u in range(2):
            r = 72 + 16*u + 4*t
            a(f"ds_read_b128 v[{r}:{r+3}], v26 offset:{u*4*ST + t*64}")
    for t in range(4):
        for u in range(2):
            c = "0" if t == 0 else f"v[{32+4*u}:{35+4*u}]"
            a(f"s_waitcnt lgkmcnt({lgk(7-2*t-u)})")
            a(f"v_mfma_f32_16x16x32_bf16 v[{32+4*u}:{35+4*u}], v[{72+16*u+4*t}:{75+16*u+4*t}], v[{48+4*t}:{51+4*t}], {c}")
    SC = 0x3e0293ee
    a(f"""s_mov_b32 exec_lo, 0x000f000f
    s_mov_b32 exec_hi, 0x000f000f
    v_mov_b32 v5, 1
    s_mov_b32 s46, {SC}
    s_nop 3
    ds_write_b128 v47, v[32:35]
    ds_write_b128 v47, v[36:39] offset:64
    ds_write_b32 v44, v5 offset:272
    s_mov_b64 exec, -1
    v_mov_b32 v64, 0x3f803f80
    v_mov_b32 v65, v64
    v_mov_b32 v66, v64
    v_mov_b32 v67, v64""")
    stamp()
    if opre in (2, 3): a("global_load_dword v114, v46, s[28:29] sc1")
    pad(4, "L_pad5")
    def vread(t, k):
        ntile, rd = k >> 1, k & 1
        r = 72 + 8*t + 4*ntile + 2*rd
        return f"ds_read_b64_tr_b16 v[{r}:{r+1}], v{27+ntile} offset:{t*8*ST + rd*ST}"
    a("; ---- softmax over the 128 keys of the chunk, P x V")
    a(f"""L_ws:
    ds_read_b128 v[4:7], v3 offset:272
    ds_read_b32 v40, v3
    ds_read_b128 v[32:35], v115
    ds_read_b128 v[36:39], v115 offset:16""")
    tmo()
    a(f"""s_waitcnt lgkmcnt({lgk(2)})
    v_bitop3_b32 v4, v4, v5, v6 bitop3:0x80
    v_readfirstlane_b32 s53, v40
    v_and_b32 v4, v4, v7
    v_cmp_eq_u32 vcc, 0, v4
    s_cbranch_vccnz L_ws
    s_waitcnt lgkmcnt(0)
    v_max3_f32 v4, v32, v33, v34
    v_max3_f32 v5, v35, v36, v37
    v_max3_f32 v4, v4, v38, v39
    v_max_f32 v4, v4, v5
    {vread(0, 0)}
    {vread(0, 1)}
    v_max_f32_dpp v4, v4, v4 quad_perm:[1,0,3,2] row_mask:0xf bank_mask:0xf
    {vread(0, 2)}
    {vread(0, 3)}
    v_max_f32_dpp v4, v4, v4 quad_perm:[2,3,0,1] row_mask:0xf bank_mask:0xf
    v_mov_b32 v5, v4
    {vread(1, 0)}
    {vread(1, 1)}
    v_permlane16_swap_b32 v4, v5
    v_max_f32 v4, v4, v5
    v_mov_b32 v5, v4
    {vread(1, 2)}
    {vread(1, 3)}
    v_permlane32_swap_b32 v4, v5
    v_max_f32 v4, v4, v5
    v_mul_f32 v6, s46, v4""")
    for i in range(8):
        a(f"v_fma_f32 v{32+i}, v{32+i}, s46, -v6")
        if i == 0: a("ds_bpermute_b32 v45, v15, v6")
    for i in range(8):
        a(f"v_exp_f32 v{32+i}, v{32+i}\n{vread(2 + (i >> 2), i & 3)}")
    for i in range(4):
        a(f"v_cvt_pk_bf16_f32 v{40+i}, v{32+2*i}, v{33+2*i}")
    stamp()
    for t in range(4):
        for i in range(4):
            a(f"v_mov_b32_dpp v{48+4*t+i}, v{40+i} quad_perm:[{t},{t},{t},{t}] row_mask:0xf bank_mask:0xf")
            if t == 0 and i == 1: a("v_mfma_f32_16x16x32_bf16 v[68:71], v[40:43], v[64:67], 0")
        sk = lab("vs")
        a(f"s_cmpk_ge_u32 s53, {idx['V'] + 8*(t+1)}\ns_cbranch_scc1 {sk}")
        l = lab("wv")
        a(f"{l}:\nds_read_b32 v4, v3")
        for k in range(4): a(vread(t, k))
        tmo()
        a(f"""s_waitcnt lgkmcnt({lgk(4)})
        v_cmp_gt_u32 vcc, {idx['V'] + 8*(t+1)}, v4
        s_cbranch_vccnz {l}""")
        a(f"{sk}:\ns_waitcnt lgkmcnt(0)")
        for ntile in range(2):
            c = "0" if t == 0 else f"v[{32+4*ntile}:{35+4*ntile}]"
            a(f"v_mfma_f32_16x16x32_bf16 v[{32+4*ntile}:{35+4*ntile}], v[{48+4*t}:{51+4*t}], v[{72+8*t+4*ntile}:{75+8*t+4*ntile}], {c}")
        if t == 1:
            a("""v_pk_add_f32 v[68:69], v[68:69], v[70:71]
            v_add_f32 v68, v68, v69
            v_log_f32 v5, v68
            v_rcp_f32 v6, v68
            v_add_f32 v45, v45, v5
            v_lshrrev_b32 v45, v122, v45""")
    a(f"""s_nop 6
    v_mul_f32 v32, v32, v6
    v_bfi_b32 v126, v19, v113, v32
    v_mul_f32 v36, v36, v6
    v_bfi_b32 v127, v19, v45, v36
    global_store_dwordx2 v46, v[126:127], s[28:29] {ast}""")
    stamp()
    event('opub')
    def ogather():
        if stamps: a("s_memrealtime s[94:95]")
        for i in range(4):
            a(f"global_load_dwordx4 v[{48+4*i}:{51+4*i}], v116, s[28:29] offset:{512*i} sc1")
        attempts(1)
    if late1:
        a(f"s_cmp_eq_u32 s30, {light}\ns_cbranch_scc1 L_nomlp1b")
        mlp1()
        a("L_nomlp1b:")
    if pace_o > idx['V'] + 32: wait_prog(pace_o)
    ogather()
    stamp()
    o2 = base['2'] - base['o']
    a(f"""s_mov_b32 s47, {KSW}
    s_branch L_go1""")
    pad(5, "L_pad6", jump=False)
    a(f"""L_go:
    s_sub_u32 s47, s47, 1
    s_cbranch_scc0 L_go2
    v_add_u32 v116, {DL}, v116""")
    ohB()
    a("L_go2:")
    ogather()
    a("L_go1:")
    tmo()
    a("s_waitcnt vmcnt(0)")
    if stamps: a("s_memrealtime s[96:97]")
    a(f"""v_xor_b32 v7, s42, v50
    v_xor_b32 v4, s40, v48
    v_bitop3_b32 v7, v7, v54, s42 bitop3:0xf6
    v_bitop3_b32 v4, v4, v52, s40 bitop3:0xf6
    v_bitop3_b32 v7, v7, v58, s42 bitop3:0xf6
    v_bitop3_b32 v4, v4, v56, s40 bitop3:0xf6
    v_bitop3_b32 v7, v7, v62, s42 bitop3:0xf6
    v_bitop3_b32 v4, v4, v60, s40 bitop3:0xf6
    v_and_b32 v6, 0xf0, v7
    v_and_or_b32 v4, v4, v19, v6
    v_cmp_ne_u32 vcc, 0, v4
    v_perm_b32 v40, v51, v49, v118
    v_perm_b32 v41, v55, v53, v118
    s_cbranch_vccnz L_go
    v_perm_b32 v42, v59, v57, v118
    v_perm_b32 v43, v63, v61, v118
    v_or_b32_dpp v40, v40, v40 quad_perm:[1,0,3,2] row_mask:0xf bank_mask:0xf
    v_or_b32_dpp v41, v41, v41 quad_perm:[1,0,3,2] row_mask:0xf bank_mask:0xf
    v_or_b32_dpp v42, v42, v42 quad_perm:[1,0,3,2] row_mask:0xf bank_mask:0xf
    v_or_b32_dpp v43, v43, v43 quad_perm:[1,0,3,2] row_mask:0xf bank_mask:0xf
    v_max_f32 v5, v40, v41
    v_max3_f32 v5, v5, v42, v43
    v_and_b32 v7, 15, v7
    v_cmp_ne_u32 vcc, 0, v7
    v_max_f32_dpp v5, v5, v5 row_ror:8 row_mask:0xf bank_mask:0xf
    v_mov_b32 v6, v5
    s_nop 1
    v_permlane16_swap_b32 v5, v6
    v_max_f32 v5, v5, v6
    v_mov_b32 v6, v5
    s_nop 1
    v_permlane32_swap_b32 v5, v6
    v_max_f32 v5, v5, v6
    v_sub_f32 v40, v40, v5
    v_sub_f32 v41, v41, v5
    v_exp_f32 v40, v40
    v_sub_f32 v42, v42, v5
    v_exp_f32 v41, v41
    v_sub_f32 v43, v43, v5
    v_exp_f32 v42, v42
    v_exp_f32 v43, v43
    v_pk_mul_f32 v[32:33], v[48:49], v[40:41] op_sel_hi:[1,0]
    v_pk_mul_f32 v[34:35], v[50:51], v[40:41] op_sel_hi:[1,0]""")
    sel = {1: ("v[40:41]", "op_sel:[0,1,0] op_sel_hi:[1,1,1]"), 2: ("v[42:43]", "op_sel_hi:[1,0,1]"), 3: ("v[42:43]", "op_sel:[0,1,0] op_sel_hi:[1,1,1]")}
    for i in range(1, 4):
        w_, m_ = sel[i]
        a(f"""v_pk_fma_f32 v[32:33], v[{48+4*i}:{49+4*i}], {w_}, v[32:33] {m_}
        v_pk_fma_f32 v[34:35], v[{50+4*i}:{51+4*i}], {w_}, v[34:35] {m_}""")
    a(f"""v_cvt_pk_bf16_f32 v4, v32, v34
    v_cvt_pk_bf16_f32 v5, v33, v35
    ds_write2_b32 v117, v4, v5 offset0:0 offset1:8""")
    stamp()
    event('ogot')
    a(f"""v_pk_add_f32 v[40:41], v[40:41], v[42:43]
    v_add_f32 v40, v40, v41
    s_cbranch_vccz L_coloc""")
    ohB()
    a(f"""L_coloc:
    s_waitcnt lgkmcnt(0)
    s_barrier""")
    stamp()
    for t in range(4):
        a(f"ds_read_b128 v[{48+4*t}:{51+4*t}], v119 offset:{64*t}")
        for rd in range(2):
            a(f"ds_read_b64_tr_b16 v[{72+4*t+2*rd}:{73+4*t+2*rd}], v25 offset:{t*4*ST + rd*512}")
        if t == 0: a("v_add_f32_dpp v40, v40, v40 row_ror:8 row_mask:0xf bank_mask:0xf\nv_mov_b32 v41, v40")
        if t == 1: a("v_permlane16_swap_b32 v40, v41\nv_add_f32 v40, v40, v41\nv_mov_b32 v41, v40")
        if t == 2: a("v_permlane32_swap_b32 v40, v41\nv_add_f32 v40, v40, v41\nv_rcp_f32 v40, v40")
    a(f"s_waitcnt lgkmcnt({lgk(9)})\nv_mfma_f32_16x16x32_bf16 v[32:35], v[48:51], v[72:75], 0")
    for t in range(2):
        a(f"ds_read_b128 v[{64+4*t}:{67+4*t}], v120 offset:{64*t}")
        for rd in range(2):
            a(f"ds_read_b64_tr_b16 v[{88+4*t+2*rd}:{89+4*t+2*rd}], v25 offset:{o2 + t*4*ST + rd*512}")
    for t in range(1, 4):
        c = "v[32:35]"
        a(f"s_waitcnt lgkmcnt({lgk(15-3*t)})\nv_mfma_f32_16x16x32_bf16 v[32:35], v[{48+4*t}:{51+4*t}], v[{72+4*t}:{75+4*t}], {c}")
    a(f"""s_waitcnt lgkmcnt(0)
    v_mfma_f32_16x16x32_bf16 v[36:39], v[64:67], v[88:91], 0
    v_mfma_f32_16x16x32_bf16 v[36:39], v[68:71], v[92:95], v[36:39]""")
    a(f"""s_nop 4
    v_pk_add_f32 v[32:33], v[32:33], v[34:35]
    v_add_f32 v4, v32, v33
    v_add_f32 v6, v32, v33
    s_cmp_lg_u32 s30, {light}
    s_cselect_b32 s38, -1, 0
    v_permlane16_swap_b32 v4, v6
    v_add_f32 v4, v4, v6
    s_mov_b64 exec, 0xffff
    v_mul_f32 v4, v4, v40
    v_and_b32 v5, s38, v36
    v_bfi_b32 v4, v19, v30, v4
    v_bfi_b32 v5, v19, v31, v5
    global_store_dwordx2 v121, v[4:5], s[28:29] {fst}
    s_mov_b64 exec, -1""")
    stamp()
    a("s_branch L_fin")

    nst[0] = 0
    a("L_aux:")
    common()
    a(f"""v_mov_b32 v4, 0
    v_lshl_add_u32 v5, v2, 2, v3
    ds_write_b32 v5, v4
    ds_write_b32 v5, v4 offset:64
    s_cmp_ge_u32 s30, {max(light, 1)}
    s_cselect_b32 s38, 4, 0
    s_sub_u32 s38, s36, s38
    s_lshl_b32 s38, s38, 7
    v_lshl_add_u32 v6, v2, 1, s38
    s_lshl_b32 s48, s34, 3
    s_add_u32 s48, s48, s30
    s_lshl_b32 s48, s48, 2
    s_and_b32 s38, s31, 3
    s_add_u32 s48, s48, s38
    s_lshl_b32 s38, s48, 3
    v_lshrrev_b32 v20, 5, v2
    v_and_b32 v21, 1, v2
    v_lshlrev_b32 v4, 2, v20
    v_lshl_add_u32 v4, v21, 1, v4
    v_add_u32 v12, s38, v4
    s_waitcnt lgkmcnt(0)
    s_load_dword s37, s[28:29], 0
    s_cmp_eq_u32 s30, {light}
    s_cbranch_scc1 L_aux0
    global_load_ushort v8, v6, s[18:19]
    L_aux0:
    global_load_ushort v9, v12, s[4:5]
    global_load_ushort v10, v12, s[22:23]""")
    stamp()
    a(f"""s_barrier
    v_mov_b32 v5, 1
    v_mov_b32 v19, 0xff
    s_lshr_b32 s38, s48, 4
    s_lshl_b32 s38, s38, 14
    s_and_b32 s39, s48, 15
    s_lshl_b32 s39, s39, 5
    s_add_u32 s38, s38, s39
    s_add_u32 s38, s38, {FB}
    v_and_b32 v22, 31, v2
    v_lshlrev_b32 v17, 9, v22
    v_lshl_add_u32 v17, v20, 4, v17
    v_add_u32 v17, s38, v17
    v_cmp_eq_u32 s[46:47], 1, v21
    s_waitcnt lgkmcnt(0)
    s_add_u32 s37, s37, 1
    s_mul_i32 s40, s37, 0x9E3779B1
    v_mov_b32 v4, s40
    ds_write_b64 v3, v[4:5] offset:{256+48}
    s_lshr_b32 s41, s40, 8
    s_lshr_b32 s42, s40, 16
    s_lshr_b32 s43, s40, 24
    v_and_b32 v4, 3, v2
    v_lshlrev_b32 v4, 3, v4
    v_lshrrev_b32 v29, v4, s40""")
    stamp()
    if fpre and not fpre_late: a("global_load_dword v40, v17, s[28:29] sc1")
    if warm: a("s_branch L_pad3\nL_auxw:")
    stamp()
    if extra_dirty:
        a(f"s_lshl_b32 s38, s2, 12\ns_add_u32 s38, s38, 0x400000\nv_lshl_add_u32 v16, v2, 4, s38")
        for i in range(extra_dirty):
            a(f"global_store_dwordx4 v16, v[32:35], s[28:29] offset:{1024*i}")
    a(f"""s_cmp_eq_u32 s30, {light}
    s_cbranch_scc1 L_aux1
    s_lshl_b32 s38, s36, 11
    s_add_u32 s38, s38, {HB}
    v_lshl_add_u32 v16, v2, 2, s38
    s_mov_b32 s49, {KSW}""")
    wait_prog(pace_h)
    a(f"""L_gh:
    s_sub_u32 s49, s49, 1
    s_cselect_b32 s39, {DL}, 0
    v_add_u32 v16, s39, v16""")
    for p_ in range(8):
        a(f"global_load_dword v{32+p_}, v16, s[28:29] offset:{256*p_} sc1")
    attempts(0)
    tmo()
    a(f"""s_waitcnt vmcnt(0)
    v_xor_b32 v4, v32, v29""")
    for p_ in range(1, 8):
        a(f"v_bitop3_b32 v4, v4, v{32+p_}, v29 bitop3:0xf6")
    C1 = 0xc0135761
    C2 = 0xbdd2d3e8
    a(f"""v_and_b32 v4, v19, v4
    v_cmp_ne_u32 vcc, 0, v4
    s_cbranch_vccnz L_gh
    v_pk_add_f32 v[32:33], v[32:33], v[34:35]
    v_pk_add_f32 v[36:37], v[36:37], v[38:39]
    v_pk_add_f32 v[32:33], v[32:33], v[36:37]
    v_add_f32 v32, v32, v33
    v_cvt_pk_bf16_f32 v32, v32, v32
    v_and_b32 v32, 0xffff0000, v32
    v_lshlrev_b32 v8, 16, v8
    v_add_f32 v32, v32, v8
    v_cvt_pk_bf16_f32 v32, v32, v32
    v_and_b32 v32, 0xffff0000, v32
    v_mul_f32 v33, v32, v32
    v_mov_b32 v34, {C1}
    v_fmac_f32 v34, {C2}, v33
    v_mul_f32 v33, v34, v32
    v_exp_f32 v33, v33
    v_lshlrev_b32 v5, 1, v2
    v_add_f32 v33, 1.0, v33
    v_rcp_f32 v33, v33
    v_add_u32 v5, {HL}, v5
    v_mul_f32 v32, v32, v33
    v_cvt_pk_bf16_f32 v32, v32, v32
    ds_write_b16 v5, v32
""")
    pad(6, "L_auxw")
    a("L_aux1:")
    stamp()
    if fpre_late:
        wait_prog(72)
        a("global_load_dword v40, v17, s[28:29] sc1")
    a(f"""s_waitcnt vmcnt(0) lgkmcnt(0)
    v_lshlrev_b32 v9, 16, v9
    v_lshlrev_b32 v10, 16, v10
    s_barrier
    s_bitcmp1_b32 s31, 2
    s_cbranch_scc1 L_fin""")
    stamp()
    regs = [32 + 4 * i for i in range(nfin)]
    for r in regs[:-1]:
        a(f"global_load_dwordx4 v[{r}:{r+3}], v17, s[28:29] sc1")
    a("L_gf:")
    for k in range(nfin):
        r = regs[k]; rn = regs[(k - 1) % nfin]
        if stamps: a("s_memrealtime s[94:95]")
        a(f"global_load_dwordx4 v[{rn}:{rn+3}], v17, s[28:29] sc1")
        attempts(2)
        if k == 0: tmo()
        a(f"""s_waitcnt vmcnt({nfin-1})
        v_xor_b32 v4, s40, v{r}
        v_bitop3_b32 v4, v4, v{r+1}, s41 bitop3:0xf6
    v_bitop3_b32 v4, v4, v{r+2}, s42 bitop3:0xf6
    v_bitop3_b32 v4, v4, v{r+3}, s43 bitop3:0xf6
        v_and_b32 v4, v19, v4
        v_cmp_ne_u32 vcc, 0, v4""")
        for i in range(4):
            a(f"v_add_f32_dpp v{48+i}, v{r+i}, v{r+i} row_ror:1 row_mask:0xf bank_mask:0xf")
        a("s_cbranch_vccz L_gfok" if k < nfin - 1 else "s_cbranch_vccnz L_gf")
    a("L_gfok:")
    stamp()
    for d in (2, 4, 8):
        for i in range(4):
            a(f"v_add_f32_dpp v{48+i}, v{48+i}, v{48+i} row_ror:{d} row_mask:0xf bank_mask:0xf")
    for i in range(4):
        a(f"v_add_f32_dpp v{48+i}, v{48+i}, v{48+i} row_bcast:15 row_mask:0xa bank_mask:0xf")
    a(f"""v_cndmask_b32 v48, v48, v50, s[46:47]
    v_cndmask_b32 v49, v49, v51, s[46:47]
    v_cvt_pk_bf16_f32 v48, v48, v49
    v_and_b32 v49, 0xffff0000, v48
    v_add_f32 v49, v49, v10
    v_cvt_pk_bf16_f32 v49, v49, v49
    v_and_b32 v49, 0xffff0000, v49
    v_mul_f32 v50, 0xbfb8aa3b, v49
    v_exp_f32 v50, v50
    v_lshlrev_b32 v48, 16, v48
    v_add_f32 v50, 1.0, v50
    v_rcp_f32 v50, v50
    s_mov_b32 exec_lo, 0x00030000
    v_mul_f32 v49, v49, v50
    v_cvt_pk_bf16_f32 v49, v49, v49
    v_and_b32 v49, 0xffff0000, v49
    v_mul_f32 v48, v48, v49
    v_cvt_pk_bf16_f32 v48, v48, v48
    s_mov_b32 exec_hi, 0x00030000
    v_and_b32 v48, 0xffff0000, v48
    v_add_f32 v48, v48, v9
    v_cvt_pk_bf16_f32 v48, v48, v48
    @DIAG@
    global_store_short v12, v48, s[24:25] {outst}
    s_cmp_lg_u32 s2, 0
    s_cbranch_scc1 L_fin
    v_mov_b32 v4, 0
    v_mov_b32 v5, s37
    s_mov_b64 exec, 0x10000
    global_store_dword v4, v5, s[28:29]""")
    a("L_fin:")
    if stamps:
        a("s_memrealtime s[92:93]")
        a("s_mov_b64 exec, -1\ns_waitcnt lgkmcnt(0)\nv_mov_b32 v5, 0\nv_writelane_b32 v5, s62, 0")
        for i in range(15):
            a(f"v_writelane_b32 v5, s{64+2*i}, {i+1}")
        a(f"""v_writelane_b32 v5, s33, 17
        s_getreg_b32 s38, hwreg(HW_REG_XCC_ID)
        v_writelane_b32 v5, s38, 18
        v_writelane_b32 v5, s56, 19
        v_writelane_b32 v5, s57, 20
        v_writelane_b32 v5, s58, 21
        v_writelane_b32 v5, s94, 22
        v_writelane_b32 v5, s96, 23
        s_lshl_b32 s38, s2, 10
        s_add_u32 s38, s38, {TS_OFF}
        v_lshrrev_b32 v1, 6, v0
        v_and_b32 v2, 63, v0
        v_lshlrev_b32 v4, 7, v1
        v_lshl_add_u32 v4, v2, 2, v4
        v_add_u32 v4, s38, v4
        s_mov_b64 exec, 0xffffffff
        global_store_dword v4, v5, s[28:29]""")
    a("L_exit:")
    dg = []
    if diag:
        dg = ["L_dg:", f"{diag[0]} s[62:63]", "s_waitcnt lgkmcnt(0)", "s_sub_u32 s62, s62, s60", f"s_cmp_lt_u32 s62, {diag[1]}", "s_cbranch_scc1 L_dg"]
    if evt:
        dg = ["s_mov_b64 s[64:65], exec", "s_mov_b64 exec, -1", f"ds_read_b32 v4, v3 offset:{256+40}", "s_waitcnt lgkmcnt(0)", "v_readfirstlane_b32 s60, v4", "s_mov_b64 exec, s[64:65]",
              "L_dg:", "s_memrealtime s[62:63]", "s_waitcnt lgkmcnt(0)", "s_sub_u32 s62, s62, s60", f"s_cmp_lt_u32 s62, {evt[1]}", "s_cbranch_scc1 L_dg"]
    i_ = L.index("@DIAG@"); L[i_:i_+1] = dg
    body = "\n".join(("" if x.endswith(":") or x.startswith(";") else "    ") + x for x in L)
    return f"""{HEADER}; @launch grid=(256,1,1) block=(384,1,1) lds={LDS_TOTAL}
; One launch, 256 workgroups (one per CU), 6 waves each. Workgroup b: h = b&7 (kv head), c = b>>3 (128-key chunk),
; hq = 4h + (c>>3), j = c&7.
.amdgcn_target "amdgcn-amd-amdhsa--gfx950"
.text
.globl {KN}_kernel
.p2align 8
.type {KN}_kernel,@function
{KN}_kernel:
{body}
    s_endpgm
.section .rodata,"a"
.p2align 6
.amdhsa_kernel {KN}_kernel
  .amdhsa_next_free_vgpr 144
  .amdhsa_next_free_sgpr 98
  .amdhsa_accum_offset 144
  .amdhsa_group_segment_fixed_size 0
  .amdhsa_kernarg_size 104
  .amdhsa_user_sgpr_count 2
  .amdhsa_user_sgpr_kernarg_segment_ptr 1
  .amdhsa_system_sgpr_workgroup_id_x 1
.end_amdhsa_kernel
"""
if __name__ == "__main__":
    import argparse, json
    ap = argparse.ArgumentParser()
    ap.add_argument("out"); ap.add_argument("--kw", default="{}")
    x = ap.parse_args()
    open(x.out, "w").write(gen(**json.loads(x.kw)))
```

```python
import sys
KN = "recurrent_scan__sliding_block_cached__mixer_channel_mlp__decode"
HEADER = open("cdna_kernels/%s.s.ref" % KN).read().split("; Override launch")[0]

ST = 1088
QB, HB, OB, FB = 0x10000, 0x20000, 0x40000, 0xC0000
PB = 0x1C0000
DL = 0x100000
TS_OFF = 0x8000000
C_ = [1, 2, 3, 4]
STAMPS = {'wq': (C_, 4), 'qgot': (C_, 7), 'smax': (C_, 9), 'opub': (C_, 10), 'all': ([0], 9), 'ogot': (C_, 12), 'hdone': ([5], 4), 'fpub': (C_, 14), 'fgot': ([5], 6)}
WAVE_GROUPS = {'loader': [0], 'comp': [1, 2, 3, 4], 'aux': [5]}

def gen(W=None, nt="nt", stamps=False, budget=1000000, pace_h=56, KSW=64, warm=True, qstag=12, nfin=1, extra_dirty=0, pace_o=88, noB=False, diag=None, rot=(3, 1), fpre=True, fst="sc1", opre=2, fpre_late=False, ast="", outst="", unq=2, late1=False, evt=None, light=7, numa=True, force=None, race_at='gh', oracle=None, vote=True, t_store=False, t_noqB=False, t_pre2=False, t_race=False, nrace=4, t_wait=False, redonly=False, wpre=True):
    order = "qKV1o2" if late1 else "q1KVo2"
    Wd = {"1": 20, "K": 20, "V": 22, "o": 16, "2": 12}
    if isinstance(W, int): Wd = {k: W for k in Wd}
    elif W: Wd.update(W)
    pol = {t: nt for t in order} if isinstance(nt, str) else {t: nt.get(t, "") for t in order}
    L = []
    def a(s):
        for x in s.split("\n"):
            x = x.strip()
            if x: L.append(x)
    cnt = {"q": 16, "1": 8, "K": 32, "V": 32, "o": 16, "2": 8}
    idx = {}; p = 0
    for t in order:
        idx[t] = p; p += cnt[t]
    NL = p
    base = {t: (idx[t] + 1) * ST for t in order}
    END = (NL + 1) * ST
    PROG = END
    FLG = PROG + 256
    XN = FLG + 64
    YN = XN + 1024
    QL = YN + 1024
    SL = QL + 4 * 288
    AL = SL + 4 * 576
    HL = AL + 8 * 288
    LDS_TOTAL = HL + 128
    assert LDS_TOTAL <= 163840
    nst = [0]
    def stamp():
        if stamps:
            a(f"s_memrealtime s[{64+2*nst[0]}:{65+2*nst[0]}]")
        nst[0] += 1
        assert nst[0] <= 15
    def lgk(n): return 0 if stamps else n
    def event(name):
        if evt and evt[0] == name:
            a(f"""s_memrealtime s[62:63]
            v_mov_b32 v4, {FLG + 40}
            s_waitcnt lgkmcnt(0)
            v_mov_b32 v5, s62
            ds_max_u32 v4, v5
            s_waitcnt lgkmcnt(0)""")
    uid = [0]
    def lab(p):
        uid[0] += 1
        return f"L_{p}{uid[0]}"
    def tmo(padn=None):
        a("s_sub_u32 s33, s33, 1")
        if padn and warm: a(f"L_pad{padn}:")
        a("s_cbranch_scc1 L_fin")
    def pad(n, target, jump=True):
        if warm:
            if jump: a(f"s_branch L_po{n}")
            a(f"L_pad{n}:\ns_branch {target}")
            if jump: a(f"L_po{n}:")
    def wait_prog(th):
        l = lab("wp")
        a(f"{l}:\nds_read_b32 v4, v3")
        tmo()
        a(f"""s_waitcnt lgkmcnt(0)
        v_cmp_gt_u32 vcc, {th}, v4
        s_cbranch_vccnz {l}""")
    def wait_flags(off, padn=None):
        l = lab("wf")
        a(f"{l}:\nds_read_b128 v[4:7], v3 offset:{256+off}")
        tmo(padn)
        a(f"""s_waitcnt lgkmcnt(0)
        v_bitop3_b32 v4, v4, v5, v6 bitop3:0x80
        v_and_b32 v4, v4, v7
        v_cmp_eq_u32 vcc, 0, v4
        s_cbranch_vccnz {l}""")
    def wait_flag1(off):
        l = lab("w1")
        a(f"{l}:\nds_read_b32 v4, v3 offset:{256+off}")
        tmo()
        a(f"""s_waitcnt lgkmcnt(0)
        v_cmp_eq_u32 vcc, 0, v4
        s_cbranch_vccnz {l}""")
    def attempts(i):
        if stamps: a(f"s_add_u32 s{56+i}, s{56+i}, 1")

    if diag: a(f"{diag[0]} s[60:61]")
    if stamps: a("s_memrealtime s[62:63]")
    a(f"""
    s_load_dwordx16 s[4:19], s[0:1], 0
    s_load_dwordx8 s[20:27], s[0:1], 64
    s_load_dwordx2 s[28:29], s[0:1], 96
    v_readfirstlane_b32 s32, v0
    s_lshr_b32 s31, s2, 3
    s_cmp_ge_u32 s31, 32
    s_cbranch_scc1 L_exit
    s_and_b32 s30, s2, 7
    s_lshr_b32 s34, s31, 3
    s_and_b32 s35, s31, 7
    s_lshr_b32 s32, s32, 6
""")
    if warm: a("s_cmp_eq_u32 s32, 1\ns_cbranch_scc1 L_pad1")
    a(f"s_cmp_eq_u32 s32, 5\ns_cbranch_scc1 L_aux\ns_cmp_lg_u32 s32, 0\ns_cbranch_scc1 L_comp")
    a(f"""
    v_lshrrev_b32 v4, 3, v0
    v_and_b32 v5, 7, v0
    v_and_b32 v6, 2, v4
    v_xor_b32 v5, v5, v6
    v_lshlrev_b32 v5, 4, v5
    s_lshl_b32 s37, s34, 20
    s_lshl_b32 s38, s30, 10
    s_lshl_b32 s39, s35, 7
    s_add_u32 s37, s37, s38
    s_add_u32 s37, s37, s39
    v_lshl_add_u32 v10, v4, 13, v5
    v_add_u32 v10, s37, v10
    s_movk_i32 s50, {ST}
    s_lshl_b32 s51, 1, 16
    s_mov_b32 m0, 0
    v_lshlrev_b32 v9, 4, v0
    s_setprio 3
    s_waitcnt lgkmcnt(0)
    """)
    stamp()
    a("global_load_lds_dwordx4 v9, s[4:5]\ns_add_u32 m0, m0, s50\ns_nop 0")
    a("L_ldq:")
    for i in range(unq):
        a(f"""global_load_lds_dwordx4 v10, s[10:11] {pol['q']}
        s_add_u32 m0, m0, s50
        v_add_u32 v10, s51, v10""")
    a(f"""s_cmpk_lt_u32 m0, {17*ST}
    s_cbranch_scc1 L_ldq""")
    stamp()
    a(f"""s_lshl_b32 s36, s30, 2
    s_add_u32 s36, s36, s34
    s_cmp_ge_u32 s30, {max(light, 1)}""")
    if warm: a("s_branch L_po1\n.p2align 8,,64\nL_pad1:\ns_branch L_comp\nL_po1:")
    a(f"""s_cselect_b32 s46, 4, 0
    s_sub_u32 s46, s36, s46
    s_cmp_lg_u32 s30, {light}
    s_cselect_b64 s[48:49], -1, 1
    v_mov_b32 v3, {PROG}
    v_lshl_add_u32 v3, v0, 2, v3""")
    info = {"1": (11, 16), "K": (12, 6), "V": (13, 8), "o": (14, 12), "2": (15, 20)}
    setup = {
        "1": f"""s_mul_i32 s37, s35, 64*3584
        s_lshl_b32 s38, s46, 7
        s_add_u32 s37, s37, s38
        v_mul_u32_u24 v11, 3584, v4
        v_add3_u32 v11, v11, v5, s37
        s_movk_i32 s51, 28672""",
        "K": f"""s_lshl_b32 s37, s30, 23
        s_lshl_b32 s38, s31, 15
        s_add_u32 s37, s37, s38
        s_add_u32 s47, s37, 0x700000
        v_lshrrev_b32 v8, 4, v0
        v_and_b32 v9, 15, v0
        v_xor_b32 v6, v9, v8
        v_lshlrev_b32 v6, 4, v6
        v_lshl_add_u32 v12, v8, 8, v6
        s_mul_i32 s37, s31, {rot[0]}
        s_mul_i32 s38, s30, {rot[1]}
        s_add_u32 s37, s37, s38
        s_and_b32 s37, s37, 7
        s_lshl_b32 s37, s37, 12
        s_add_u32 s45, s47, s37
        v_add_u32 v12, s45, v12
        v_mov_b32 v16, 0x7fff
        s_movk_i32 s51, 1024""",
        "V": f"""v_lshlrev_b32 v6, 1, v8
        v_xor_b32 v6, v9, v6
        v_lshlrev_b32 v6, 4, v6
        v_lshl_add_u32 v13, v8, 8, v6
        v_add_u32 v13, s45, v13""",
        "o": f"""v_lshl_add_u32 v15, v4, 10, v5
        s_lshl_b32 s37, s36, 17
        s_add_u32 s37, s37, s39
        v_add_u32 v14, s37, v15
        s_movk_i32 s51, 8192""",
        "2": f"""s_lshl_b32 s37, s46, 16
        s_add_u32 s37, s37, s39
        v_add_u32 v15, s37, v15""",
    }
    for t in order[1:]:
        v, s = info[t]; w = Wd[t]
        r = (w - 1 - idx[t]) % 4
        first = idx[t] + r - w + 1
        a(setup[t])
        if t in "12": a("s_mov_b64 exec, s[48:49]")
        def one():
            a(f"""global_load_lds_dwordx4 v{v}, s[{s}:{s+1}] {pol[t]}
            s_add_u32 m0, m0, s50
            v_add_u32 v{v}, s51, v{v}""")
        nfree = 0
        if t == order[1]:
            nfree = min(8, max(0, w - 16)) // 4 * 4
            for i in range(nfree):
                one()
                if t in "KV" and i % 4 == 3: a(f"v_bfi_b32 v{v}, v16, v{v}, s47")
            a(f"s_waitcnt vmcnt({16 + nfree})"); stamp(); a("s_barrier")
        if nfree < cnt[t]:
            a(f"v_mov_b32 v7, {first + nfree}")
            l = lab("ld")
            a(f"{l}:")
            for i in range(4):
                a(f"s_waitcnt vmcnt({w-1})")
                if i == r: a("ds_max_i32 v3, v7")
                one()
            e = base[t] + cnt[t] * ST
            if t in "KV": a(f"v_bfi_b32 v{v}, v16, v{v}, s47")
            a(f"""v_add_u32 v7, 4, v7
            {'s_cmpk_lt_u32' if e < 65536 else 's_cmp_lt_u32'} m0, {e}
            s_cbranch_scc1 {l}""")
        if t in "12": a("s_mov_b64 exec, -1")
        stamp()
    for b in range(4, NL + 1, 4):
        if b > NL - Wd["2"] and (b <= max(idx['V'] + 32, idx['1'] + 8) or b in (NL, pace_o, pace_h)):
            a(f"v_mov_b32 v7, {b}\ns_waitcnt vmcnt({NL-b})\nds_max_i32 v3, v7")
    stamp()
    event("all")
    a("s_branch L_fin")

    def common():
        a(f"""v_and_b32 v2, 63, v0
        s_lshl_b32 s36, s30, 2
        s_add_u32 s36, s36, s34
        s_mov_b32 s33, {budget}
        v_mov_b32 v3, {PROG}
        """)
        if stamps: a("s_mov_b64 s[56:57], 0\ns_mov_b64 s[58:59], 0")
    nst[0] = 0
    a("L_comp:")
    common()
    a(f"""
    v_lshlrev_b32 v16, 4, v2
    s_sub_u32 s32, s32, 1
    v_and_b32 v20, 15, v2
    v_lshrrev_b32 v21, 4, v2
    v_lshrrev_b32 v22, 2, v20
    v_and_b32 v23, 3, v2
    s_lshl_b32 s38, s30, 13
    s_lshl_b32 s39, s34, 11
    s_add_u32 s38, s38, s39
    s_lshl_b32 s39, s35, 8
    s_lshl_b32 s44, s32, 6
    s_add_u32 s39, s39, s44
    s_add_u32 s38, s38, s39
    s_add_u32 s38, s38, {QB}
    v_lshl_add_u32 v12, v20, 2, s38
    s_lshl_b32 s38, s36, 11
    s_add_u32 s38, s38, s39
    s_add_u32 s38, s38, {HB}
    v_lshl_add_u32 v13, v20, 2, s38
    s_lshl_b32 s38, s30, 16
    s_lshl_b32 s39, s31, 9
    s_add_u32 s38, s38, s39
    s_lshl_b32 s45, s32, 7
    s_add_u32 s38, s38, s45
    s_add_u32 s38, s38, {OB}
    v_lshlrev_b32 v46, 14, v21
    v_lshl_add_u32 v46, v20, 3, v46
    v_add_u32 v46, s38, v46
    s_waitcnt lgkmcnt(0)
    global_load_dword v125, v12, s[28:29] sc1
    global_load_dword v125, v13, s[28:29] sc1
    {"global_load_dword v114, v46, s[28:29] sc1" if opre in (0, 3) else ""}
    """)
    a(f"""
    s_add_u32 s26, s28, {DL}
    s_addc_u32 s27, s29, 0
    s_lshl_b32 s38, s32, 1
    v_lshrrev_b32 v7, 1, v23
    v_add_u32 v4, s38, v7
    v_and_b32 v5, 2, v22
    v_xor_b32 v4, v4, v5
    v_lshlrev_b32 v4, 4, v4
    v_and_b32 v14, 1, v23
    v_lshl_add_u32 v5, v14, 3, v4
    v_lshl_add_u32 v5, v22, 7, v5
    v_mul_u32_u24 v6, {ST}, v21
    v_add_u32 v24, v5, v6
    v_add_u32 v25, {base['o']}, v24
    s_mul_i32 s38, s32, {8*ST}
    s_add_u32 s38, s38, {base['K']}
    v_xor_b32 v4, v21, v23
    v_lshlrev_b32 v4, 4, v4
    v_lshl_add_u32 v4, v23, 8, v4
    v_mul_u32_u24 v5, {ST}, v22
    v_add3_u32 v26, v4, v5, s38
    s_lshl_b32 s38, s32, 2
    v_add_u32 v4, s38, v7
    v_lshlrev_b32 v5, 1, v22
    v_xor_b32 v4, v4, v5
    v_lshlrev_b32 v4, 4, v4
    v_lshl_add_u32 v4, v14, 3, v4
    v_lshl_add_u32 v4, v22, 8, v4
    v_xor_b32 v5, 32, v4
    v_lshlrev_b32 v6, 1, v6
    v_add_u32 v6, {base['V']}, v6
    v_add_u32 v27, v4, v6
    v_add_u32 v28, v5, v6
    v_add_u32 v44, s38, v3""")
    a(f"""v_mov_b32 v19, 0xff
    v_mov_b32 v18, 0x3b000000
    v_mov_b32 v112, v16
    v_add_u32 v16, {XN}, v16
    v_lshlrev_b32 v15, 4, v21
    s_lshl_b32 s38, s34, 8
    s_add_u32 s38, s38, {XN}
    v_add_u32 v17, s38, v15""")
    stamp()
    a("s_barrier")
    stamp()
    a("ds_read_b128 v[8:11], v112\ns_waitcnt lgkmcnt(0)")
    for i in range(4):
        a(f"v_lshlrev_b32 v{32+2*i}, 16, v{8+i}\nv_and_b32 v{33+2*i}, 0xffff0000, v{8+i}")
    a("s_mov_b32 s55, 0\nL_ln:")
    a("""v_pk_mul_f32 v[40:41], v[32:33], v[32:33]
    v_pk_add_f32 v[4:5], v[32:33], v[34:35]
    v_pk_fma_f32 v[40:41], v[34:35], v[34:35], v[40:41]
    v_pk_add_f32 v[6:7], v[36:37], v[38:39]
    v_pk_fma_f32 v[40:41], v[36:37], v[36:37], v[40:41]
    v_pk_add_f32 v[4:5], v[4:5], v[6:7]
    v_pk_fma_f32 v[40:41], v[38:39], v[38:39], v[40:41]
    v_add_f32 v4, v4, v5
    v_add_f32 v5, v40, v41
    s_nop 0""")
    for d in ("row_shr:1", "row_shr:2", "row_shr:4", "row_shr:8"):
        a(f"""v_add_f32_dpp v4, v4, v4 {d} row_mask:0xf bank_mask:0xf bound_ctrl:1
        v_add_f32_dpp v5, v5, v5 {d} row_mask:0xf bank_mask:0xf bound_ctrl:1
        s_nop 0""")
    a(f"""v_add_f32_dpp v4, v4, v4 row_bcast:15 row_mask:0xa bank_mask:0xf
    v_add_f32_dpp v5, v5, v5 row_bcast:15 row_mask:0xa bank_mask:0xf
    s_nop 0
    v_add_f32_dpp v4, v4, v4 row_bcast:31 row_mask:0xc bank_mask:0xf
    v_add_f32_dpp v5, v5, v5 row_bcast:31 row_mask:0xc bank_mask:0xf
    s_nop 0
    v_readlane_b32 s38, v4, 63
    v_readlane_b32 s39, v5, 63
    s_nop 0
    v_mul_f32 v4, s38, v18
    v_mul_f32 v5, s39, v18
    v_fma_f32 v5, -v4, v4, v5
    v_max_f32 v5, 0, v5
    v_cvt_pk_bf16_f32 v4, v4, v5
    v_and_b32 v5, 0xffff0000, v4
    v_lshlrev_b32 v4, 16, v4
    v_add_f32 v5, 0x3727c5ac, v5
    v_cvt_pk_bf16_f32 v5, v5, v5
    v_and_b32 v5, 0xffff0000, v5
    v_sqrt_f32 v6, v5""")
    for i in range(4):
        a(f"v_pk_add_f32 v[{32+2*i}:{33+2*i}], v[{32+2*i}:{33+2*i}], v[4:5] op_sel_hi:[1,0] neg_lo:[0,1] neg_hi:[0,1]")
    a(f"""v_cvt_pk_bf16_f32 v6, v6, v6
    v_and_b32 v6, 0xffff0000, v6
    v_rcp_f32 v6, v6""")
    for i in range(4):
        a(f"v_cvt_pk_bf16_f32 v{40+i}, v{32+2*i}, v{33+2*i}")
    for i in range(4):
        a(f"v_lshlrev_b32 v{32+2*i}, 16, v{40+i}\nv_and_b32 v{33+2*i}, 0xffff0000, v{40+i}")
    for i in range(4):
        a(f"v_pk_mul_f32 v[{32+2*i}:{33+2*i}], v[{32+2*i}:{33+2*i}], v[6:7] op_sel_hi:[1,0]")
    for i in range(4):
        a(f"v_cvt_pk_bf16_f32 v{40+i}, v{32+2*i}, v{33+2*i}")
    a("""ds_write_b128 v16, v[40:43]
    s_cmp_lg_u32 s55, 0
    s_cbranch_scc1 L_ln2""")
    for t in range(4):
        a(f"ds_read_b128 v[{48+4*t}:{51+4*t}], v17 offset:{64*t}")
    for i in range(4):
        a(f"v_lshlrev_b32 v{32+2*i}, 16, v{40+i}\nv_and_b32 v{33+2*i}, 0xffff0000, v{40+i}")
    stamp()
    a(f"""s_lshl_b32 s38, s35, 7
    s_add_u32 s38, s38, {YN}
    v_add_u32 v17, s38, v15
    v_add_u32 v16, 1024, v16
    s_lshl_b32 s38, s30, 13
    s_lshl_b32 s39, s32, 9
    s_add_u32 s38, s38, s39
    s_add_u32 s38, s38, {QB}
    v_lshl_add_u32 v8, v2, 3, s38
    v_add_u32 v9, 4096, v8
    s_mul_i32 s39, s32, 288
    s_add_u32 s39, s39, {QL}
    v_lshl_add_u32 v10, v2, 2, s39
    v_mul_u32_u24 v11, 288, v23
    v_add_u32 v11, v11, v15
    v_add_u32 v11, {QL}, v11
    s_add_u32 s38, s45, {SL}
    v_mul_u32_u24 v47, 576, v23
    v_add3_u32 v47, v47, v15, s38
    v_mul_u32_u24 v115, 576, v22
    v_lshl_add_u32 v115, v23, 7, v115
    v_lshl_add_u32 v115, v21, 5, v115
    v_add_u32 v115, {SL}, v115
    s_lshl_b32 s38, s36, 14
    s_add_u32 s38, s38, s45
    s_add_u32 s38, s38, {OB}
    v_lshrrev_b32 v6, 3, v2
    v_and_b32 v5, 7, v2
    v_lshlrev_b32 v116, 11, v6
    v_lshl_add_u32 v116, v5, 4, v116
    v_add_u32 v116, s38, v116
    s_add_u32 s38, s44, {AL}
    v_mul_u32_u24 v117, 288, v6
    v_lshl_add_u32 v117, v5, 2, v117
    v_add_u32 v117, s38, v117
    v_mov_b32 v118, 0x0c0c0400
    v_mov_b32 v6, 0x04000c0c
    v_cmp_eq_u32 vcc, 1, v14
    v_mul_u32_u24 v119, 288, v5
    v_add_u32 v119, v119, v15
    v_cndmask_b32 v118, v118, v6, vcc
    v_add_u32 v119, {AL}, v119
    v_add_u32 v120, {HL}, v15
    s_lshl_b32 s38, s35, 15
    s_lshr_b32 s39, s36, 4
    s_lshl_b32 s39, s39, 14
    s_add_u32 s38, s38, s39
    s_and_b32 s39, s36, 15
    s_lshl_b32 s39, s39, 9
    s_add_u32 s38, s38, s39
    s_add_u32 s38, s38, s45
    s_add_u32 s38, s38, {FB}
    s_add_u32 s50, s28, 8192
    s_addc_u32 s51, s29, 0
    v_lshl_add_u32 v121, v20, 3, s38
    s_lshl_b32 s52, s32, 3
    s_add_u32 s52, s52, {idx['K'] + 8}""")
    l = lab("wt")
    a(f"{l}:\nds_read_b64 v[4:5], v3 offset:{256+48}")
    tmo()
    a(f"""s_waitcnt lgkmcnt(0)
    v_cmp_eq_u32 vcc, 0, v5
    s_cbranch_vccnz {l}
    v_readfirstlane_b32 s40, v4
    v_lshlrev_b32 v122, 3, v23
    v_lshrrev_b32 v29, v122, v4
    v_lshlrev_b32 v5, 4, v14
    v_lshrrev_b32 v30, v5, v4
    v_lshrrev_b32 v31, 8, v30
    s_getreg_b32 s38, hwreg(HW_REG_XCC_ID, 0, 3)
    s_lshr_b32 s42, s40, 16
    v_mul_u32_u24 v5, s38, v14
    s_xor_b32 s42, s42, s38
    v_xor_b32 v113, v30, v5
    v_cmp_eq_u32 vcc, 2, v23
    v_mul_u32_u24 v5, 7, v14
    v_mov_b32 v6, s38
    v_xor_b32 v144, v19, v5
    v_cndmask_b32 v6, 0, v6, vcc
    v_xor_b32 v145, v29, v6
    s_mov_b32 s54, 0
    """)
    a("; ---- q partial: xn(128 rows) x wq tile")
    wait_prog(idx['q'] + 16)
    stamp()
    event('wq')
    for t in range(4):
        for rd in range(2):
            a(f"ds_read_b64_tr_b16 v[{72+4*t+2*rd}:{73+4*t+2*rd}], v24 offset:{base['q'] + t*4*ST + rd*512}")
    for t in range(4):
        c = "0" if t == 0 else "v[4:7]"
        a(f"s_waitcnt lgkmcnt({lgk(6-2*t)})\nv_mfma_f32_16x16x32_bf16 v[4:7], v[{48+4*t}:{51+4*t}], v[{72+4*t}:{75+4*t}], {c}")
    a(f"""s_mov_b64 exec, 0xffff
    s_mov_b32 s55, 1
    s_nop 5
    v_bfi_b32 v123, v19, v145, v4
    global_store_dword v12, v123, s[28:29] {ast}
    s_mov_b64 exec, -1""")
    stamp()
    def qissue(r):
        a(f"""global_load_dwordx2 v[{r}:{r+1}], v8, s[28:29] sc1
        global_load_dwordx2 v[{r+2}:{r+3}], v8, s[28:29] offset:2048 sc1
        global_load_dwordx2 v[{r+4}:{r+5}], v9, s[28:29] sc1
        global_load_dwordx2 v[{r+6}:{r+7}], v9, s[28:29] offset:2048 sc1""")
        attempts(0)
    def qcheck(r):
        a(f"v_xor_b32 v7, v{r}, v113\nv_xor_b32 v4, v{r+1}, v31")
        for i in range(1, 4):
            a(f"v_bitop3_b32 v7, v7, v{r+2*i}, v113 bitop3:0xf6\nv_bitop3_b32 v4, v4, v{r+2*i+1}, v31 bitop3:0xf6")
        a(f"""v_and_b32 v6, v144, v7
        v_and_or_b32 v4, v4, v19, v6
        v_cmp_ne_u32 vcc, 0, v4
        v_pk_add_f32 v[40:41], v[{r}:{r+1}], v[{r+2}:{r+3}]
        v_pk_add_f32 v[42:43], v[{r+4}:{r+5}], v[{r+6}:{r+7}]""")
    def qhB():
        a(f"""s_mov_b64 exec, 0xffff
        global_store_dword v12, v123, s[26:27] sc1
        {"" if late1 else "global_store_dword v13, v124, s[26:27] sc1"}
        s_mov_b64 exec, -1
        s_mov_b32 s54, 1""")
    def ohB():
        a("global_store_dwordx2 v46, v[126:127], s[26:27] sc1")
        if late1:
            a(f"""s_mov_b64 exec, 0xffff
            global_store_dword v13, v124, s[26:27] sc1
            s_mov_b64 exec, -1""")
    qissue(128)
    a(f"""s_cmp_lg_u32 s30, {light}
    s_cbranch_scc1 L_ln
    s_branch L_nomlp1""")
    pad(3, "L_pad4", jump=False)
    a(f"L_foreign:\nds_write_b32 v3, v5 offset:{256+44}\ns_branch L_own\nL_needB:")
    qhB()
    a("s_branch L_wk")
    def mlp1():
        a(f"""ds_read_b128 v[64:67], v17
        ds_read_b128 v[68:71], v17 offset:64""")
        wait_prog(idx['1'] + 8)
        vb, ob = (24, base['1']) if base['1'] + 8 * ST < 65536 else (112, 0)
        for t in range(2):
            for rd in range(2):
                a(f"ds_read_b64_tr_b16 v[{72+4*t+2*rd}:{73+4*t+2*rd}], v{vb} offset:{ob + t*4*ST + rd*512}")
        a(f"""s_waitcnt lgkmcnt(0)
        v_mfma_f32_16x16x32_bf16 v[4:7], v[64:67], v[72:75], 0
        v_mfma_f32_16x16x32_bf16 v[4:7], v[68:71], v[76:79], v[4:7]
        s_mov_b64 exec, 0xffff
        s_nop 6
        v_bfi_b32 v124, v19, v29, v4
        global_store_dword v13, v124, s[28:29] {ast}
        s_mov_b64 exec, -1""")
    a("L_ln2:")
    if not late1: mlp1()
    a(f"L_nomlp1:\nv_add_u32 v112, {base['1']}, v24")
    stamp()
    qissue(136)
    if opre == 1: a("global_load_dword v114, v46, s[28:29] sc1")
    a(f"""ds_read_b32 v4, v3
    s_mov_b32 s47, {KSW // 3}
    s_waitcnt lgkmcnt(0)
    v_readfirstlane_b32 s53, v4
    s_add_u32 s53, s53, {qstag}
    s_min_u32 s53, s53, {NL}""")
    wait_prog("s53")
    a("; ---- gather q of head w (three attempts in flight)")
    a("L_gq:")
    qissue(104)
    tmo()
    a("s_waitcnt vmcnt(8)" if opre != 1 else "s_waitcnt vmcnt(8)")
    qcheck(128)
    a("s_cbranch_vccz L_gqok")
    a(f"""s_sub_u32 s47, s47, 1
    s_cbranch_scc0 L_gq2
    v_add_u32 v8, {DL}, v8
    v_add_u32 v9, {DL}, v9
    v_mov_b32 v5, 1
    ds_write_b32 v3, v5 offset:{256+44}""")
    qhB()
    a("L_gq2:")
    qissue(128)
    a("s_waitcnt vmcnt(8)")
    qcheck(136)
    a("s_cbranch_vccz L_gqok")
    qissue(136)
    a("s_waitcnt vmcnt(8)")
    qcheck(104)
    a("s_cbranch_vccnz L_gq")
    a(f"""L_gqok:
    v_pk_add_f32 v[40:41], v[40:41], v[42:43]
    v_and_b32 v7, 7, v7
    v_mov_b32 v5, 1
    v_cmp_ne_u32 vcc, 0, v7
    v_cvt_pk_bf16_f32 v40, v40, v41
    ds_write_b32 v10, v40
    s_cbranch_vccnz L_foreign
    L_own:
    ds_write_b32 v44, v5 offset:256""")
    stamp()
    event('qgot')
    a(f"""L_wk:
    ds_read_b32 v40, v3
    ds_read_b128 v[4:7], v3 offset:256
    ds_read_b32 v41, v3 offset:{256+44}""")
    for t in range(4):
        a(f"ds_read_b128 v[{48+4*t}:{51+4*t}], v11 offset:{64*t}")
    tmo()
    a(f"""s_waitcnt lgkmcnt({lgk(4)})
    v_readfirstlane_b32 s38, v41
    v_bitop3_b32 v4, v4, v5, v6 bitop3:0x80
    v_cmp_gt_u32 s[60:61], s52, v40
    v_and_b32 v4, v4, v7
    s_min_u32 s38, s38, 1
    s_cmp_gt_u32 s38, s54
    s_cbranch_scc1 L_needB
    v_cmp_eq_u32 vcc, 0, v4
    s_or_b64 s[60:61], vcc, s[60:61]
    s_cbranch_scc1 L_wk""")
    for t in range(4):
        for u in range(2):
            r = 72 + 16*u + 4*t
            a(f"ds_read_b128 v[{r}:{r+3}], v26 offset:{u*4*ST + t*64}")
    for t in range(4):
        for u in range(2):
            c = "0" if t == 0 else f"v[{32+4*u}:{35+4*u}]"
            a(f"s_waitcnt lgkmcnt({lgk(7-2*t-u)})")
            a(f"v_mfma_f32_16x16x32_bf16 v[{32+4*u}:{35+4*u}], v[{72+16*u+4*t}:{75+16*u+4*t}], v[{48+4*t}:{51+4*t}], {c}")
    SC = 0x3e0293ee
    a(f"""s_mov_b32 exec_lo, 0x000f000f
    s_mov_b32 exec_hi, 0x000f000f
    v_mov_b32 v5, 1
    s_mov_b32 s46, {SC}
    s_nop 3
    ds_write_b128 v47, v[32:35]
    ds_write_b128 v47, v[36:39] offset:64
    ds_write_b32 v44, v5 offset:272
    s_mov_b64 exec, -1
    v_mov_b32 v64, 0x3f803f80
    v_mov_b32 v65, v64
    v_mov_b32 v66, v64
    v_mov_b32 v67, v64""")
    stamp()
    if opre in (2, 3): a("global_load_dword v114, v46, s[28:29] sc1")
    if wpre:
        a("global_load_dword v114, v121, s[28:29] sc1")
        if numa: a("global_load_dword v114, v121, s[50:51] sc1")
    pad(4, "L_pad5")
    def vread(t, k):
        ntile, rd = k >> 1, k & 1
        r = 72 + 8*t + 4*ntile + 2*rd
        return f"ds_read_b64_tr_b16 v[{r}:{r+1}], v{27+ntile} offset:{t*8*ST + rd*ST}"
    a("; ---- softmax over the 128 keys of the chunk, P x V")
    a(f"""L_ws:
    ds_read_b128 v[4:7], v3 offset:272
    ds_read_b32 v40, v3
    ds_read_b128 v[32:35], v115
    ds_read_b128 v[36:39], v115 offset:16""")
    tmo()
    a(f"""s_waitcnt lgkmcnt({lgk(2)})
    v_bitop3_b32 v4, v4, v5, v6 bitop3:0x80
    v_readfirstlane_b32 s53, v40
    v_and_b32 v4, v4, v7
    v_cmp_eq_u32 vcc, 0, v4
    s_cbranch_vccnz L_ws
    s_waitcnt lgkmcnt(0)
    v_max3_f32 v4, v32, v33, v34
    v_max3_f32 v5, v35, v36, v37
    v_max3_f32 v4, v4, v38, v39
    v_max_f32 v4, v4, v5
    {vread(0, 0)}
    {vread(0, 1)}
    v_max_f32_dpp v4, v4, v4 quad_perm:[1,0,3,2] row_mask:0xf bank_mask:0xf
    {vread(0, 2)}
    {vread(0, 3)}
    v_max_f32_dpp v4, v4, v4 quad_perm:[2,3,0,1] row_mask:0xf bank_mask:0xf
    v_mov_b32 v5, v4
    {vread(1, 0)}
    {vread(1, 1)}
    v_permlane16_swap_b32 v4, v5
    v_max_f32 v4, v4, v5
    v_mov_b32 v5, v4
    {vread(1, 2)}
    {vread(1, 3)}
    v_permlane32_swap_b32 v4, v5
    v_max_f32 v4, v4, v5
    v_mul_f32 v6, s46, v4""")
    for i in range(8):
        a(f"v_fma_f32 v{32+i}, v{32+i}, s46, -v6")
        if i == 0: a("ds_bpermute_b32 v45, v15, v6")
    for i in range(8):
        a(f"v_exp_f32 v{32+i}, v{32+i}\n{vread(2 + (i >> 2), i & 3)}")
    for i in range(4):
        a(f"v_cvt_pk_bf16_f32 v{40+i}, v{32+2*i}, v{33+2*i}")
    stamp()
    for t in range(4):
        for i in range(4):
            a(f"v_mov_b32_dpp v{48+4*t+i}, v{40+i} quad_perm:[{t},{t},{t},{t}] row_mask:0xf bank_mask:0xf")
            if t == 0 and i == 1: a("v_mfma_f32_16x16x32_bf16 v[68:71], v[40:43], v[64:67], 0")
        sk = lab("vs")
        a(f"s_cmpk_ge_u32 s53, {idx['V'] + 8*(t+1)}\ns_cbranch_scc1 {sk}")
        l = lab("wv")
        a(f"{l}:\nds_read_b32 v4, v3")
        for k in range(4): a(vread(t, k))
        tmo()
        a(f"""s_waitcnt lgkmcnt({lgk(4)})
        v_cmp_gt_u32 vcc, {idx['V'] + 8*(t+1)}, v4
        s_cbranch_vccnz {l}""")
        a(f"{sk}:\ns_waitcnt lgkmcnt(0)")
        for ntile in range(2):
            c = "0" if t == 0 else f"v[{32+4*ntile}:{35+4*ntile}]"
            a(f"v_mfma_f32_16x16x32_bf16 v[{32+4*ntile}:{35+4*ntile}], v[{48+4*t}:{51+4*t}], v[{72+8*t+4*ntile}:{75+8*t+4*ntile}], {c}")
        if t == 1:
            a("""v_pk_add_f32 v[68:69], v[68:69], v[70:71]
            v_add_f32 v68, v68, v69
            v_log_f32 v5, v68
            v_rcp_f32 v6, v68
            v_add_f32 v45, v45, v5
            v_lshrrev_b32 v45, v122, v45""")
            if numa: a(f"ds_read_b32 v7, v3 offset:{256+32}")
        if t == 2 and numa: a("v_mul_u32_u24 v7, v7, v14\nv_xor_b32 v113, v113, v7")
    a(f"""s_nop 6
    v_mul_f32 v32, v32, v6
    v_bfi_b32 v126, v19, v113, v32
    v_mul_f32 v36, v36, v6
    v_bfi_b32 v127, v19, v45, v36
    global_store_dwordx2 v46, v[126:127], s[28:29] {ast}""")
    stamp()
    event('opub')
    def ogather():
        if stamps: a("s_memrealtime s[94:95]")
        for i in range(4):
            a(f"global_load_dwordx4 v[{48+4*i}:{51+4*i}], v116, s[28:29] offset:{512*i} sc1")
        attempts(1)
    if late1:
        a(f"s_cmp_eq_u32 s30, {light}\ns_cbranch_scc1 L_nomlp1b")
        mlp1()
        a("L_nomlp1b:")
    a("; ---- gather the 32 chunk partials of head hq, weight them with exp2(lse - max)")
    if pace_o > idx['V'] + 32: wait_prog(pace_o)
    ogather()
    stamp()
    o2 = base['2'] - base['o']
    a(f"""s_mov_b32 s47, {KSW}
    s_branch L_go1""")
    pad(5, "L_pad6", jump=False)
    a(f"""L_go:
    s_sub_u32 s47, s47, 1
    s_cbranch_scc0 L_go2
    v_add_u32 v116, {DL}, v116""")
    ohB()
    a("L_go2:")
    ogather()
    a("L_go1:")
    tmo()
    a("s_waitcnt vmcnt(0)")
    if stamps: a("s_memrealtime s[96:97]")
    a(f"""v_xor_b32 v7, s42, v50
    v_xor_b32 v4, s40, v48
    v_bitop3_b32 v7, v7, v54, s42 bitop3:0xf6
    v_bitop3_b32 v4, v4, v52, s40 bitop3:0xf6
    v_bitop3_b32 v7, v7, v58, s42 bitop3:0xf6
    v_bitop3_b32 v4, v4, v56, s40 bitop3:0xf6
    v_bitop3_b32 v7, v7, v62, s42 bitop3:0xf6
    v_bitop3_b32 v4, v4, v60, s40 bitop3:0xf6
    v_and_b32 v6, 0xf0, v7
    v_and_or_b32 v4, v4, v19, v6
    v_cmp_ne_u32 vcc, 0, v4
    v_perm_b32 v40, v51, v49, v118
    v_perm_b32 v41, v55, v53, v118
    s_cbranch_vccnz L_go
    v_perm_b32 v42, v59, v57, v118
    v_perm_b32 v43, v63, v61, v118
    v_or_b32_dpp v40, v40, v40 quad_perm:[1,0,3,2] row_mask:0xf bank_mask:0xf
    v_or_b32_dpp v41, v41, v41 quad_perm:[1,0,3,2] row_mask:0xf bank_mask:0xf
    v_or_b32_dpp v42, v42, v42 quad_perm:[1,0,3,2] row_mask:0xf bank_mask:0xf
    v_or_b32_dpp v43, v43, v43 quad_perm:[1,0,3,2] row_mask:0xf bank_mask:0xf
    v_max_f32 v5, v40, v41
    v_max3_f32 v5, v5, v42, v43
    v_and_b32 v7, 7, v7
    v_cmp_ne_u32 vcc, 0, v7
    v_max_f32_dpp v5, v5, v5 row_ror:8 row_mask:0xf bank_mask:0xf
    v_mov_b32 v6, v5
    s_nop 1
    v_permlane16_swap_b32 v5, v6
    v_max_f32 v5, v5, v6
    v_mov_b32 v6, v5
    s_nop 1
    v_permlane32_swap_b32 v5, v6
    v_max_f32 v5, v5, v6
    v_sub_f32 v40, v40, v5
    v_sub_f32 v41, v41, v5
    v_exp_f32 v40, v40
    v_sub_f32 v42, v42, v5
    v_exp_f32 v41, v41
    v_sub_f32 v43, v43, v5
    v_exp_f32 v42, v42
    v_exp_f32 v43, v43
    v_pk_mul_f32 v[32:33], v[48:49], v[40:41] op_sel_hi:[1,0]
    v_pk_mul_f32 v[34:35], v[50:51], v[40:41] op_sel_hi:[1,0]""")
    sel = {1: ("v[40:41]", "op_sel:[0,1,0] op_sel_hi:[1,1,1]"), 2: ("v[42:43]", "op_sel_hi:[1,0,1]"), 3: ("v[42:43]", "op_sel:[0,1,0] op_sel_hi:[1,1,1]")}
    for i in range(1, 4):
        w_, m_ = sel[i]
        a(f"""v_pk_fma_f32 v[32:33], v[{48+4*i}:{49+4*i}], {w_}, v[32:33] {m_}
        v_pk_fma_f32 v[34:35], v[{50+4*i}:{51+4*i}], {w_}, v[34:35] {m_}""")
    a(f"""v_cvt_pk_bf16_f32 v4, v32, v34
    v_cvt_pk_bf16_f32 v5, v33, v35
    ds_write2_b32 v117, v4, v5 offset0:0 offset1:8""")
    stamp()
    event('ogot')
    a(f"""v_pk_add_f32 v[40:41], v[40:41], v[42:43]
    v_add_f32 v40, v40, v41
    s_cbranch_vccz L_coloc""")
    ohB()
    a(f"""L_coloc:
    s_waitcnt lgkmcnt(0)
    s_barrier""")
    stamp()
    for t in range(4):
        a(f"ds_read_b128 v[{128+4*t}:{131+4*t}], v119 offset:{64*t}")
        for rd in range(2):
            a(f"ds_read_b64_tr_b16 v[{72+4*t+2*rd}:{73+4*t+2*rd}], v25 offset:{t*4*ST + rd*512}")
        if t == 0: a("v_add_f32_dpp v40, v40, v40 row_ror:8 row_mask:0xf bank_mask:0xf\nv_mov_b32 v41, v40")
        if t == 1: a("v_permlane16_swap_b32 v40, v41\nv_add_f32 v40, v40, v41\nv_mov_b32 v41, v40")
        if t == 2: a("v_permlane32_swap_b32 v40, v41\nv_add_f32 v40, v40, v41\nv_rcp_f32 v40, v40")
    a(f"s_waitcnt lgkmcnt({lgk(9)})\nv_mfma_f32_16x16x32_bf16 v[32:35], v[128:131], v[72:75], 0")
    for t in range(2):
        a(f"ds_read_b128 v[{64+4*t}:{67+4*t}], v120 offset:{64*t}")
        for rd in range(2):
            a(f"ds_read_b64_tr_b16 v[{88+4*t+2*rd}:{89+4*t+2*rd}], v25 offset:{o2 + t*4*ST + rd*512}")
    for t in range(1, 4):
        c = "v[32:35]"
        a(f"s_waitcnt lgkmcnt({lgk(15-3*t)})\nv_mfma_f32_16x16x32_bf16 v[32:35], v[{128+4*t}:{131+4*t}], v[{72+4*t}:{75+4*t}], {c}")
    a(f"""s_waitcnt lgkmcnt(0)
    v_mfma_f32_16x16x32_bf16 v[36:39], v[64:67], v[88:91], 0
    v_mfma_f32_16x16x32_bf16 v[36:39], v[68:71], v[92:95], v[36:39]""")
    a(f"""s_nop 4
    v_pk_add_f32 v[32:33], v[32:33], v[34:35]
    v_add_f32 v4, v32, v33
    v_add_f32 v6, v32, v33
    s_cmp_lg_u32 s30, {light}
    s_cselect_b32 s38, -1, 0
    v_permlane16_swap_b32 v4, v6
    v_add_f32 v4, v4, v6
    s_mov_b64 exec, 0xffff
    v_mul_f32 v4, v4, v40
    v_and_b32 v5, s38, v36
    v_bfi_b32 v4, v19, v30, v4
    v_bfi_b32 v5, v19, v31, v5
    global_store_dwordx2 v121, v[4:5], s[28:29] {fst}
    {"global_store_dwordx2 v121, v[4:5], s[50:51] " + fst if numa else ""}
    s_mov_b64 exec, -1""")
    stamp()
    if numa and (oracle is None or t_wait):
        a(f"""s_cmp_lg_u32 s32, 0
        s_cbranch_scc1 L_fin
        v_xor_b32 v4, s42, v50
        v_xor_b32 v5, s42, v54
        v_xor_b32 v6, s42, v58
        v_xor_b32 v7, s42, v62
        v_and_b32 v4, 8, v4
        v_and_b32 v5, 8, v5
        v_and_b32 v6, 8, v6
        v_and_b32 v7, 8, v7
        v_cmp_ne_u32 s[60:61], 0, v4
        v_cmp_ne_u32 s[52:53], 0, v5
        v_cmp_ne_u32 s[48:49], 0, v6
        v_cmp_ne_u32 vcc, 0, v7
        s_bcnt1_i32_b64 s38, s[60:61]
        s_bcnt1_i32_b64 s39, s[52:53]
        s_add_u32 s38, s38, s39
        s_bcnt1_i32_b64 s39, s[48:49]
        s_add_u32 s38, s38, s39
        s_bcnt1_i32_b64 s39, vcc
        s_add_u32 s38, s38, s39
        s_cmpk_gt_u32 s38, 128
        s_cselect_b32 s38, 8193, 1
        v_mov_b32 v4, s38
        ds_write_b32 v3, v4 offset:{256+36}""")
    a("s_branch L_fin")

    nst[0] = 0
    a("L_aux:")
    common()
    a(f"""v_mov_b32 v4, 0
    v_lshl_add_u32 v5, v2, 2, v3
    ds_write_b32 v5, v4
    ds_write_b32 v5, v4 offset:64
    s_cmp_ge_u32 s30, {max(light, 1)}
    s_cselect_b32 s38, 4, 0
    s_sub_u32 s38, s36, s38
    s_lshl_b32 s38, s38, 7
    v_lshl_add_u32 v6, v2, 1, s38
    s_lshl_b32 s48, s34, 3
    s_add_u32 s48, s48, s30
    s_lshl_b32 s48, s48, 2
    s_and_b32 s38, s31, 3
    s_add_u32 s48, s48, s38
    s_lshl_b32 s38, s48, 3
    v_lshrrev_b32 v20, 5, v2
    v_and_b32 v21, 1, v2
    v_lshlrev_b32 v4, 2, v20
    v_lshl_add_u32 v4, v21, 1, v4
    v_add_u32 v12, s38, v4
    s_waitcnt lgkmcnt(0)
    s_load_dword s37, s[28:29], 0
    s_cmp_eq_u32 s30, {light}
    s_cbranch_scc1 L_aux0
    global_load_ushort v8, v6, s[18:19]
    L_aux0:
    global_load_ushort v9, v12, s[4:5]
    global_load_ushort v10, v12, s[22:23]""")
    stamp()
    a(f"""s_barrier
    v_mov_b32 v5, 1
    v_mov_b32 v19, 0xff
    s_lshr_b32 s38, s48, 4
    s_lshl_b32 s38, s38, 15
    s_and_b32 s39, s48, 15
    s_lshl_b32 s39, s39, 5
    s_add_u32 s38, s38, s39
    s_add_u32 s38, s38, {FB}
    v_and_b32 v22, 15, v2
    v_bfe_u32 v23, v2, 4, 1
    v_lshlrev_b32 v17, 9, v22
    v_lshl_add_u32 v17, v23, 14, v17
    v_lshl_add_u32 v17, v20, 4, v17
    v_add_u32 v17, s38, v17
    v_cmp_eq_u32 s[46:47], 1, v21
    s_waitcnt lgkmcnt(0)
    s_add_u32 s37, s37, 1
    s_mul_i32 s40, s37, 0x9E3779B1
    v_mov_b32 v4, s40
    ds_write_b64 v3, v[4:5] offset:{256+48}
    s_lshr_b32 s41, s40, 8
    s_lshr_b32 s42, s40, 16
    s_lshr_b32 s43, s40, 24
    v_and_b32 v4, 3, v2
    v_lshlrev_b32 v4, 3, v4
    v_lshrrev_b32 v29, v4, s40""")
    stamp()
    def probe_store():
        a(f"""s_lshr_b32 s38, s2, 4
        s_lshl_b32 s38, s38, 14
        s_and_b32 s39, s2, 15
        s_lshl_b32 s39, s39, 9
        s_add_u32 s38, s38, s39
        s_add_u32 s38, s38, {PB}
        s_add_u32 s52, s28, s38
        s_addc_u32 s53, s29, 0""")
    def race():
        a("s_mov_b32 s44, s40\ns_mov_b32 s45, s40")
        for i in range(0, 2 * nrace, 2): a(f"s_mov_b64 s[{72+i}:{73+i}], s[44:45]")
        a("s_movk_i32 s39, 200")
        for i in range(nrace):
            for par in ((0, 1) if i in (0, 3) else (1, 0)):
                a(f"s_load_dword s{72 + nrace*par + i}, s[52:53], {8192*par + 128*i}")
        a("L_race:")
        for i in range(0, nrace, 2):
            a(f"""s_cmp_lg_u64 s[{72+i}:{73+i}], s[44:45]
            s_cbranch_scc1 L_near0""")
            if i + 2 >= nrace: a("s_sub_u32 s39, s39, 1\ns_cbranch_scc1 L_near0")
            a(f"s_cmp_lg_u64 s[{72+nrace+i}:{73+nrace+i}], s[44:45]")
            a("s_cbranch_scc1 L_near1" if i + 2 < nrace else "s_cbranch_scc0 L_race")
        a(f"""L_near1:
        {"s_mov_b32 s57, 1" if stamps else ""}
        v_mov_b32 v4, 8
        ds_write_b32 v3, v4 offset:{256+32}
        L_near0:
        s_waitcnt lgkmcnt(0)""")
    if oracle is not None:
        a(f"""s_getreg_b32 s38, hwreg(HW_REG_XCC_ID, 2, 1)
        s_xor_b32 s38, s38, {oracle}
        s_lshl_b32 s38, s38, 13
        v_add_u32 v17, s38, v17
        {"" if wpre else "global_load_dword v40, v17, s[28:29] sc1"}""")
        race_at = None
        if t_pre2: a("v_xor_b32 v18, 0x2000, v17\nglobal_load_dword v40, v18, s[28:29] sc1")
        if t_race:
            probe_store(); race_at = 'gh'
    elif numa:
        if not wpre: a("v_add_u32 v18, 8192, v17\nglobal_load_dword v40, v17, s[28:29] sc1\nglobal_load_dword v40, v18, s[28:29] sc1")
        probe_store()
    elif not wpre: a("global_load_dword v40, v17, s[28:29] sc1")
    if numa and race_at == 'T': race()
    if warm: a("s_branch L_pad3\nL_auxw:")
    stamp()
    if numa and race_at == 'walk': race()
    if extra_dirty:
        a(f"s_lshl_b32 s38, s2, 12\ns_add_u32 s38, s38, 0x400000\nv_lshl_add_u32 v16, v2, 4, s38")
        for i in range(extra_dirty):
            a(f"global_store_dwordx4 v16, v[32:35], s[28:29] offset:{1024*i}")
    def hloads():
        for p_ in range(8):
            a(f"global_load_dword v{32+p_}, v16, s[28:29] offset:{256*p_} sc1")
    a(f"""s_lshl_b32 s38, s36, 11
    s_add_u32 s38, s38, {HB}
    v_lshl_add_u32 v16, v2, 2, s38
    s_mov_b32 s49, {KSW}""")
    wait_prog(pace_h)
    a(f"""s_cmp_eq_u32 s30, {light}
    s_cbranch_scc1 L_noh""")
    hloads()
    a("L_noh:")
    if numa and race_at == 'gh': race()
    a(f"""s_cmp_eq_u32 s30, {light}
    s_cbranch_scc1 L_aux1
    s_branch L_ghc
    L_gh:
    s_sub_u32 s49, s49, 1
    s_cselect_b32 s39, {DL}, 0
    v_add_u32 v16, s39, v16""")
    hloads()
    a("L_ghc:")
    attempts(0)
    tmo()
    a(f"""s_waitcnt vmcnt(0)
    v_xor_b32 v4, v32, v29""")
    for p_ in range(1, 8):
        a(f"v_bitop3_b32 v4, v4, v{32+p_}, v29 bitop3:0xf6")
    C1 = 0xc0135761
    C2 = 0xbdd2d3e8
    a(f"""v_and_b32 v4, v19, v4
    v_cmp_ne_u32 vcc, 0, v4
    s_cbranch_vccnz L_gh
    v_pk_add_f32 v[32:33], v[32:33], v[34:35]
    v_pk_add_f32 v[36:37], v[36:37], v[38:39]
    v_pk_add_f32 v[32:33], v[32:33], v[36:37]
    v_add_f32 v32, v32, v33
    v_cvt_pk_bf16_f32 v32, v32, v32
    v_and_b32 v32, 0xffff0000, v32
    v_lshlrev_b32 v8, 16, v8
    v_add_f32 v32, v32, v8
    v_cvt_pk_bf16_f32 v32, v32, v32
    v_and_b32 v32, 0xffff0000, v32
    v_mul_f32 v33, v32, v32
    v_mov_b32 v34, {C1}
    v_fmac_f32 v34, {C2}, v33
    v_mul_f32 v33, v34, v32
    v_exp_f32 v33, v33
    v_lshlrev_b32 v5, 1, v2
    v_add_f32 v33, 1.0, v33
    v_rcp_f32 v33, v33
    v_add_u32 v5, {HL}, v5
    v_mul_f32 v32, v32, v33
    v_cvt_pk_bf16_f32 v32, v32, v32
    ds_write_b16 v5, v32
""")
    pad(6, "L_auxw")
    a("L_aux1:")
    stamp()
    if numa and race_at == 'h': race()
    if fpre_late:
        wait_prog(72)
        a("global_load_dword v40, v17, s[28:29] sc1")
    a(f"""s_waitcnt vmcnt(0) lgkmcnt(0)
    v_lshlrev_b32 v9, 16, v9
    v_lshlrev_b32 v10, 16, v10
    s_barrier
    s_bitcmp1_b32 s31, 2
    s_cbranch_scc1 L_fin""")
    if numa and (oracle is None or t_wait):
        wait_flag1(36)
        if oracle is None: a("v_add_u32 v17, v17, v4\nv_add_u32 v17, -1, v17")
        if stamps: a("v_readfirstlane_b32 s59, v4")
    stamp()
    regs = [32 + 4 * i for i in range(nfin)]
    for r in regs[:-1]:
        a(f"global_load_dwordx4 v[{r}:{r+3}], v17, s[28:29] sc1")
    a("L_gf:")
    for k in range(nfin):
        r = regs[k]; rn = regs[(k - 1) % nfin]
        if stamps: a("s_memrealtime s[94:95]")
        a(f"global_load_dwordx4 v[{rn}:{rn+3}], v17, s[28:29] sc1")
        attempts(2)
        if k == 0: tmo()
        a(f"""s_waitcnt vmcnt({nfin-1})
        v_xor_b32 v4, s40, v{r}
        v_bitop3_b32 v4, v4, v{r+1}, s41 bitop3:0xf6
    v_bitop3_b32 v4, v4, v{r+2}, s42 bitop3:0xf6
    v_bitop3_b32 v4, v4, v{r+3}, s43 bitop3:0xf6
        v_and_b32 v4, v19, v4
        v_cmp_ne_u32 vcc, 0, v4""")
        for i in range(4):
            a(f"v_add_f32_dpp v{48+i}, v{r+i}, v{r+i} row_ror:1 row_mask:0xf bank_mask:0xf")
        a("s_cbranch_vccz L_gfok" if k < nfin - 1 else "s_cbranch_vccnz L_gf")
    a("L_gfok:")
    stamp()
    for d in (2, 4, 8):
        for i in range(4):
            a(f"v_add_f32_dpp v{48+i}, v{48+i}, v{48+i} row_ror:{d} row_mask:0xf bank_mask:0xf")
    for i in range(4):
        a(f"v_add_f32_dpp v{48+i}, v{48+i}, v{48+i} row_bcast:15 row_mask:0xa bank_mask:0xf")
    a(f"""v_cndmask_b32 v48, v48, v50, s[46:47]
    v_cndmask_b32 v49, v49, v51, s[46:47]
    v_cvt_pk_bf16_f32 v48, v48, v49
    v_and_b32 v49, 0xffff0000, v48
    v_add_f32 v49, v49, v10
    v_cvt_pk_bf16_f32 v49, v49, v49
    v_and_b32 v49, 0xffff0000, v49
    v_mul_f32 v50, 0xbfb8aa3b, v49
    v_exp_f32 v50, v50
    v_lshlrev_b32 v48, 16, v48
    v_add_f32 v50, 1.0, v50
    v_rcp_f32 v50, v50
    s_mov_b32 exec_lo, 0x00030000
    v_mul_f32 v49, v49, v50
    v_cvt_pk_bf16_f32 v49, v49, v49
    v_and_b32 v49, 0xffff0000, v49
    v_mul_f32 v48, v48, v49
    v_cvt_pk_bf16_f32 v48, v48, v48
    s_mov_b32 exec_hi, 0x00030000
    v_and_b32 v48, 0xffff0000, v48
    v_add_f32 v48, v48, v9
    v_cvt_pk_bf16_f32 v48, v48, v48
    @DIAG@
    global_store_short v12, v48, s[24:25] {outst}
    s_cmp_lg_u32 s2, 0
    s_cbranch_scc1 L_fin
    v_mov_b32 v4, 0
    v_mov_b32 v5, s37
    s_mov_b64 exec, 0x10000
    global_store_dword v4, v5, s[28:29]""")
    a("L_fin:")
    if stamps:
        a("s_memrealtime s[92:93]")
        a("s_mov_b64 exec, -1\ns_waitcnt lgkmcnt(0)\nv_mov_b32 v5, 0\nv_writelane_b32 v5, s62, 0")
        for i in range(15):
            a(f"v_writelane_b32 v5, s{64+2*i}, {i+1}")
        a(f"""v_writelane_b32 v5, s33, 17
        s_getreg_b32 s38, hwreg(HW_REG_XCC_ID)
        v_writelane_b32 v5, s38, 18
        v_writelane_b32 v5, s56, 19
        v_writelane_b32 v5, s57, 20
        v_writelane_b32 v5, s58, 21
        v_writelane_b32 v5, s59, 24
        v_writelane_b32 v5, s94, 22
        v_writelane_b32 v5, s96, 23
        s_lshl_b32 s38, s2, 10
        s_add_u32 s38, s38, {TS_OFF}
        v_lshrrev_b32 v1, 6, v0
        v_and_b32 v2, 63, v0
        v_lshlrev_b32 v4, 7, v1
        v_lshl_add_u32 v4, v2, 2, v4
        v_add_u32 v4, s38, v4
        s_mov_b64 exec, 0xffffffff
        global_store_dword v4, v5, s[28:29]""")
    a("L_exit:")
    dg = []
    if diag:
        dg = ["L_dg:", f"{diag[0]} s[62:63]", "s_waitcnt lgkmcnt(0)", "s_sub_u32 s62, s62, s60", f"s_cmp_lt_u32 s62, {diag[1]}", "s_cbranch_scc1 L_dg"]
    if evt:
        dg = ["s_mov_b64 s[64:65], exec", "s_mov_b64 exec, -1", f"ds_read_b32 v4, v3 offset:{256+40}", "s_waitcnt lgkmcnt(0)", "v_readfirstlane_b32 s60, v4", "s_mov_b64 exec, s[64:65]",
              "L_dg:", "s_memrealtime s[62:63]", "s_waitcnt lgkmcnt(0)", "s_sub_u32 s62, s62, s60", f"s_cmp_lt_u32 s62, {evt[1]}", "s_cbranch_scc1 L_dg"]
    i_ = L.index("@DIAG@"); L[i_:i_+1] = dg
    body = "\n".join(("" if x.endswith(":") or x.startswith(";") else "    ") + x for x in L)
    return f"""{HEADER}; @launch grid=(256,1,1) block=(384,1,1) lds={LDS_TOTAL}
; One launch, 256 workgroups (one per CU), 6 waves each. Workgroup b: h = b&7 (kv head), c = b>>3 (128-key chunk),
; hq = 4h + (c>>3), j = c&7.
;            bounded number of loads in flight) and reports its progress in an LDS word
; Hand-offs between workgroups go through d_ws. Every 8-byte unit carries tag bits derived from an epoch word that the
; the head report the same id, write-through copies are stored too and readers fall back to them after a number of failed
; polls, so the result does not depend on workgroup placement. The last hand-off (write-through) is stored twice, once per
.amdgcn_target "amdgcn-amd-amdhsa--gfx950"
.text
.globl {KN}_kernel
.p2align 8
.type {KN}_kernel,@function
{KN}_kernel:
{body}
    s_endpgm
.section .rodata,"a"
.p2align 6
.amdhsa_kernel {KN}_kernel
  .amdhsa_next_free_vgpr 152
  .amdhsa_next_free_sgpr 98
  .amdhsa_accum_offset 152
  .amdhsa_group_segment_fixed_size 0
  .amdhsa_kernarg_size 104
  .amdhsa_user_sgpr_count 2
  .amdhsa_user_sgpr_kernarg_segment_ptr 1
  .amdhsa_system_sgpr_workgroup_id_x 1
.end_amdhsa_kernel
"""
if __name__ == "__main__":
    import argparse, json
    ap = argparse.ArgumentParser()
    ap.add_argument("out"); ap.add_argument("--kw", default="{}")
    x = ap.parse_args()
    open(x.out, "w").write(gen(**json.loads(x.kw)))
```

```python
import sys
KN = "recurrent_scan__sliding_block_cached__mixer_channel_mlp__decode"
HEADER = open("cdna_kernels/%s.s.ref" % KN).read().split("; Override launch")[0]

ST = 1088
QB, HB, OB, FB = 0x10000, 0x20000, 0x40000, 0xC0000
PB = 0x1C0000
DL = 0x100000
TS_OFF = 0x8000000
C_ = [1, 2, 3, 4]
STAMPS = {'wq': (C_, 4), 'qgot': (C_, 7), 'smax': (C_, 9), 'opub': (C_, 10), 'all': ([0], 9), 'ogot': (C_, 12), 'hdone': ([5], 4), 'fpub': (C_, 14), 'fgot': ([5], 6)}
WAVE_GROUPS = {'loader': [0], 'comp': [1, 2, 3, 4], 'aux': [5]}

def gen(W=None, nt="nt", stamps=False, budget=1000000, pace_h=56, KSW=64, warm=True, qstag=12, nfin=1, extra_dirty=0, pace_o=88, noB=False, diag=None, rot=(3, 1), fpre=True, fst="sc1", opre=2, fpre_late=False, ast="", outst="", unq=2, late1=False, evt=None, light=7, numa=True, force=None, race_at='gh', oracle=None, vote=True, t_store=False, t_noqB=False, t_pre2=False, t_race=False, nrace=4, t_wait=False, redonly=False, wpre=True, clean=True, remap_test=None):
    order = "qKV1o2" if late1 else "q1KVo2"
    Wd = {"1": 20, "K": 20, "V": 22, "o": 16, "2": 12}
    if isinstance(W, int): Wd = {k: W for k in Wd}
    elif W: Wd.update(W)
    pol = {t: nt for t in order} if isinstance(nt, str) else {t: nt.get(t, "") for t in order}
    L = []
    def a(s):
        for x in s.split("\n"):
            x = x.strip()
            if x: L.append(x)
    cnt = {"q": 16, "1": 8, "K": 32, "V": 32, "o": 16, "2": 8}
    idx = {}; p = 0
    for t in order:
        idx[t] = p; p += cnt[t]
    NL = p
    base = {t: (idx[t] + 1) * ST for t in order}
    END = (NL + 1) * ST
    PROG = END
    FLG = PROG + 256
    XN = FLG + 64
    YN = XN + 1024
    QL = YN + 1024
    SL = QL + 4 * 288
    AL = SL + 4 * 576
    HL = AL + 8 * 288
    LDS_TOTAL = HL + 128
    assert LDS_TOTAL <= 163840
    nst = [0]
    def stamp():
        if stamps:
            a(f"s_memrealtime s[{64+2*nst[0]}:{65+2*nst[0]}]")
        nst[0] += 1
        assert nst[0] <= 15
    def lgk(n): return 0 if stamps else n
    def event(name):
        if evt and evt[0] == name:
            a(f"""s_memrealtime s[62:63]
            v_mov_b32 v4, {FLG + 40}
            s_waitcnt lgkmcnt(0)
            v_mov_b32 v5, s62
            ds_max_u32 v4, v5
            s_waitcnt lgkmcnt(0)""")
    uid = [0]
    def lab(p):
        uid[0] += 1
        return f"L_{p}{uid[0]}"
    def tmo(padn=None):
        a("s_sub_u32 s33, s33, 1")
        if padn and warm: a(f"L_pad{padn}:")
        a("s_cbranch_scc1 L_fin")
    def pad(n, target, jump=True):
        if warm:
            if jump: a(f"s_branch L_po{n}")
            a(f"L_pad{n}:\ns_branch {target}")
            if jump: a(f"L_po{n}:")
    def wait_prog(th):
        l = lab("wp")
        a(f"{l}:\nds_read_b32 v4, v3")
        tmo()
        a(f"""s_waitcnt lgkmcnt(0)
        v_cmp_gt_u32 vcc, {th}, v4
        s_cbranch_vccnz {l}""")
    def wait_flags(off, padn=None):
        l = lab("wf")
        a(f"{l}:\nds_read_b128 v[4:7], v3 offset:{256+off}")
        tmo(padn)
        a(f"""s_waitcnt lgkmcnt(0)
        v_bitop3_b32 v4, v4, v5, v6 bitop3:0x80
        v_and_b32 v4, v4, v7
        v_cmp_eq_u32 vcc, 0, v4
        s_cbranch_vccnz {l}""")
    def wait_flag1(off):
        l = lab("w1")
        a(f"{l}:\nds_read_b32 v4, v3 offset:{256+off}")
        tmo()
        a(f"""s_waitcnt lgkmcnt(0)
        v_cmp_eq_u32 vcc, 0, v4
        s_cbranch_vccnz {l}""")
    def attempts(i):
        if stamps: a(f"s_add_u32 s{56+i}, s{56+i}, 1")

    if diag: a(f"{diag[0]} s[60:61]")
    if stamps: a("s_memrealtime s[62:63]")
    if remap_test:
        sh, mask = remap_test
        a(f"s_lshr_b32 s3, s2, {sh}\ns_and_b32 s3, s3, {mask}\ns_xor_b32 s2, s2, s3")
    a(f"""
    s_load_dwordx16 s[4:19], s[0:1], 0
    s_load_dwordx8 s[20:27], s[0:1], 64
    s_load_dwordx2 s[28:29], s[0:1], 96
    v_readfirstlane_b32 s32, v0
    s_lshr_b32 s31, s2, 3
    s_cmp_ge_u32 s31, 32
    s_cbranch_scc1 L_exit
    s_and_b32 s30, s2, 7
    s_lshr_b32 s34, s31, 3
    s_and_b32 s35, s31, 7
    s_lshr_b32 s32, s32, 6
""")
    if warm: a("s_cmp_eq_u32 s32, 1\ns_cbranch_scc1 L_pad1")
    a(f"s_cmp_eq_u32 s32, 5\ns_cbranch_scc1 L_aux\ns_cmp_lg_u32 s32, 0\ns_cbranch_scc1 L_comp")
    a(f"""
    v_lshrrev_b32 v4, 3, v0
    v_and_b32 v5, 7, v0
    v_and_b32 v6, 2, v4
    v_xor_b32 v5, v5, v6
    v_lshlrev_b32 v5, 4, v5
    s_lshl_b32 s37, s34, 20
    s_lshl_b32 s38, s30, 10
    s_lshl_b32 s39, s35, 7
    s_add_u32 s37, s37, s38
    s_add_u32 s37, s37, s39
    v_lshl_add_u32 v10, v4, 13, v5
    v_add_u32 v10, s37, v10
    s_movk_i32 s50, {ST}
    s_lshl_b32 s51, 1, 16
    s_mov_b32 m0, 0
    v_lshlrev_b32 v9, 4, v0
    s_setprio 3
    s_waitcnt lgkmcnt(0)
    """)
    stamp()
    a("global_load_lds_dwordx4 v9, s[4:5]\ns_add_u32 m0, m0, s50\ns_nop 0")
    a("L_ldq:")
    for i in range(unq):
        a(f"""global_load_lds_dwordx4 v10, s[10:11] {pol['q']}
        s_add_u32 m0, m0, s50
        v_add_u32 v10, s51, v10""")
    a(f"""s_cmpk_lt_u32 m0, {17*ST}
    s_cbranch_scc1 L_ldq""")
    stamp()
    a(f"""s_lshl_b32 s36, s30, 2
    s_add_u32 s36, s36, s34
    s_cmp_ge_u32 s30, {max(light, 1)}""")
    if warm: a("s_branch L_po1\n.p2align 8,,64\nL_pad1:\ns_branch L_comp\nL_po1:")
    a(f"""s_cselect_b32 s46, 4, 0
    s_sub_u32 s46, s36, s46
    s_cmp_lg_u32 s30, {light}
    s_cselect_b64 s[48:49], -1, 1
    v_mov_b32 v3, {PROG}
    v_lshl_add_u32 v3, v0, 2, v3""")
    info = {"1": (11, 16), "K": (12, 6), "V": (13, 8), "o": (14, 12), "2": (15, 20)}
    setup = {
        "1": f"""s_mul_i32 s37, s35, 64*3584
        s_lshl_b32 s38, s46, 7
        s_add_u32 s37, s37, s38
        v_mul_u32_u24 v11, 3584, v4
        v_add3_u32 v11, v11, v5, s37
        s_movk_i32 s51, 28672""",
        "K": f"""s_lshl_b32 s37, s30, 23
        s_lshl_b32 s38, s31, 15
        s_add_u32 s37, s37, s38
        s_add_u32 s47, s37, 0x700000
        v_lshrrev_b32 v8, 4, v0
        v_and_b32 v9, 15, v0
        v_xor_b32 v6, v9, v8
        v_lshlrev_b32 v6, 4, v6
        v_lshl_add_u32 v12, v8, 8, v6
        s_mul_i32 s37, s31, {rot[0]}
        s_mul_i32 s38, s30, {rot[1]}
        s_add_u32 s37, s37, s38
        s_and_b32 s37, s37, 7
        s_lshl_b32 s37, s37, 12
        s_add_u32 s45, s47, s37
        v_add_u32 v12, s45, v12
        v_mov_b32 v16, 0x7fff
        s_movk_i32 s51, 1024""",
        "V": f"""v_lshlrev_b32 v6, 1, v8
        v_xor_b32 v6, v9, v6
        v_lshlrev_b32 v6, 4, v6
        v_lshl_add_u32 v13, v8, 8, v6
        v_add_u32 v13, s45, v13""",
        "o": f"""v_lshl_add_u32 v15, v4, 10, v5
        s_lshl_b32 s37, s36, 17
        s_add_u32 s37, s37, s39
        v_add_u32 v14, s37, v15
        s_movk_i32 s51, 8192""",
        "2": f"""s_lshl_b32 s37, s46, 16
        s_add_u32 s37, s37, s39
        v_add_u32 v15, s37, v15""",
    }
    for t in order[1:]:
        v, s = info[t]; w = Wd[t]
        r = (w - 1 - idx[t]) % 4
        first = idx[t] + r - w + 1
        a(setup[t])
        if t in "12": a("s_mov_b64 exec, s[48:49]")
        def one():
            a(f"""global_load_lds_dwordx4 v{v}, s[{s}:{s+1}] {pol[t]}
            s_add_u32 m0, m0, s50
            v_add_u32 v{v}, s51, v{v}""")
        nfree = 0
        if t == order[1]:
            nfree = min(8, max(0, w - 16)) // 4 * 4
            for i in range(nfree):
                one()
                if t in "KV" and i % 4 == 3: a(f"v_bfi_b32 v{v}, v16, v{v}, s47")
            a(f"s_waitcnt vmcnt({16 + nfree})"); stamp(); a("s_barrier")
        if nfree < cnt[t]:
            a(f"v_mov_b32 v7, {first + nfree}")
            l = lab("ld")
            a(f"{l}:")
            for i in range(4):
                a(f"s_waitcnt vmcnt({w-1})")
                if i == r: a("ds_max_i32 v3, v7")
                one()
            e = base[t] + cnt[t] * ST
            if t in "KV": a(f"v_bfi_b32 v{v}, v16, v{v}, s47")
            a(f"""v_add_u32 v7, 4, v7
            {'s_cmpk_lt_u32' if e < 65536 else 's_cmp_lt_u32'} m0, {e}
            s_cbranch_scc1 {l}""")
        if t in "12": a("s_mov_b64 exec, -1")
        stamp()
    for b in range(4, NL + 1, 4):
        if b > NL - Wd["2"] and (b <= max(idx['V'] + 32, idx['1'] + 8) or b in (NL, pace_o, pace_h)):
            a(f"v_mov_b32 v7, {b}\ns_waitcnt vmcnt({NL-b})\nds_max_i32 v3, v7")
    stamp()
    event("all")
    a("s_branch L_fin")

    def common():
        a(f"""v_and_b32 v2, 63, v0
        s_lshl_b32 s36, s30, 2
        s_add_u32 s36, s36, s34
        s_mov_b32 s33, {budget}
        v_mov_b32 v3, {PROG}
        """)
        if stamps: a("s_mov_b64 s[56:57], 0\ns_mov_b64 s[58:59], 0")
    nst[0] = 0
    a("L_comp:")
    common()
    a(f"""
    v_lshlrev_b32 v16, 4, v2
    s_sub_u32 s32, s32, 1
    v_and_b32 v20, 15, v2
    v_lshrrev_b32 v21, 4, v2
    v_lshrrev_b32 v22, 2, v20
    v_and_b32 v23, 3, v2
    s_lshl_b32 s38, s30, 13
    s_lshl_b32 s39, s34, 11
    s_add_u32 s38, s38, s39
    s_lshl_b32 s39, s35, 8
    s_lshl_b32 s44, s32, 6
    s_add_u32 s39, s39, s44
    s_add_u32 s38, s38, s39
    s_add_u32 s38, s38, {QB}
    v_lshl_add_u32 v12, v20, 2, s38
    s_lshl_b32 s38, s36, 11
    s_add_u32 s38, s38, s39
    s_add_u32 s38, s38, {HB}
    v_lshl_add_u32 v13, v20, 2, s38
    s_lshl_b32 s38, s30, 16
    s_lshl_b32 s39, s31, 9
    s_add_u32 s38, s38, s39
    s_lshl_b32 s45, s32, 7
    s_add_u32 s38, s38, s45
    s_add_u32 s38, s38, {OB}
    v_lshlrev_b32 v46, 14, v21
    v_lshl_add_u32 v46, v20, 3, v46
    v_add_u32 v46, s38, v46
    s_waitcnt lgkmcnt(0)
    global_load_dword v125, v12, s[28:29] sc1
    global_load_dword v125, v13, s[28:29] sc1
    {"global_load_dword v114, v46, s[28:29] sc1" if opre in (0, 3) else ""}
    """)
    a(f"""
    s_add_u32 s26, s28, {DL}
    s_addc_u32 s27, s29, 0
    s_lshl_b32 s38, s32, 1
    v_lshrrev_b32 v7, 1, v23
    v_add_u32 v4, s38, v7
    v_and_b32 v5, 2, v22
    v_xor_b32 v4, v4, v5
    v_lshlrev_b32 v4, 4, v4
    v_and_b32 v14, 1, v23
    v_lshl_add_u32 v5, v14, 3, v4
    v_lshl_add_u32 v5, v22, 7, v5
    v_mul_u32_u24 v6, {ST}, v21
    v_add_u32 v24, v5, v6
    v_add_u32 v25, {base['o']}, v24
    s_mul_i32 s38, s32, {8*ST}
    s_add_u32 s38, s38, {base['K']}
    v_xor_b32 v4, v21, v23
    v_lshlrev_b32 v4, 4, v4
    v_lshl_add_u32 v4, v23, 8, v4
    v_mul_u32_u24 v5, {ST}, v22
    v_add3_u32 v26, v4, v5, s38
    s_lshl_b32 s38, s32, 2
    v_add_u32 v4, s38, v7
    v_lshlrev_b32 v5, 1, v22
    v_xor_b32 v4, v4, v5
    v_lshlrev_b32 v4, 4, v4
    v_lshl_add_u32 v4, v14, 3, v4
    v_lshl_add_u32 v4, v22, 8, v4
    v_xor_b32 v5, 32, v4
    v_lshlrev_b32 v6, 1, v6
    v_add_u32 v6, {base['V']}, v6
    v_add_u32 v27, v4, v6
    v_add_u32 v28, v5, v6
    v_add_u32 v44, s38, v3""")
    a(f"""v_mov_b32 v19, 0xff
    v_mov_b32 v18, 0x3b000000
    v_mov_b32 v112, v16
    v_add_u32 v16, {XN}, v16
    v_lshlrev_b32 v15, 4, v21
    s_lshl_b32 s38, s34, 8
    s_add_u32 s38, s38, {XN}
    v_add_u32 v17, s38, v15""")
    stamp()
    a("s_barrier")
    stamp()
    a("ds_read_b128 v[8:11], v112\ns_waitcnt lgkmcnt(0)")
    for i in range(4):
        a(f"v_lshlrev_b32 v{32+2*i}, 16, v{8+i}\nv_and_b32 v{33+2*i}, 0xffff0000, v{8+i}")
    a("s_mov_b32 s55, 0\nL_ln:")
    a("""v_pk_mul_f32 v[40:41], v[32:33], v[32:33]
    v_pk_add_f32 v[4:5], v[32:33], v[34:35]
    v_pk_fma_f32 v[40:41], v[34:35], v[34:35], v[40:41]
    v_pk_add_f32 v[6:7], v[36:37], v[38:39]
    v_pk_fma_f32 v[40:41], v[36:37], v[36:37], v[40:41]
    v_pk_add_f32 v[4:5], v[4:5], v[6:7]
    v_pk_fma_f32 v[40:41], v[38:39], v[38:39], v[40:41]
    v_add_f32 v4, v4, v5
    v_add_f32 v5, v40, v41
    s_nop 0""")
    for d in ("row_shr:1", "row_shr:2", "row_shr:4", "row_shr:8"):
        a(f"""v_add_f32_dpp v4, v4, v4 {d} row_mask:0xf bank_mask:0xf bound_ctrl:1
        v_add_f32_dpp v5, v5, v5 {d} row_mask:0xf bank_mask:0xf bound_ctrl:1
        s_nop 0""")
    a(f"""v_add_f32_dpp v4, v4, v4 row_bcast:15 row_mask:0xa bank_mask:0xf
    v_add_f32_dpp v5, v5, v5 row_bcast:15 row_mask:0xa bank_mask:0xf
    s_nop 0
    v_add_f32_dpp v4, v4, v4 row_bcast:31 row_mask:0xc bank_mask:0xf
    v_add_f32_dpp v5, v5, v5 row_bcast:31 row_mask:0xc bank_mask:0xf
    s_nop 0
    v_readlane_b32 s38, v4, 63
    v_readlane_b32 s39, v5, 63
    s_nop 0
    v_mul_f32 v4, s38, v18
    v_mul_f32 v5, s39, v18
    v_fma_f32 v5, -v4, v4, v5
    v_max_f32 v5, 0, v5
    v_cvt_pk_bf16_f32 v4, v4, v5
    v_and_b32 v5, 0xffff0000, v4
    v_lshlrev_b32 v4, 16, v4
    v_add_f32 v5, 0x3727c5ac, v5
    v_cvt_pk_bf16_f32 v5, v5, v5
    v_and_b32 v5, 0xffff0000, v5
    v_sqrt_f32 v6, v5""")
    for i in range(4):
        a(f"v_pk_add_f32 v[{32+2*i}:{33+2*i}], v[{32+2*i}:{33+2*i}], v[4:5] op_sel_hi:[1,0] neg_lo:[0,1] neg_hi:[0,1]")
    a(f"""v_cvt_pk_bf16_f32 v6, v6, v6
    v_and_b32 v6, 0xffff0000, v6
    v_rcp_f32 v6, v6""")
    for i in range(4):
        a(f"v_cvt_pk_bf16_f32 v{40+i}, v{32+2*i}, v{33+2*i}")
    for i in range(4):
        a(f"v_lshlrev_b32 v{32+2*i}, 16, v{40+i}\nv_and_b32 v{33+2*i}, 0xffff0000, v{40+i}")
    for i in range(4):
        a(f"v_pk_mul_f32 v[{32+2*i}:{33+2*i}], v[{32+2*i}:{33+2*i}], v[6:7] op_sel_hi:[1,0]")
    for i in range(4):
        a(f"v_cvt_pk_bf16_f32 v{40+i}, v{32+2*i}, v{33+2*i}")
    a("""ds_write_b128 v16, v[40:43]
    s_cmp_lg_u32 s55, 0
    s_cbranch_scc1 L_ln2""")
    for t in range(4):
        a(f"ds_read_b128 v[{48+4*t}:{51+4*t}], v17 offset:{64*t}")
    for i in range(4):
        a(f"v_lshlrev_b32 v{32+2*i}, 16, v{40+i}\nv_and_b32 v{33+2*i}, 0xffff0000, v{40+i}")
    stamp()
    a(f"""s_lshl_b32 s38, s35, 7
    s_add_u32 s38, s38, {YN}
    v_add_u32 v17, s38, v15
    v_add_u32 v16, 1024, v16
    s_lshl_b32 s38, s30, 13
    s_lshl_b32 s39, s32, 9
    s_add_u32 s38, s38, s39
    s_add_u32 s38, s38, {QB}
    v_lshl_add_u32 v8, v2, 3, s38
    v_add_u32 v9, 4096, v8
    s_mul_i32 s39, s32, 288
    s_add_u32 s39, s39, {QL}
    v_lshl_add_u32 v10, v2, 2, s39
    v_mul_u32_u24 v11, 288, v23
    v_add_u32 v11, v11, v15
    v_add_u32 v11, {QL}, v11
    s_add_u32 s38, s45, {SL}
    v_mul_u32_u24 v47, 576, v23
    v_add3_u32 v47, v47, v15, s38
    v_mul_u32_u24 v115, 576, v22
    v_lshl_add_u32 v115, v23, 7, v115
    v_lshl_add_u32 v115, v21, 5, v115
    v_add_u32 v115, {SL}, v115
    s_lshl_b32 s38, s36, 14
    s_add_u32 s38, s38, s45
    s_add_u32 s38, s38, {OB}
    v_lshrrev_b32 v6, 3, v2
    v_and_b32 v5, 7, v2
    v_lshlrev_b32 v116, 11, v6
    v_lshl_add_u32 v116, v5, 4, v116
    v_add_u32 v116, s38, v116
    s_add_u32 s38, s44, {AL}
    v_mul_u32_u24 v117, 288, v6
    v_lshl_add_u32 v117, v5, 2, v117
    v_add_u32 v117, s38, v117
    v_mov_b32 v118, 0x0c0c0400
    v_mov_b32 v6, 0x04000c0c
    v_cmp_eq_u32 vcc, 1, v14
    v_mul_u32_u24 v119, 288, v5
    v_add_u32 v119, v119, v15
    v_cndmask_b32 v118, v118, v6, vcc
    v_add_u32 v119, {AL}, v119
    v_add_u32 v120, {HL}, v15
    s_lshl_b32 s38, s35, 15
    s_lshr_b32 s39, s36, 4
    s_lshl_b32 s39, s39, 14
    s_add_u32 s38, s38, s39
    s_and_b32 s39, s36, 15
    s_lshl_b32 s39, s39, 9
    s_add_u32 s38, s38, s39
    s_add_u32 s38, s38, s45
    s_add_u32 s38, s38, {FB}
    s_add_u32 s50, s28, 8192
    s_addc_u32 s51, s29, 0
    v_lshl_add_u32 v121, v20, 3, s38
    s_lshl_b32 s52, s32, 3
    s_add_u32 s52, s52, {idx['K'] + 8}""")
    l = lab("wt")
    a(f"{l}:\nds_read_b64 v[4:5], v3 offset:{256+48}")
    tmo()
    a(f"""s_waitcnt lgkmcnt(0)
    v_cmp_eq_u32 vcc, 0, v5
    s_cbranch_vccnz {l}
    v_readfirstlane_b32 s40, v4
    v_lshlrev_b32 v122, 3, v23
    v_lshrrev_b32 v29, v122, v4
    v_lshlrev_b32 v5, 4, v14
    v_lshrrev_b32 v30, v5, v4
    v_lshrrev_b32 v31, 8, v30
    s_getreg_b32 s38, hwreg(HW_REG_XCC_ID, 0, 3)
    s_lshr_b32 s42, s40, 16
    v_mul_u32_u24 v5, s38, v14
    s_xor_b32 s42, s42, s38
    v_xor_b32 v113, v30, v5
    v_cmp_eq_u32 vcc, 2, v23
    v_mul_u32_u24 v5, 7, v14
    v_mov_b32 v6, s38
    v_xor_b32 v144, v19, v5
    v_cndmask_b32 v6, 0, v6, vcc
    v_xor_b32 v145, v29, v6
    s_mov_b32 s54, 0
    v_not_b32 v146, v19
    v_mov_b32 v147, 0x0c0c0400
    """)
    a("; ---- q partial: xn(128 rows) x wq tile")
    wait_prog(idx['q'] + 16)
    stamp()
    event('wq')
    for t in range(4):
        for rd in range(2):
            a(f"ds_read_b64_tr_b16 v[{72+4*t+2*rd}:{73+4*t+2*rd}], v24 offset:{base['q'] + t*4*ST + rd*512}")
    for t in range(4):
        c = "0" if t == 0 else "v[4:7]"
        a(f"s_waitcnt lgkmcnt({lgk(6-2*t)})\nv_mfma_f32_16x16x32_bf16 v[4:7], v[{48+4*t}:{51+4*t}], v[{72+4*t}:{75+4*t}], {c}")
    a(f"""s_mov_b64 exec, 0xffff
    s_mov_b32 s55, 1
    s_nop 5
    v_bfi_b32 v123, v19, v145, v4
    global_store_dword v12, v123, s[28:29] {ast}
    s_mov_b64 exec, -1""")
    stamp()
    def qissue(r):
        a(f"""global_load_dwordx2 v[{r}:{r+1}], v8, s[28:29] sc1
        global_load_dwordx2 v[{r+2}:{r+3}], v8, s[28:29] offset:2048 sc1
        global_load_dwordx2 v[{r+4}:{r+5}], v9, s[28:29] sc1
        global_load_dwordx2 v[{r+6}:{r+7}], v9, s[28:29] offset:2048 sc1""")
        attempts(0)
    def qcheck(r):
        a(f"v_xor_b32 v7, v{r}, v113\nv_xor_b32 v4, v{r+1}, v31")
        for i in range(1, 4):
            a(f"v_bitop3_b32 v7, v7, v{r+2*i}, v113 bitop3:0xf6\nv_bitop3_b32 v4, v4, v{r+2*i+1}, v31 bitop3:0xf6")
        a(f"""v_and_b32 v6, v144, v7
        v_and_or_b32 v4, v4, v19, v6
        v_cmp_ne_u32 vcc, 0, v4""")
        if clean:
            for i in range(8): a(f"v_and_b32 v{r+i}, v146, v{r+i}")
        a(f"""v_pk_add_f32 v[40:41], v[{r}:{r+1}], v[{r+2}:{r+3}]
        v_pk_add_f32 v[42:43], v[{r+4}:{r+5}], v[{r+6}:{r+7}]""")
    def qhB():
        a(f"""s_mov_b64 exec, 0xffff
        global_store_dword v12, v123, s[26:27] sc1
        {"" if late1 else "global_store_dword v13, v124, s[26:27] sc1"}
        s_mov_b64 exec, -1
        s_mov_b32 s54, 1""")
    def ohB():
        a("global_store_dwordx2 v46, v[126:127], s[26:27] sc1")
        if late1:
            a(f"""s_mov_b64 exec, 0xffff
            global_store_dword v13, v124, s[26:27] sc1
            s_mov_b64 exec, -1""")
    qissue(128)
    a(f"""s_cmp_lg_u32 s30, {light}
    s_cbranch_scc1 L_ln
    s_branch L_nomlp1""")
    pad(3, "L_pad4", jump=False)
    a(f"L_foreign:\nds_write_b32 v3, v5 offset:{256+44}\ns_branch L_own\nL_needB:")
    qhB()
    a("s_branch L_wk")
    def mlp1():
        a(f"""ds_read_b128 v[64:67], v17
        ds_read_b128 v[68:71], v17 offset:64""")
        wait_prog(idx['1'] + 8)
        vb, ob = (24, base['1']) if base['1'] + 8 * ST < 65536 else (112, 0)
        for t in range(2):
            for rd in range(2):
                a(f"ds_read_b64_tr_b16 v[{72+4*t+2*rd}:{73+4*t+2*rd}], v{vb} offset:{ob + t*4*ST + rd*512}")
        a(f"""s_waitcnt lgkmcnt(0)
        v_mfma_f32_16x16x32_bf16 v[4:7], v[64:67], v[72:75], 0
        v_mfma_f32_16x16x32_bf16 v[4:7], v[68:71], v[76:79], v[4:7]
        s_mov_b64 exec, 0xffff
        s_nop 6
        v_bfi_b32 v124, v19, v29, v4
        global_store_dword v13, v124, s[28:29] {ast}
        s_mov_b64 exec, -1""")
    a("L_ln2:")
    if not late1: mlp1()
    a(f"L_nomlp1:\nv_add_u32 v112, {base['1']}, v24")
    stamp()
    qissue(136)
    if opre == 1: a("global_load_dword v114, v46, s[28:29] sc1")
    a(f"""ds_read_b32 v4, v3
    s_mov_b32 s47, {KSW // 3}
    s_mov_b32 s55, 0
    s_waitcnt lgkmcnt(0)
    v_readfirstlane_b32 s53, v4
    s_add_u32 s53, s53, {qstag}
    s_min_u32 s53, s53, {NL}""")
    wait_prog("s53")
    a("; ---- gather q of head w (three attempts in flight)")
    a("L_gq:")
    qissue(104)
    tmo()
    a("s_waitcnt vmcnt(8)" if opre != 1 else "s_waitcnt vmcnt(8)")
    qcheck(128)
    a("s_cbranch_vccz L_gqok")
    a(f"""s_sub_u32 s47, s47, 1
    s_cbranch_scc0 L_gq2
    s_mov_b32 s55, {DL}
    v_mov_b32 v5, 1
    ds_write_b32 v3, v5 offset:{256+44}""")
    qhB()
    a("L_gq2:\nv_xor_b32 v8, s55, v8\nv_xor_b32 v9, s55, v9")
    qissue(128)
    a("s_waitcnt vmcnt(8)")
    qcheck(136)
    a("s_cbranch_vccz L_gqok")
    qissue(136)
    a("s_waitcnt vmcnt(8)")
    qcheck(104)
    a("s_cbranch_vccnz L_gq")
    a(f"""L_gqok:
    v_pk_add_f32 v[40:41], v[40:41], v[42:43]
    v_and_b32 v7, 7, v7
    v_mov_b32 v5, 1
    v_cmp_ne_u32 vcc, 0, v7
    v_cvt_pk_bf16_f32 v40, v40, v41
    ds_write_b32 v10, v40
    s_cbranch_vccnz L_foreign
    L_own:
    ds_write_b32 v44, v5 offset:256""")
    stamp()
    event('qgot')
    a(f"""L_wk:
    ds_read_b32 v40, v3
    ds_read_b128 v[4:7], v3 offset:256
    ds_read_b32 v41, v3 offset:{256+44}""")
    for t in range(4):
        a(f"ds_read_b128 v[{48+4*t}:{51+4*t}], v11 offset:{64*t}")
    tmo()
    a(f"""s_waitcnt lgkmcnt({lgk(4)})
    v_readfirstlane_b32 s38, v41
    v_bitop3_b32 v4, v4, v5, v6 bitop3:0x80
    v_cmp_gt_u32 s[60:61], s52, v40
    v_and_b32 v4, v4, v7
    s_min_u32 s38, s38, 1
    s_cmp_gt_u32 s38, s54
    s_cbranch_scc1 L_needB
    v_cmp_eq_u32 vcc, 0, v4
    s_or_b64 s[60:61], vcc, s[60:61]
    s_cbranch_scc1 L_wk""")
    for t in range(4):
        for u in range(2):
            r = 72 + 16*u + 4*t
            a(f"ds_read_b128 v[{r}:{r+3}], v26 offset:{u*4*ST + t*64}")
    for t in range(4):
        for u in range(2):
            c = "0" if t == 0 else f"v[{32+4*u}:{35+4*u}]"
            a(f"s_waitcnt lgkmcnt({lgk(7-2*t-u)})")
            a(f"v_mfma_f32_16x16x32_bf16 v[{32+4*u}:{35+4*u}], v[{72+16*u+4*t}:{75+16*u+4*t}], v[{48+4*t}:{51+4*t}], {c}")
    SC = 0x3e0293ee
    a(f"""s_mov_b32 exec_lo, 0x000f000f
    s_mov_b32 exec_hi, 0x000f000f
    v_mov_b32 v5, 1
    s_mov_b32 s46, {SC}
    s_nop 3
    ds_write_b128 v47, v[32:35]
    ds_write_b128 v47, v[36:39] offset:64
    ds_write_b32 v44, v5 offset:272
    s_mov_b64 exec, -1
    v_mov_b32 v64, 0x3f803f80
    v_mov_b32 v65, v64
    v_mov_b32 v66, v64
    v_mov_b32 v67, v64""")
    stamp()
    if opre in (2, 3): a("global_load_dword v114, v46, s[28:29] sc1")
    if wpre:
        a("global_load_dword v114, v121, s[28:29] sc1")
        if numa: a("global_load_dword v114, v121, s[50:51] sc1")
    pad(4, "L_pad5")
    def vread(t, k):
        ntile, rd = k >> 1, k & 1
        r = 72 + 8*t + 4*ntile + 2*rd
        return f"ds_read_b64_tr_b16 v[{r}:{r+1}], v{27+ntile} offset:{t*8*ST + rd*ST}"
    a("; ---- softmax over the 128 keys of the chunk, P x V")
    a(f"""L_ws:
    ds_read_b128 v[4:7], v3 offset:272
    ds_read_b32 v40, v3
    ds_read_b128 v[32:35], v115
    ds_read_b128 v[36:39], v115 offset:16""")
    tmo()
    a(f"""s_waitcnt lgkmcnt({lgk(2)})
    v_bitop3_b32 v4, v4, v5, v6 bitop3:0x80
    v_readfirstlane_b32 s53, v40
    v_and_b32 v4, v4, v7
    v_cmp_eq_u32 vcc, 0, v4
    s_cbranch_vccnz L_ws
    s_waitcnt lgkmcnt(0)
    v_max3_f32 v4, v32, v33, v34
    v_max3_f32 v5, v35, v36, v37
    v_max3_f32 v4, v4, v38, v39
    v_max_f32 v4, v4, v5
    {vread(0, 0)}
    {vread(0, 1)}
    v_max_f32_dpp v4, v4, v4 quad_perm:[1,0,3,2] row_mask:0xf bank_mask:0xf
    {vread(0, 2)}
    {vread(0, 3)}
    v_max_f32_dpp v4, v4, v4 quad_perm:[2,3,0,1] row_mask:0xf bank_mask:0xf
    v_mov_b32 v5, v4
    {vread(1, 0)}
    {vread(1, 1)}
    v_permlane16_swap_b32 v4, v5
    v_max_f32 v4, v4, v5
    v_mov_b32 v5, v4
    {vread(1, 2)}
    {vread(1, 3)}
    v_permlane32_swap_b32 v4, v5
    v_max_f32 v4, v4, v5
    v_mul_f32 v6, s46, v4""")
    for i in range(8):
        a(f"v_fma_f32 v{32+i}, v{32+i}, s46, -v6")
        if i == 0: a("ds_bpermute_b32 v45, v15, v6")
    for i in range(8):
        a(f"v_exp_f32 v{32+i}, v{32+i}\n{vread(2 + (i >> 2), i & 3)}")
    for i in range(4):
        a(f"v_cvt_pk_bf16_f32 v{40+i}, v{32+2*i}, v{33+2*i}")
    stamp()
    for t in range(4):
        for i in range(4):
            a(f"v_mov_b32_dpp v{48+4*t+i}, v{40+i} quad_perm:[{t},{t},{t},{t}] row_mask:0xf bank_mask:0xf")
            if t == 0 and i == 1: a("v_mfma_f32_16x16x32_bf16 v[68:71], v[40:43], v[64:67], 0")
        sk = lab("vs")
        a(f"s_cmpk_ge_u32 s53, {idx['V'] + 8*(t+1)}\ns_cbranch_scc1 {sk}")
        l = lab("wv")
        a(f"{l}:\nds_read_b32 v4, v3")
        for k in range(4): a(vread(t, k))
        tmo()
        a(f"""s_waitcnt lgkmcnt({lgk(4)})
        v_cmp_gt_u32 vcc, {idx['V'] + 8*(t+1)}, v4
        s_cbranch_vccnz {l}""")
        a(f"{sk}:\ns_waitcnt lgkmcnt(0)")
        for ntile in range(2):
            c = "0" if t == 0 else f"v[{32+4*ntile}:{35+4*ntile}]"
            a(f"v_mfma_f32_16x16x32_bf16 v[{32+4*ntile}:{35+4*ntile}], v[{48+4*t}:{51+4*t}], v[{72+8*t+4*ntile}:{75+8*t+4*ntile}], {c}")
        if t == 1:
            a("""v_pk_add_f32 v[68:69], v[68:69], v[70:71]
            v_add_f32 v68, v68, v69
            v_log_f32 v5, v68
            v_rcp_f32 v6, v68
            v_add_f32 v45, v45, v5
            v_lshrrev_b32 v45, v122, v45""")
            if numa: a(f"ds_read_b32 v7, v3 offset:{256+32}")
        if t == 2 and numa: a("v_mul_u32_u24 v7, v7, v14\nv_xor_b32 v113, v113, v7")
    a(f"""s_nop 6
    v_mul_f32 v32, v32, v6
    v_bfi_b32 v126, v19, v113, v32
    v_mul_f32 v36, v36, v6
    v_bfi_b32 v127, v19, v45, v36
    global_store_dwordx2 v46, v[126:127], s[28:29] {ast}""")
    stamp()
    event('opub')
    def ogather():
        if stamps: a("s_memrealtime s[94:95]")
        for i in range(4):
            a(f"global_load_dwordx4 v[{48+4*i}:{51+4*i}], v116, s[28:29] offset:{512*i} sc1")
        attempts(1)
    if late1:
        a(f"s_cmp_eq_u32 s30, {light}\ns_cbranch_scc1 L_nomlp1b")
        mlp1()
        a("L_nomlp1b:")
    a("; ---- gather the 32 chunk partials of head hq, weight them with exp2(lse - max)")
    if pace_o > idx['V'] + 32: wait_prog(pace_o)
    ogather()
    stamp()
    o2 = base['2'] - base['o']
    a(f"""s_mov_b32 s47, {KSW}
    s_mov_b32 s55, 0
    s_branch L_go1""")
    pad(5, "L_pad6", jump=False)
    a(f"""L_go:
    s_sub_u32 s47, s47, 1
    s_cbranch_scc0 L_go2
    s_mov_b32 s55, {DL}""")
    ohB()
    a("L_go2:\nv_xor_b32 v116, s55, v116")
    ogather()
    def CL(r, t): return f"v_and_b32 v{r}, v146, v{r}" if clean else ""
    a("L_go1:")
    tmo()
    a("s_waitcnt vmcnt(0)")
    if stamps: a("s_memrealtime s[96:97]")
    a(f"""v_xor_b32 v7, s42, v50
    v_xor_b32 v4, s40, v48
    v_bitop3_b32 v7, v7, v54, s42 bitop3:0xf6
    v_bitop3_b32 v4, v4, v52, s40 bitop3:0xf6
    v_bitop3_b32 v7, v7, v58, s42 bitop3:0xf6
    v_bitop3_b32 v4, v4, v56, s40 bitop3:0xf6
    v_bitop3_b32 v7, v7, v62, s42 bitop3:0xf6
    v_bitop3_b32 v4, v4, v60, s40 bitop3:0xf6
    v_and_b32 v6, 0xf0, v7
    v_and_or_b32 v4, v4, v19, v6
    v_cmp_ne_u32 vcc, 0, v4
    v_perm_b32 v40, v51, v49, v118
    v_perm_b32 v41, v55, v53, v118
    s_cbranch_vccnz L_go
    v_perm_b32 v42, v59, v57, v118
    v_perm_b32 v43, v63, v61, v118
    v_or_b32_dpp v40, v40, v40 quad_perm:[1,0,3,2] row_mask:0xf bank_mask:0xf
    v_or_b32_dpp v41, v41, v41 quad_perm:[1,0,3,2] row_mask:0xf bank_mask:0xf
    v_or_b32_dpp v42, v42, v42 quad_perm:[1,0,3,2] row_mask:0xf bank_mask:0xf
    v_or_b32_dpp v43, v43, v43 quad_perm:[1,0,3,2] row_mask:0xf bank_mask:0xf
    v_max_f32 v5, v40, v41
    v_perm_b32 v104, v54, v50, v147
    v_max3_f32 v5, v5, v42, v43
    v_and_b32 v7, 7, v7
    v_cmp_ne_u32 vcc, 0, v7
    v_max_f32_dpp v5, v5, v5 row_ror:8 row_mask:0xf bank_mask:0xf
    v_mov_b32 v6, v5
    {"v_and_b32 v48, v146, v48" if clean else "s_nop 0"}
    {"v_and_b32 v52, v146, v52" if clean else "s_nop 0"}
    v_permlane16_swap_b32 v5, v6
    v_max_f32 v5, v5, v6
    v_mov_b32 v6, v5
    {"v_and_b32 v56, v146, v56" if clean else "s_nop 0"}
    {"v_and_b32 v60, v146, v60" if clean else "s_nop 0"}
    v_permlane32_swap_b32 v5, v6
    v_max_f32 v5, v5, v6
    v_sub_f32 v40, v40, v5
    v_sub_f32 v41, v41, v5
    v_perm_b32 v105, v62, v58, v147
    v_exp_f32 v40, v40
    v_sub_f32 v42, v42, v5
    v_exp_f32 v41, v41
    v_sub_f32 v43, v43, v5
    v_exp_f32 v42, v42
    {CL(50, 96)}
    v_exp_f32 v43, v43
    {CL(54, 98)}
    {CL(58, 100)}
    {CL(62, 102)}
    v_pk_mul_f32 v[32:33], v[48:49], v[40:41] op_sel_hi:[1,0]
    v_pk_mul_f32 v[34:35], v[50:51], v[40:41] op_sel_hi:[1,0]""")
    sel = {1: ("v[40:41]", "op_sel:[0,1,0] op_sel_hi:[1,1,1]"), 2: ("v[42:43]", "op_sel_hi:[1,0,1]"), 3: ("v[42:43]", "op_sel:[0,1,0] op_sel_hi:[1,1,1]")}
    for i in range(1, 4):
        w_, m_ = sel[i]
        a(f"""v_pk_fma_f32 v[32:33], v[{48+4*i}:{49+4*i}], {w_}, v[32:33] {m_}
        v_pk_fma_f32 v[34:35], v[{50+4*i}:{51+4*i}], {w_}, v[34:35] {m_}""")
    a(f"""v_cvt_pk_bf16_f32 v4, v32, v34
    v_cvt_pk_bf16_f32 v5, v33, v35
    ds_write2_b32 v117, v4, v5 offset0:0 offset1:8""")
    stamp()
    event('ogot')
    a(f"""v_pk_add_f32 v[40:41], v[40:41], v[42:43]
    v_add_f32 v40, v40, v41
    s_cbranch_vccz L_coloc""")
    ohB()
    a(f"""L_coloc:
    s_waitcnt lgkmcnt(0)
    s_barrier""")
    stamp()
    for t in range(4):
        a(f"ds_read_b128 v[{128+4*t}:{131+4*t}], v119 offset:{64*t}")
        for rd in range(2):
            a(f"ds_read_b64_tr_b16 v[{72+4*t+2*rd}:{73+4*t+2*rd}], v25 offset:{t*4*ST + rd*512}")
        if t == 0: a("v_add_f32_dpp v40, v40, v40 row_ror:8 row_mask:0xf bank_mask:0xf\nv_mov_b32 v41, v40")
        if t == 1: a("v_permlane16_swap_b32 v40, v41\nv_add_f32 v40, v40, v41\nv_mov_b32 v41, v40")
        if t == 2: a("v_permlane32_swap_b32 v40, v41\nv_add_f32 v40, v40, v41\nv_rcp_f32 v40, v40")
    a(f"s_waitcnt lgkmcnt({lgk(9)})\nv_mfma_f32_16x16x32_bf16 v[32:35], v[128:131], v[72:75], 0")
    for t in range(2):
        a(f"ds_read_b128 v[{64+4*t}:{67+4*t}], v120 offset:{64*t}")
        for rd in range(2):
            a(f"ds_read_b64_tr_b16 v[{88+4*t+2*rd}:{89+4*t+2*rd}], v25 offset:{o2 + t*4*ST + rd*512}")
    for t in range(1, 4):
        c = "v[32:35]"
        a(f"s_waitcnt lgkmcnt({lgk(15-3*t)})\nv_mfma_f32_16x16x32_bf16 v[32:35], v[{128+4*t}:{131+4*t}], v[{72+4*t}:{75+4*t}], {c}")
    a(f"""s_waitcnt lgkmcnt(0)
    v_mfma_f32_16x16x32_bf16 v[36:39], v[64:67], v[88:91], 0
    v_mfma_f32_16x16x32_bf16 v[36:39], v[68:71], v[92:95], v[36:39]""")
    a(f"""s_nop 4
    v_pk_add_f32 v[32:33], v[32:33], v[34:35]
    v_add_f32 v4, v32, v33
    v_add_f32 v6, v32, v33
    s_cmp_lg_u32 s30, {light}
    s_cselect_b32 s38, -1, 0
    v_permlane16_swap_b32 v4, v6
    v_add_f32 v4, v4, v6
    s_mov_b64 exec, 0xffff
    v_mul_f32 v4, v4, v40
    v_and_b32 v5, s38, v36
    v_bfi_b32 v4, v19, v30, v4
    v_bfi_b32 v5, v19, v31, v5
    global_store_dwordx2 v121, v[4:5], s[28:29] {fst}
    {"global_store_dwordx2 v121, v[4:5], s[50:51] " + fst if numa else ""}
    s_mov_b64 exec, -1""")
    stamp()
    if numa and (oracle is None or t_wait):
        a(f"""s_cmp_lg_u32 s32, 0
        s_cbranch_scc1 L_fin
        s_and_b32 s38, s42, 8
        s_mul_i32 s38, s38, 0x101
        v_xor_b32 v104, s38, v104
        v_xor_b32 v105, s38, v105
        v_and_b32 v4, 8, v104
        v_and_b32 v5, 0x800, v104
        v_and_b32 v6, 8, v105
        v_and_b32 v7, 0x800, v105
        v_cmp_ne_u32 s[60:61], 0, v4
        v_cmp_ne_u32 s[52:53], 0, v5
        v_cmp_ne_u32 s[48:49], 0, v6
        v_cmp_ne_u32 vcc, 0, v7
        s_bcnt1_i32_b64 s38, s[60:61]
        s_bcnt1_i32_b64 s39, s[52:53]
        s_add_u32 s38, s38, s39
        s_bcnt1_i32_b64 s39, s[48:49]
        s_add_u32 s38, s38, s39
        s_bcnt1_i32_b64 s39, vcc
        s_add_u32 s38, s38, s39
        s_cmpk_gt_u32 s38, 128
        s_cselect_b32 s38, 8193, 1
        v_mov_b32 v4, s38
        ds_write_b32 v3, v4 offset:{256+36}""")
    a("s_branch L_fin")

    nst[0] = 0
    a("L_aux:")
    common()
    a(f"""v_mov_b32 v4, 0
    v_lshl_add_u32 v5, v2, 2, v3
    ds_write_b32 v5, v4
    ds_write_b32 v5, v4 offset:64
    s_cmp_ge_u32 s30, {max(light, 1)}
    s_cselect_b32 s38, 4, 0
    s_sub_u32 s38, s36, s38
    s_lshl_b32 s38, s38, 7
    v_lshl_add_u32 v6, v2, 1, s38
    s_lshl_b32 s48, s34, 3
    s_add_u32 s48, s48, s30
    s_lshl_b32 s48, s48, 2
    s_and_b32 s38, s31, 3
    s_add_u32 s48, s48, s38
    s_lshl_b32 s38, s48, 3
    v_lshrrev_b32 v20, 5, v2
    v_and_b32 v21, 1, v2
    v_lshlrev_b32 v4, 2, v20
    v_lshl_add_u32 v4, v21, 1, v4
    v_add_u32 v12, s38, v4
    s_waitcnt lgkmcnt(0)
    s_load_dword s37, s[28:29], 0
    s_cmp_eq_u32 s30, {light}
    s_cbranch_scc1 L_aux0
    global_load_ushort v8, v6, s[18:19]
    L_aux0:
    global_load_ushort v9, v12, s[4:5]
    global_load_ushort v10, v12, s[22:23]""")
    stamp()
    a(f"""s_barrier
    v_mov_b32 v5, 1
    v_mov_b32 v19, 0xff
    s_lshr_b32 s38, s48, 4
    s_lshl_b32 s38, s38, 15
    s_and_b32 s39, s48, 15
    s_lshl_b32 s39, s39, 5
    s_add_u32 s38, s38, s39
    s_add_u32 s38, s38, {FB}
    v_and_b32 v22, 15, v2
    v_bfe_u32 v23, v2, 4, 1
    v_lshlrev_b32 v17, 9, v22
    v_lshl_add_u32 v17, v23, 14, v17
    v_lshl_add_u32 v17, v20, 4, v17
    v_add_u32 v17, s38, v17
    v_cmp_eq_u32 s[46:47], 1, v21
    s_waitcnt lgkmcnt(0)
    s_add_u32 s37, s37, 1
    s_mul_i32 s40, s37, 0x9E3779B1
    v_mov_b32 v4, s40
    ds_write_b64 v3, v[4:5] offset:{256+48}
    s_lshr_b32 s41, s40, 8
    s_lshr_b32 s42, s40, 16
    s_lshr_b32 s43, s40, 24
    v_and_b32 v4, 3, v2
    v_lshlrev_b32 v4, 3, v4
    v_lshrrev_b32 v29, v4, s40""")
    stamp()
    def probe_store():
        a(f"""s_lshr_b32 s38, s2, 4
        s_lshl_b32 s38, s38, 14
        s_and_b32 s39, s2, 15
        s_lshl_b32 s39, s39, 9
        s_add_u32 s38, s38, s39
        s_add_u32 s38, s38, {PB}
        s_add_u32 s52, s28, s38
        s_addc_u32 s53, s29, 0""")
    def race():
        a("s_mov_b32 s44, s40\ns_mov_b32 s45, s40")
        for i in range(0, 2 * nrace, 2): a(f"s_mov_b64 s[{72+i}:{73+i}], s[44:45]")
        a("s_movk_i32 s39, 200")
        for i in range(nrace):
            for par in ((0, 1) if i in (0, 3) else (1, 0)):
                a(f"s_load_dword s{72 + nrace*par + i}, s[52:53], {8192*par + 128*i}")
        a("L_race:")
        for i in range(0, nrace, 2):
            a(f"""s_cmp_lg_u64 s[{72+i}:{73+i}], s[44:45]
            s_cbranch_scc1 L_near0""")
            if i + 2 >= nrace: a("s_sub_u32 s39, s39, 1\ns_cbranch_scc1 L_near0")
            a(f"s_cmp_lg_u64 s[{72+nrace+i}:{73+nrace+i}], s[44:45]")
            a("s_cbranch_scc1 L_near1" if i + 2 < nrace else "s_cbranch_scc0 L_race")
        a(f"""L_near1:
        {"s_mov_b32 s57, 1" if stamps else ""}
        v_mov_b32 v4, 8
        ds_write_b32 v3, v4 offset:{256+32}
        L_near0:
        s_waitcnt lgkmcnt(0)""")
    if oracle is not None:
        a(f"""s_getreg_b32 s38, hwreg(HW_REG_XCC_ID, 2, 1)
        s_xor_b32 s38, s38, {oracle}
        s_lshl_b32 s38, s38, 13
        v_add_u32 v17, s38, v17
        {"" if wpre else "global_load_dword v40, v17, s[28:29] sc1"}""")
        race_at = None
        if t_pre2: a("v_xor_b32 v18, 0x2000, v17\nglobal_load_dword v40, v18, s[28:29] sc1")
        if t_race:
            probe_store(); race_at = 'gh'
    elif numa:
        if not wpre: a("v_add_u32 v18, 8192, v17\nglobal_load_dword v40, v17, s[28:29] sc1\nglobal_load_dword v40, v18, s[28:29] sc1")
        probe_store()
    elif not wpre: a("global_load_dword v40, v17, s[28:29] sc1")
    if numa and race_at == 'T': race()
    if warm: a("s_branch L_pad3\nL_auxw:")
    stamp()
    if numa and race_at == 'walk': race()
    if extra_dirty:
        a(f"s_lshl_b32 s38, s2, 12\ns_add_u32 s38, s38, 0x400000\nv_lshl_add_u32 v16, v2, 4, s38")
        for i in range(extra_dirty):
            a(f"global_store_dwordx4 v16, v[32:35], s[28:29] offset:{1024*i}")
    def hloads():
        for p_ in range(8):
            a(f"global_load_dword v{32+p_}, v16, s[28:29] offset:{256*p_} sc1")
    a(f"""s_lshl_b32 s38, s36, 11
    s_add_u32 s38, s38, {HB}
    v_lshl_add_u32 v16, v2, 2, s38
    s_mov_b32 s49, {KSW}
    s_mov_b32 s55, 0""")
    wait_prog(pace_h)
    a(f"""s_cmp_eq_u32 s30, {light}
    s_cbranch_scc1 L_noh""")
    hloads()
    a("L_noh:")
    if numa and race_at == 'gh': race()
    a(f"""s_cmp_eq_u32 s30, {light}
    s_cbranch_scc1 L_aux1
    s_branch L_ghc
    L_gh:
    s_sub_u32 s49, s49, 1
    s_cselect_b32 s55, {DL}, s55
    v_xor_b32 v16, s55, v16""")
    hloads()
    a("L_ghc:")
    attempts(0)
    tmo()
    a(f"""s_waitcnt vmcnt(0)
    v_xor_b32 v4, v32, v29""")
    for p_ in range(1, 8):
        a(f"v_bitop3_b32 v4, v4, v{32+p_}, v29 bitop3:0xf6")
    C1 = 0xc0135761
    C2 = 0xbdd2d3e8
    a(f"""v_and_b32 v4, v19, v4
    v_cmp_ne_u32 vcc, 0, v4
    s_cbranch_vccnz L_gh""")
    if clean:
        for i in range(8): a(f"v_and_b32 v{32+i}, 0xffffff00, v{32+i}")
    a(f"""    v_pk_add_f32 v[32:33], v[32:33], v[34:35]
    v_pk_add_f32 v[36:37], v[36:37], v[38:39]
    v_pk_add_f32 v[32:33], v[32:33], v[36:37]
    v_add_f32 v32, v32, v33
    v_cvt_pk_bf16_f32 v32, v32, v32
    v_and_b32 v32, 0xffff0000, v32
    v_lshlrev_b32 v8, 16, v8
    v_add_f32 v32, v32, v8
    v_cvt_pk_bf16_f32 v32, v32, v32
    v_and_b32 v32, 0xffff0000, v32
    v_mul_f32 v33, v32, v32
    v_mov_b32 v34, {C1}
    v_fmac_f32 v34, {C2}, v33
    v_mul_f32 v33, v34, v32
    v_exp_f32 v33, v33
    v_lshlrev_b32 v5, 1, v2
    v_add_f32 v33, 1.0, v33
    v_rcp_f32 v33, v33
    v_add_u32 v5, {HL}, v5
    v_mul_f32 v32, v32, v33
    v_cvt_pk_bf16_f32 v32, v32, v32
    ds_write_b16 v5, v32
""")
    pad(6, "L_auxw")
    a("L_aux1:")
    stamp()
    if numa and race_at == 'h': race()
    if fpre_late:
        wait_prog(72)
        a("global_load_dword v40, v17, s[28:29] sc1")
    a(f"""s_waitcnt vmcnt(0) lgkmcnt(0)
    v_lshlrev_b32 v9, 16, v9
    v_lshlrev_b32 v10, 16, v10
    s_and_b32 s40, s40, 0xff
    s_and_b32 s41, s41, 0xff
    s_and_b32 s42, s42, 0xff
    s_barrier
    s_bitcmp1_b32 s31, 2
    s_cbranch_scc1 L_fin""")
    if numa and (oracle is None or t_wait):
        wait_flag1(36)
        if oracle is None: a("v_add_u32 v17, v17, v4\nv_add_u32 v17, -1, v17")
        if stamps: a("v_readfirstlane_b32 s59, v4")
    stamp()
    regs = [32 + 4 * i for i in range(nfin)]
    for r in regs[:-1]:
        a(f"global_load_dwordx4 v[{r}:{r+3}], v17, s[28:29] sc1")
    a("L_gf:")
    for k in range(nfin):
        r = regs[k]; rn = regs[(k - 1) % nfin]
        if stamps: a("s_memrealtime s[94:95]")
        a(f"global_load_dwordx4 v[{rn}:{rn+3}], v17, s[28:29] sc1")
        attempts(2)
        if k == 0: tmo()
        a(f"""s_waitcnt vmcnt({nfin-1})
        v_xor_b32 v{r}, s40, v{r}
        v_xor_b32 v{r+1}, s41, v{r+1}
        v_xor_b32 v{r+2}, s42, v{r+2}
        v_xor_b32 v{r+3}, s43, v{r+3}
        v_or3_b32 v4, v{r}, v{r+1}, v{r+2}
        v_bitop3_b32 v4, v4, v{r+3}, v19 bitop3:0xa8
        v_cmp_ne_u32 vcc, 0, v4""")
        for i in range(4):
            a(f"v_add_f32_dpp v{48+i}, v{r+i}, v{r+i} row_ror:1 row_mask:0xf bank_mask:0xf")
        a("s_cbranch_vccz L_gfok" if k < nfin - 1 else "s_cbranch_vccnz L_gf")
    a("L_gfok:")
    stamp()
    for d in (2, 4, 8):
        for i in range(4):
            a(f"v_add_f32_dpp v{48+i}, v{48+i}, v{48+i} row_ror:{d} row_mask:0xf bank_mask:0xf")
    for i in range(4):
        a(f"v_add_f32_dpp v{48+i}, v{48+i}, v{48+i} row_bcast:15 row_mask:0xa bank_mask:0xf")
    a(f"""v_cndmask_b32 v48, v48, v50, s[46:47]
    v_cndmask_b32 v49, v49, v51, s[46:47]
    v_cvt_pk_bf16_f32 v48, v48, v49
    v_and_b32 v49, 0xffff0000, v48
    v_add_f32 v49, v49, v10
    v_cvt_pk_bf16_f32 v49, v49, v49
    v_and_b32 v49, 0xffff0000, v49
    v_mul_f32 v50, 0xbfb8aa3b, v49
    v_exp_f32 v50, v50
    v_lshlrev_b32 v48, 16, v48
    v_add_f32 v50, 1.0, v50
    v_rcp_f32 v50, v50
    s_mov_b32 exec_lo, 0x00030000
    v_mul_f32 v49, v49, v50
    v_cvt_pk_bf16_f32 v49, v49, v49
    v_and_b32 v49, 0xffff0000, v49
    v_mul_f32 v48, v48, v49
    v_cvt_pk_bf16_f32 v48, v48, v48
    s_mov_b32 exec_hi, 0x00030000
    v_and_b32 v48, 0xffff0000, v48
    v_add_f32 v48, v48, v9
    v_cvt_pk_bf16_f32 v48, v48, v48
    @DIAG@
    global_store_short v12, v48, s[24:25] {outst}
    s_cmp_lg_u32 s2, 0
    s_cbranch_scc1 L_fin
    v_mov_b32 v4, 0
    v_mov_b32 v5, s37
    s_mov_b64 exec, 0x10000
    global_store_dword v4, v5, s[28:29]""")
    a("L_fin:")
    if stamps:
        a("s_memrealtime s[92:93]")
        a("s_mov_b64 exec, -1\ns_waitcnt lgkmcnt(0)\nv_mov_b32 v5, 0\nv_writelane_b32 v5, s62, 0")
        for i in range(15):
            a(f"v_writelane_b32 v5, s{64+2*i}, {i+1}")
        a(f"""v_writelane_b32 v5, s33, 17
        s_getreg_b32 s38, hwreg(HW_REG_XCC_ID)
        v_writelane_b32 v5, s38, 18
        v_writelane_b32 v5, s56, 19
        v_writelane_b32 v5, s57, 20
        v_writelane_b32 v5, s58, 21
        v_writelane_b32 v5, s59, 24
        v_writelane_b32 v5, s94, 22
        v_writelane_b32 v5, s96, 23
        s_lshl_b32 s38, s2, 10
        s_add_u32 s38, s38, {TS_OFF}
        v_lshrrev_b32 v1, 6, v0
        v_and_b32 v2, 63, v0
        v_lshlrev_b32 v4, 7, v1
        v_lshl_add_u32 v4, v2, 2, v4
        v_add_u32 v4, s38, v4
        s_mov_b64 exec, 0xffffffff
        global_store_dword v4, v5, s[28:29]""")
    a("L_exit:")
    dg = []
    if diag:
        dg = ["L_dg:", f"{diag[0]} s[62:63]", "s_waitcnt lgkmcnt(0)", "s_sub_u32 s62, s62, s60", f"s_cmp_lt_u32 s62, {diag[1]}", "s_cbranch_scc1 L_dg"]
    if evt:
        dg = ["s_mov_b64 s[64:65], exec", "s_mov_b64 exec, -1", f"ds_read_b32 v4, v3 offset:{256+40}", "s_waitcnt lgkmcnt(0)", "v_readfirstlane_b32 s60, v4", "s_mov_b64 exec, s[64:65]",
              "L_dg:", "s_memrealtime s[62:63]", "s_waitcnt lgkmcnt(0)", "s_sub_u32 s62, s62, s60", f"s_cmp_lt_u32 s62, {evt[1]}", "s_cbranch_scc1 L_dg"]
    i_ = L.index("@DIAG@"); L[i_:i_+1] = dg
    body = "\n".join(("" if x.endswith(":") or x.startswith(";") else "    ") + x for x in L)
    return f"""{HEADER}; @launch grid=(256,1,1) block=(384,1,1) lds={LDS_TOTAL}
; One launch, 256 workgroups (one per CU), 6 waves each. Workgroup b: h = b&7 (kv head), c = b>>3 (128-key chunk),
; hq = 4h + (c>>3), j = c&7.
;            bounded number of loads in flight) and reports its progress in an LDS word
; Hand-offs between workgroups go through d_ws. Every 8-byte unit carries tag bits derived from an epoch word that the
; the head report the same id, write-through copies are stored too and readers poll both copies after a number of
; failed polls, so the result does not depend on workgroup placement. The last hand-off (write-through) is stored twice, once per
.amdgcn_target "amdgcn-amd-amdhsa--gfx950"
.text
.globl {KN}_kernel
.p2align 8
.type {KN}_kernel,@function
{KN}_kernel:
{body}
    s_endpgm
.section .rodata,"a"
.p2align 6
.amdhsa_kernel {KN}_kernel
  .amdhsa_next_free_vgpr 152
  .amdhsa_next_free_sgpr 98
  .amdhsa_accum_offset 152
  .amdhsa_group_segment_fixed_size 0
  .amdhsa_kernarg_size 104
  .amdhsa_user_sgpr_count 2
  .amdhsa_user_sgpr_kernarg_segment_ptr 1
  .amdhsa_system_sgpr_workgroup_id_x 1
.end_amdhsa_kernel
"""
if __name__ == "__main__":
    import argparse, json
    ap = argparse.ArgumentParser()
    ap.add_argument("out"); ap.add_argument("--kw", default="{}")
    x = ap.parse_args()
    open(x.out, "w").write(gen(**json.loads(x.kw)))
```

```python
import sys
KN = "recurrent_scan__sliding_block_cached__mixer_channel_mlp__decode"
HEADER = open("cdna_kernels/%s.s.ref" % KN).read().split("; Override launch")[0]

ST = 1088
QB, HB, OB, FB = 0x10000, 0x20000, 0x40000, 0xC0000
PB = 0x1C0000
DL = 0x100000
TS_OFF = 0x8000000
C_ = [1, 2, 3, 4]
STAMPS = {'wq': (C_, 4), 'qgot': (C_, 7), 'smax': (C_, 9), 'opub': (C_, 10), 'all': ([0], 9), 'ogot': (C_, 12), 'hdone': ([5], 4), 'fpub': (C_, 14), 'fgot': ([5], 6)}
WAVE_GROUPS = {'loader': [0], 'comp': [1, 2, 3, 4], 'aux': [5]}

def gen(W=20, nt="nt", stamps=False, budget=1000000, pace_h=56, KSW=64, warm=True, qstag=12, nfin=2, extra_dirty=0, pace_o=104, noB=False, diag=None, rot=(3, 1), fpre=True, fst="sc1", opre=2, fpre_late=False, ast="", outst="", unq=2, late1=False, evt=None, light=7, numa=True, force=None, race_at='gh', oracle=None, vote=True, t_store=False, t_noqB=False, t_pre2=False, t_race=False, nrace=4, t_wait=False, redonly=False, wpre=True, clean=True, remap_test=None, lay=2, cprio=0, lprio=3):
    order = "qKV1o2" if late1 else "q1KVo2"
    Wd = {"1": 20, "K": 20, "V": 22, "o": 16, "2": 12}
    if isinstance(W, int): Wd = {k: W for k in Wd}
    elif W: Wd.update(W)
    pol = {t: nt for t in order} if isinstance(nt, str) else {t: nt.get(t, "") for t in order}
    L = []
    def a(s):
        for x in s.split("\n"):
            x = x.strip()
            if x: L.append(x)
    cnt = {"q": 16, "1": 8, "K": 32, "V": 32, "o": 16, "2": 8}
    idx = {}; p = 0
    for t in order:
        idx[t] = p; p += cnt[t]
    NL = p
    base = {t: (idx[t] + 1) * ST for t in order}
    END = (NL + 1) * ST
    PROG = END
    FLG = PROG + 256
    XN = FLG + 64
    YN = XN + 1024
    QL = YN + 1024
    SL = QL + 4 * 288
    AL = SL + 4 * 576
    HL = AL + 8 * 288
    LDS_TOTAL = HL + 128
    assert LDS_TOTAL <= 163840
    nst = [0]
    def stamp():
        if stamps:
            a(f"s_memrealtime s[{64+2*nst[0]}:{65+2*nst[0]}]")
        nst[0] += 1
        assert nst[0] <= 15
    def lgk(n): return 0 if stamps else n
    def event(name):
        if evt and evt[0] == name:
            a(f"""s_memrealtime s[62:63]
            v_mov_b32 v4, {FLG + 40}
            s_waitcnt lgkmcnt(0)
            v_mov_b32 v5, s62
            ds_max_u32 v4, v5
            s_waitcnt lgkmcnt(0)""")
    uid = [0]
    def lab(p):
        uid[0] += 1
        return f"L_{p}{uid[0]}"
    def tmo(padn=None):
        a("s_sub_u32 s33, s33, 1")
        if padn and warm: a(f"L_pad{padn}:")
        a("s_cbranch_scc1 L_fin")
    def pad(n, target, jump=True):
        if warm:
            if jump: a(f"s_branch L_po{n}")
            a(f"L_pad{n}:\ns_branch {target}")
            if jump: a(f"L_po{n}:")
    def wait_prog(th):
        l = lab("wp")
        a(f"{l}:\nds_read_b32 v4, v3")
        tmo()
        a(f"""s_waitcnt lgkmcnt(0)
        v_cmp_gt_u32 vcc, {th}, v4
        s_cbranch_vccnz {l}""")
    def wait_flags(off, padn=None):
        l = lab("wf")
        a(f"{l}:\nds_read_b128 v[4:7], v3 offset:{256+off}")
        tmo(padn)
        a(f"""s_waitcnt lgkmcnt(0)
        v_bitop3_b32 v4, v4, v5, v6 bitop3:0x80
        v_and_b32 v4, v4, v7
        v_cmp_eq_u32 vcc, 0, v4
        s_cbranch_vccnz {l}""")
    def wait_flag1(off):
        l = lab("w1")
        a(f"{l}:\nds_read_b32 v4, v3 offset:{256+off}")
        tmo()
        a(f"""s_waitcnt lgkmcnt(0)
        v_cmp_eq_u32 vcc, 0, v4
        s_cbranch_vccnz {l}""")
    def attempts(i):
        if stamps: a(f"s_add_u32 s{56+i}, s{56+i}, 1")

    if diag: a(f"{diag[0]} s[60:61]")
    if stamps: a("s_memrealtime s[62:63]")
    if remap_test:
        sh, mask = remap_test
        a(f"s_lshr_b32 s3, s2, {sh}\ns_and_b32 s3, s3, {mask}\ns_xor_b32 s2, s2, s3")
    a(f"""
    s_load_dwordx16 s[4:19], s[0:1], 0
    s_load_dwordx8 s[20:27], s[0:1], 64
    s_load_dwordx2 s[28:29], s[0:1], 96
    v_readfirstlane_b32 s32, v0
    s_lshr_b32 s31, s2, 3
    s_cmp_ge_u32 s31, 32
    s_cbranch_scc1 L_exit
    s_and_b32 s30, s2, 7
    s_lshr_b32 s34, s31, 3
    s_and_b32 s35, s31, 7
    s_lshr_b32 s32, s32, 6
""")
    if warm: a("s_cmp_eq_u32 s32, 1\ns_cbranch_scc1 L_pad1")
    a(f"s_cmp_eq_u32 s32, 5\ns_cbranch_scc1 L_aux\ns_cmp_lg_u32 s32, 0\ns_cbranch_scc1 L_comp")
    a(f"""
    v_lshrrev_b32 v4, 3, v0
    v_and_b32 v5, 7, v0
    v_and_b32 v6, 2, v4
    v_xor_b32 v5, v5, v6
    v_lshlrev_b32 v5, 4, v5
    s_lshl_b32 s37, s34, 20
    s_lshl_b32 s38, s30, 10
    s_lshl_b32 s39, s35, 7
    s_add_u32 s37, s37, s38
    s_add_u32 s37, s37, s39
    v_lshl_add_u32 v10, v4, 13, v5
    v_add_u32 v10, s37, v10
    s_movk_i32 s50, {ST}
    s_lshl_b32 s51, 1, 16
    s_mov_b32 m0, 0
    v_lshlrev_b32 v9, 4, v0
    s_setprio {lprio}
    s_waitcnt lgkmcnt(0)
    """)
    stamp()
    a("global_load_lds_dwordx4 v9, s[4:5]\ns_add_u32 m0, m0, s50\ns_nop 0")
    a("L_ldq:")
    for i in range(unq):
        a(f"""global_load_lds_dwordx4 v10, s[10:11] {pol['q']}
        s_add_u32 m0, m0, s50
        v_add_u32 v10, s51, v10""")
    a(f"""s_cmpk_lt_u32 m0, {17*ST}
    s_cbranch_scc1 L_ldq""")
    stamp()
    a(f"""s_lshl_b32 s36, s30, 2
    s_add_u32 s36, s36, s34
    s_cmp_ge_u32 s30, {max(light, 1)}""")
    if warm: a("s_branch L_po1\n.p2align 8,,64\nL_pad1:\ns_branch L_comp\nL_po1:")
    a(f"""s_cselect_b32 s46, 4, 0
    s_sub_u32 s46, s36, s46
    s_cmp_lg_u32 s30, {light}
    s_cselect_b64 s[48:49], -1, 1
    v_mov_b32 v3, {PROG}
    v_lshl_add_u32 v3, v0, 2, v3""")
    info = {"1": (11, 16), "K": (12, 6), "V": (13, 8), "o": (14, 12), "2": (15, 20)}
    setup = {
        "1": f"""s_mul_i32 s37, s35, 64*3584
        s_lshl_b32 s38, s46, 7
        s_add_u32 s37, s37, s38
        v_mul_u32_u24 v11, 3584, v4
        v_add3_u32 v11, v11, v5, s37
        s_movk_i32 s51, 28672""",
        "K": f"""s_lshl_b32 s37, s30, 23
        s_lshl_b32 s38, s31, 15
        s_add_u32 s37, s37, s38
        s_add_u32 s47, s37, 0x700000
        v_lshrrev_b32 v8, 4, v0
        v_and_b32 v9, 15, v0
        v_xor_b32 v6, v9, v8
        v_lshlrev_b32 v6, 4, v6
        v_lshl_add_u32 v12, v8, 8, v6
        s_mul_i32 s37, s31, {rot[0]}
        s_mul_i32 s38, s30, {rot[1]}
        s_add_u32 s37, s37, s38
        s_and_b32 s37, s37, 7
        s_lshl_b32 s37, s37, 12
        s_add_u32 s45, s47, s37
        v_add_u32 v12, s45, v12
        v_mov_b32 v16, 0x7fff
        s_movk_i32 s51, 1024""",
        "V": f"""v_lshlrev_b32 v6, 1, v8
        v_xor_b32 v6, v9, v6
        v_lshlrev_b32 v6, 4, v6
        v_lshl_add_u32 v13, v8, 8, v6
        v_add_u32 v13, s45, v13""",
        "o": f"""v_lshl_add_u32 v15, v4, 10, v5
        s_lshl_b32 s37, s36, 17
        s_add_u32 s37, s37, s39
        v_add_u32 v14, s37, v15
        s_movk_i32 s51, 8192""",
        "2": f"""s_lshl_b32 s37, s46, 16
        s_add_u32 s37, s37, s39
        v_add_u32 v15, s37, v15""",
    }
    for t in order[1:]:
        v, s = info[t]; w = Wd[t]
        r = (w - 1 - idx[t]) % 4
        first = idx[t] + r - w + 1
        a(setup[t])
        if t in "12": a("s_mov_b64 exec, s[48:49]")
        def one():
            a(f"""global_load_lds_dwordx4 v{v}, s[{s}:{s+1}] {pol[t]}
            s_add_u32 m0, m0, s50
            v_add_u32 v{v}, s51, v{v}""")
        nfree = 0
        if t == order[1]:
            nfree = min(8, max(0, w - 16)) // 4 * 4
            for i in range(nfree):
                one()
                if t in "KV" and i % 4 == 3: a(f"v_bfi_b32 v{v}, v16, v{v}, s47")
            a(f"s_waitcnt vmcnt({16 + nfree})"); stamp(); a("s_barrier")
        if nfree < cnt[t]:
            a(f"v_mov_b32 v7, {first + nfree}")
            l = lab("ld")
            a(f"{l}:")
            for i in range(4):
                a(f"s_waitcnt vmcnt({w-1})")
                if i == r: a("ds_max_i32 v3, v7")
                one()
            e = base[t] + cnt[t] * ST
            if t in "KV": a(f"v_bfi_b32 v{v}, v16, v{v}, s47")
            a(f"""v_add_u32 v7, 4, v7
            {'s_cmpk_lt_u32' if e < 65536 else 's_cmp_lt_u32'} m0, {e}
            s_cbranch_scc1 {l}""")
        if t in "12": a("s_mov_b64 exec, -1")
        stamp()
    for b in range(4, NL + 1, 4):
        if b > NL - Wd["2"] and (b <= max(idx['V'] + 32, idx['1'] + 8) or b in (NL, pace_o, pace_h)):
            a(f"v_mov_b32 v7, {b}\ns_waitcnt vmcnt({NL-b})\nds_max_i32 v3, v7")
    stamp()
    event("all")
    a("s_branch L_fin")

    def common():
        a(f"""v_and_b32 v2, 63, v0
        s_lshl_b32 s36, s30, 2
        s_add_u32 s36, s36, s34
        s_mov_b32 s33, {budget}
        v_mov_b32 v3, {PROG}
        """)
        if stamps: a("s_mov_b64 s[56:57], 0\ns_mov_b64 s[58:59], 0")
    nst[0] = 0
    a("L_comp:")
    if cprio: a(f"s_setprio {cprio}")
    common()
    a(f"""
    v_lshlrev_b32 v16, 4, v2
    s_sub_u32 s32, s32, 1
    v_and_b32 v20, 15, v2
    v_lshrrev_b32 v21, 4, v2
    v_lshrrev_b32 v22, 2, v20
    v_and_b32 v23, 3, v2
    s_lshl_b32 s38, s30, 13
    s_lshl_b32 s39, s34, 11
    s_add_u32 s38, s38, s39
    s_lshl_b32 s39, s35, 8
    s_lshl_b32 s44, s32, 6
    s_add_u32 s39, s39, s44
    s_add_u32 s38, s38, s39
    s_add_u32 s38, s38, {QB}
    v_lshl_add_u32 v12, v20, 2, s38
    s_lshl_b32 s38, s36, 11
    s_add_u32 s38, s38, s39
    s_add_u32 s38, s38, {HB}
    v_lshl_add_u32 v13, v20, 2, s38
    s_lshl_b32 s38, s30, 16
    s_lshl_b32 s39, s31, 9
    s_add_u32 s38, s38, s39
    s_lshl_b32 s45, s32, 7
    s_add_u32 s38, s38, s45
    s_add_u32 s38, s38, {OB}
    v_lshlrev_b32 v46, 14, v21
    v_lshl_add_u32 v46, v20, 3, v46
    v_add_u32 v46, s38, v46
    s_waitcnt lgkmcnt(0)
    global_load_dword v125, v12, s[28:29] sc1
    global_load_dword v125, v13, s[28:29] sc1
    {"global_load_dword v114, v46, s[28:29] sc1" if opre in (0, 3) else ""}
    """)
    a(f"""
    s_add_u32 s26, s28, {DL}
    s_addc_u32 s27, s29, 0
    s_lshl_b32 s38, s32, 1
    v_lshrrev_b32 v7, 1, v23
    v_add_u32 v4, s38, v7
    v_and_b32 v5, 2, v22
    v_xor_b32 v4, v4, v5
    v_lshlrev_b32 v4, 4, v4
    v_and_b32 v14, 1, v23
    v_lshl_add_u32 v5, v14, 3, v4
    v_lshl_add_u32 v5, v22, 7, v5
    v_mul_u32_u24 v6, {ST}, v21
    v_add_u32 v24, v5, v6
    v_add_u32 v25, {base['o']}, v24
    s_mul_i32 s38, s32, {8*ST}
    s_add_u32 s38, s38, {base['K']}
    v_xor_b32 v4, v21, v23
    v_lshlrev_b32 v4, 4, v4
    v_lshl_add_u32 v4, v23, 8, v4
    v_mul_u32_u24 v5, {ST}, v22
    v_add3_u32 v26, v4, v5, s38
    s_lshl_b32 s38, s32, 2
    v_add_u32 v4, s38, v7
    v_lshlrev_b32 v5, 1, v22
    v_xor_b32 v4, v4, v5
    v_lshlrev_b32 v4, 4, v4
    v_lshl_add_u32 v4, v14, 3, v4
    v_lshl_add_u32 v4, v22, 8, v4
    v_xor_b32 v5, 32, v4
    v_lshlrev_b32 v6, 1, v6
    v_add_u32 v6, {base['V']}, v6
    v_add_u32 v27, v4, v6
    v_add_u32 v28, v5, v6
    v_add_u32 v44, s38, v3""")
    a(f"""v_mov_b32 v19, 0xff
    v_mov_b32 v18, 0x3b000000
    v_mov_b32 v112, v16
    v_add_u32 v16, {XN}, v16
    v_lshlrev_b32 v15, 4, v21
    s_lshl_b32 s38, s34, 8
    s_add_u32 s38, s38, {XN}
    v_add_u32 v17, s38, v15""")
    stamp()
    a("s_barrier")
    stamp()
    a("ds_read_b128 v[8:11], v112\ns_waitcnt lgkmcnt(0)")
    for i in range(4):
        a(f"v_lshlrev_b32 v{32+2*i}, 16, v{8+i}\nv_and_b32 v{33+2*i}, 0xffff0000, v{8+i}")
    a("s_mov_b32 s55, 0\nL_ln:")
    a("""v_pk_mul_f32 v[40:41], v[32:33], v[32:33]
    v_pk_add_f32 v[4:5], v[32:33], v[34:35]
    v_pk_fma_f32 v[40:41], v[34:35], v[34:35], v[40:41]
    v_pk_add_f32 v[6:7], v[36:37], v[38:39]
    v_pk_fma_f32 v[40:41], v[36:37], v[36:37], v[40:41]
    v_pk_add_f32 v[4:5], v[4:5], v[6:7]
    v_pk_fma_f32 v[40:41], v[38:39], v[38:39], v[40:41]
    v_add_f32 v4, v4, v5
    v_add_f32 v5, v40, v41
    s_nop 0""")
    for d in ("row_shr:1", "row_shr:2", "row_shr:4", "row_shr:8"):
        a(f"""v_add_f32_dpp v4, v4, v4 {d} row_mask:0xf bank_mask:0xf bound_ctrl:1
        v_add_f32_dpp v5, v5, v5 {d} row_mask:0xf bank_mask:0xf bound_ctrl:1
        s_nop 0""")
    a(f"""v_add_f32_dpp v4, v4, v4 row_bcast:15 row_mask:0xa bank_mask:0xf
    v_add_f32_dpp v5, v5, v5 row_bcast:15 row_mask:0xa bank_mask:0xf
    s_nop 0
    v_add_f32_dpp v4, v4, v4 row_bcast:31 row_mask:0xc bank_mask:0xf
    v_add_f32_dpp v5, v5, v5 row_bcast:31 row_mask:0xc bank_mask:0xf
    s_nop 0
    v_readlane_b32 s38, v4, 63
    v_readlane_b32 s39, v5, 63
    s_nop 0
    v_mul_f32 v4, s38, v18
    v_mul_f32 v5, s39, v18
    v_fma_f32 v5, -v4, v4, v5
    v_max_f32 v5, 0, v5
    v_cvt_pk_bf16_f32 v4, v4, v5
    v_and_b32 v5, 0xffff0000, v4
    v_lshlrev_b32 v4, 16, v4
    v_add_f32 v5, 0x3727c5ac, v5
    v_cvt_pk_bf16_f32 v5, v5, v5
    v_and_b32 v5, 0xffff0000, v5
    v_sqrt_f32 v6, v5""")
    for i in range(4):
        a(f"v_pk_add_f32 v[{32+2*i}:{33+2*i}], v[{32+2*i}:{33+2*i}], v[4:5] op_sel_hi:[1,0] neg_lo:[0,1] neg_hi:[0,1]")
    a(f"""v_cvt_pk_bf16_f32 v6, v6, v6
    v_and_b32 v6, 0xffff0000, v6
    v_rcp_f32 v6, v6""")
    for i in range(4):
        a(f"v_cvt_pk_bf16_f32 v{40+i}, v{32+2*i}, v{33+2*i}")
    for i in range(4):
        a(f"v_lshlrev_b32 v{32+2*i}, 16, v{40+i}\nv_and_b32 v{33+2*i}, 0xffff0000, v{40+i}")
    for i in range(4):
        a(f"v_pk_mul_f32 v[{32+2*i}:{33+2*i}], v[{32+2*i}:{33+2*i}], v[6:7] op_sel_hi:[1,0]")
    for i in range(4):
        a(f"v_cvt_pk_bf16_f32 v{40+i}, v{32+2*i}, v{33+2*i}")
    a("""ds_write_b128 v16, v[40:43]
    s_cmp_lg_u32 s55, 0
    s_cbranch_scc1 L_ln2""")
    for t in range(4):
        a(f"ds_read_b128 v[{48+4*t}:{51+4*t}], v17 offset:{64*t}")
    for i in range(4):
        a(f"v_lshlrev_b32 v{32+2*i}, 16, v{40+i}\nv_and_b32 v{33+2*i}, 0xffff0000, v{40+i}")
    stamp()
    a(f"""s_lshl_b32 s38, s35, 7
    s_add_u32 s38, s38, {YN}
    v_add_u32 v17, s38, v15
    v_add_u32 v16, 1024, v16
    s_lshl_b32 s38, s30, 13
    s_lshl_b32 s39, s32, 9
    s_add_u32 s38, s38, s39
    s_add_u32 s38, s38, {QB}
    v_lshl_add_u32 v8, v2, 3, s38
    v_add_u32 v9, 4096, v8
    s_mul_i32 s39, s32, 288
    s_add_u32 s39, s39, {QL}
    v_lshl_add_u32 v10, v2, 2, s39
    v_mul_u32_u24 v11, 288, v23
    v_add_u32 v11, v11, v15
    v_add_u32 v11, {QL}, v11
    s_add_u32 s38, s45, {SL}
    v_mul_u32_u24 v47, 576, v23
    v_add3_u32 v47, v47, v15, s38
    v_mul_u32_u24 v115, 576, v22
    v_lshl_add_u32 v115, v23, 7, v115
    v_lshl_add_u32 v115, v21, 5, v115
    v_add_u32 v115, {SL}, v115
    s_lshl_b32 s38, s36, 14
    s_add_u32 s38, s38, s45
    s_add_u32 s38, s38, {OB}
    v_lshrrev_b32 v6, 3, v2
    v_and_b32 v5, 7, v2
    v_lshlrev_b32 v116, 11, v6
    v_lshl_add_u32 v116, v5, 4, v116
    v_add_u32 v116, s38, v116
    s_add_u32 s38, s44, {AL}
    v_mul_u32_u24 v117, 288, v6
    v_lshl_add_u32 v117, v5, 2, v117
    v_add_u32 v117, s38, v117
    v_mov_b32 v118, 0x0c0c0400
    v_mov_b32 v6, 0x04000c0c
    v_cmp_eq_u32 vcc, 1, v14
    v_mul_u32_u24 v119, 288, v5
    v_add_u32 v119, v119, v15
    v_cndmask_b32 v118, v118, v6, vcc
    v_add_u32 v119, {AL}, v119
    v_add_u32 v120, {HL}, v15
    s_lshl_b32 s38, s35, 15
    s_lshr_b32 s39, s36, 4
    s_lshl_b32 s39, s39, 14
    s_add_u32 s38, s38, s39
    s_and_b32 s39, s36, 15
    s_lshl_b32 s39, s39, 9
    s_add_u32 s38, s38, s39
    s_add_u32 s38, s38, s45
    s_add_u32 s38, s38, {FB}
    s_add_u32 s50, s28, 8192
    s_addc_u32 s51, s29, 0
    v_lshl_add_u32 v121, v20, 3, s38
    s_lshl_b32 s52, s32, 3
    s_add_u32 s52, s52, {idx['K'] + 8}""")
    l = lab("wt")
    a(f"{l}:\nds_read_b64 v[4:5], v3 offset:{256+48}")
    tmo()
    a(f"""s_waitcnt lgkmcnt(0)
    v_cmp_eq_u32 vcc, 0, v5
    s_cbranch_vccnz {l}
    v_readfirstlane_b32 s40, v4
    v_lshlrev_b32 v122, 3, v23
    v_lshrrev_b32 v29, v122, v4
    v_lshlrev_b32 v5, 4, v14
    v_lshrrev_b32 v30, v5, v4
    v_lshrrev_b32 v31, 8, v30
    s_getreg_b32 s38, hwreg(HW_REG_XCC_ID, 0, 3)
    s_lshr_b32 s42, s40, 16
    v_mul_u32_u24 v5, s38, v14
    s_xor_b32 s42, s42, s38
    v_xor_b32 v113, v30, v5
    v_cmp_eq_u32 vcc, 2, v23
    v_mul_u32_u24 v5, 7, v14
    v_mov_b32 v6, s38
    v_xor_b32 v144, v19, v5
    v_cndmask_b32 v6, 0, v6, vcc
    v_xor_b32 v145, v29, v6
    s_mov_b32 s54, 0
    v_not_b32 v146, v19
    v_mov_b32 v147, 0x0c0c0400
    """)
    a("; ---- q partial: xn(128 rows) x wq tile")
    wait_prog(idx['q'] + 16)
    stamp()
    event('wq')
    for t in range(4):
        for rd in range(2):
            a(f"ds_read_b64_tr_b16 v[{72+4*t+2*rd}:{73+4*t+2*rd}], v24 offset:{base['q'] + t*4*ST + rd*512}")
    for t in range(4):
        c = "0" if t == 0 else "v[4:7]"
        a(f"s_waitcnt lgkmcnt({lgk(6-2*t)})\nv_mfma_f32_16x16x32_bf16 v[4:7], v[{48+4*t}:{51+4*t}], v[{72+4*t}:{75+4*t}], {c}")
    a(f"""s_mov_b64 exec, 0xffff
    s_mov_b32 s55, 1
    s_nop 5
    v_bfi_b32 v123, v19, v145, v4
    global_store_dword v12, v123, s[28:29] {ast}
    s_mov_b64 exec, -1""")
    stamp()
    def qissue(r):
        a(f"""global_load_dwordx2 v[{r}:{r+1}], v8, s[28:29] sc1
        global_load_dwordx2 v[{r+2}:{r+3}], v8, s[28:29] offset:2048 sc1
        global_load_dwordx2 v[{r+4}:{r+5}], v9, s[28:29] sc1
        global_load_dwordx2 v[{r+6}:{r+7}], v9, s[28:29] offset:2048 sc1""")
        attempts(0)
    def qcheck(r):
        a(f"v_xor_b32 v7, v{r}, v113\nv_xor_b32 v4, v{r+1}, v31")
        for i in range(1, 4):
            a(f"v_bitop3_b32 v7, v7, v{r+2*i}, v113 bitop3:0xf6\nv_bitop3_b32 v4, v4, v{r+2*i+1}, v31 bitop3:0xf6")
        a(f"""v_and_b32 v6, v144, v7
        v_and_or_b32 v4, v4, v19, v6
        v_cmp_ne_u32 vcc, 0, v4""")
        if clean:
            for i in range(8): a(f"v_and_b32 v{r+i}, v146, v{r+i}")
        a(f"""v_pk_add_f32 v[40:41], v[{r}:{r+1}], v[{r+2}:{r+3}]
        v_pk_add_f32 v[42:43], v[{r+4}:{r+5}], v[{r+6}:{r+7}]""")
    def qhB():
        a(f"""s_mov_b64 exec, 0xffff
        global_store_dword v12, v123, s[26:27] sc1
        {"" if late1 else "global_store_dword v13, v124, s[26:27] sc1"}
        s_mov_b64 exec, -1
        s_mov_b32 s54, 1""")
    def ohB():
        a("global_store_dwordx2 v46, v[126:127], s[26:27] sc1")
        if late1:
            a(f"""s_mov_b64 exec, 0xffff
            global_store_dword v13, v124, s[26:27] sc1
            s_mov_b64 exec, -1""")
    qissue(128)
    a(f"""s_cmp_lg_u32 s30, {light}
    s_cbranch_scc1 L_ln
    s_branch L_nomlp1""")
    pad(3, "L_pad4", jump=False)
    a(f"L_foreign:\nds_write_b32 v3, v5 offset:{256+44}\ns_branch L_own\nL_needB:")
    qhB()
    a("s_branch L_wk")
    def mlp1():
        a(f"""ds_read_b128 v[64:67], v17
        ds_read_b128 v[68:71], v17 offset:64""")
        wait_prog(idx['1'] + 8)
        vb, ob = (24, base['1']) if base['1'] + 8 * ST < 65536 else (112, 0)
        for t in range(2):
            for rd in range(2):
                a(f"ds_read_b64_tr_b16 v[{72+4*t+2*rd}:{73+4*t+2*rd}], v{vb} offset:{ob + t*4*ST + rd*512}")
        a(f"""s_waitcnt lgkmcnt(0)
        v_mfma_f32_16x16x32_bf16 v[4:7], v[64:67], v[72:75], 0
        v_mfma_f32_16x16x32_bf16 v[4:7], v[68:71], v[76:79], v[4:7]
        s_mov_b64 exec, 0xffff
        s_nop 6
        v_bfi_b32 v124, v19, v29, v4
        global_store_dword v13, v124, s[28:29] {ast}
        s_mov_b64 exec, -1""")
    a("L_ln2:")
    if not late1: mlp1()
    a(f"L_nomlp1:\nv_add_u32 v112, {base['1']}, v24")
    stamp()
    qissue(136)
    if opre == 1: a("global_load_dword v114, v46, s[28:29] sc1")
    a(f"""ds_read_b32 v4, v3
    s_mov_b32 s47, {KSW // 3}
    s_mov_b32 s55, 0
    s_waitcnt lgkmcnt(0)
    v_readfirstlane_b32 s53, v4
    s_add_u32 s53, s53, {qstag}
    s_min_u32 s53, s53, {NL}""")
    wait_prog("s53")
    a("; ---- gather q of head w (three attempts in flight)")
    a("L_gq:")
    qissue(104)
    tmo()
    a("s_waitcnt vmcnt(8)" if opre != 1 else "s_waitcnt vmcnt(8)")
    qcheck(128)
    a("s_cbranch_vccz L_gqok")
    a(f"""s_sub_u32 s47, s47, 1
    s_cbranch_scc0 L_gq2
    s_mov_b32 s55, {DL}
    v_mov_b32 v5, 1
    ds_write_b32 v3, v5 offset:{256+44}""")
    qhB()
    a("L_gq2:\nv_xor_b32 v8, s55, v8\nv_xor_b32 v9, s55, v9")
    qissue(128)
    a("s_waitcnt vmcnt(8)")
    qcheck(136)
    a("s_cbranch_vccz L_gqok")
    qissue(136)
    a("s_waitcnt vmcnt(8)")
    qcheck(104)
    a("s_cbranch_vccnz L_gq")
    a(f"""L_gqok:
    v_pk_add_f32 v[40:41], v[40:41], v[42:43]
    v_and_b32 v7, 7, v7
    v_mov_b32 v5, 1
    v_cmp_ne_u32 vcc, 0, v7
    v_cvt_pk_bf16_f32 v40, v40, v41
    ds_write_b32 v10, v40
    s_cbranch_vccnz L_foreign
    L_own:
    ds_write_b32 v44, v5 offset:256""")
    stamp()
    event('qgot')
    a(f"""L_wk:
    ds_read_b32 v40, v3
    ds_read_b128 v[4:7], v3 offset:256
    ds_read_b32 v41, v3 offset:{256+44}""")
    for t in range(4):
        a(f"ds_read_b128 v[{48+4*t}:{51+4*t}], v11 offset:{64*t}")
    tmo()
    a(f"""s_waitcnt lgkmcnt({lgk(4)})
    v_readfirstlane_b32 s38, v41
    v_bitop3_b32 v4, v4, v5, v6 bitop3:0x80
    v_cmp_gt_u32 s[60:61], s52, v40
    v_and_b32 v4, v4, v7
    s_min_u32 s38, s38, 1
    s_cmp_gt_u32 s38, s54
    s_cbranch_scc1 L_needB
    v_cmp_eq_u32 vcc, 0, v4
    s_or_b64 s[60:61], vcc, s[60:61]
    s_cbranch_scc1 L_wk""")
    for t in range(4):
        for u in range(2):
            r = 72 + 16*u + 4*t
            a(f"ds_read_b128 v[{r}:{r+3}], v26 offset:{u*4*ST + t*64}")
    for t in range(4):
        for u in range(2):
            c = "0" if t == 0 else f"v[{32+4*u}:{35+4*u}]"
            a(f"s_waitcnt lgkmcnt({lgk(7-2*t-u)})")
            a(f"v_mfma_f32_16x16x32_bf16 v[{32+4*u}:{35+4*u}], v[{72+16*u+4*t}:{75+16*u+4*t}], v[{48+4*t}:{51+4*t}], {c}")
    SC = 0x3e0293ee
    a(f"""s_mov_b32 exec_lo, 0x000f000f
    s_mov_b32 exec_hi, 0x000f000f
    v_mov_b32 v5, 1
    s_mov_b32 s46, {SC}
    s_nop 3
    ds_write_b128 v47, v[32:35]
    ds_write_b128 v47, v[36:39] offset:64
    ds_write_b32 v44, v5 offset:272
    s_mov_b64 exec, -1
    v_mov_b32 v64, 0x3f803f80
    v_mov_b32 v65, v64
    v_mov_b32 v66, v64
    v_mov_b32 v67, v64""")
    stamp()
    if opre in (2, 3): a("global_load_dword v114, v46, s[28:29] sc1")
    if wpre:
        a("global_load_dword v114, v121, s[28:29] sc1")
        if numa: a("global_load_dword v114, v121, s[50:51] sc1")
    pad(4, "L_pad5")
    def vread(t, k):
        ntile, rd = k >> 1, k & 1
        r = 72 + 8*t + 4*ntile + 2*rd
        return f"ds_read_b64_tr_b16 v[{r}:{r+1}], v{27+ntile} offset:{t*8*ST + rd*ST}"
    a("; ---- softmax over the 128 keys of the chunk, P x V")
    a(f"""L_ws:
    ds_read_b128 v[4:7], v3 offset:272
    ds_read_b32 v40, v3
    ds_read_b128 v[32:35], v115
    ds_read_b128 v[36:39], v115 offset:16""")
    tmo()
    a(f"""s_waitcnt lgkmcnt({lgk(2)})
    v_bitop3_b32 v4, v4, v5, v6 bitop3:0x80
    v_readfirstlane_b32 s53, v40
    v_and_b32 v4, v4, v7
    v_cmp_eq_u32 vcc, 0, v4
    s_cbranch_vccnz L_ws
    s_waitcnt lgkmcnt(0)
    v_max3_f32 v4, v32, v33, v34
    v_max3_f32 v5, v35, v36, v37
    v_max3_f32 v4, v4, v38, v39
    v_max_f32 v4, v4, v5
    {vread(0, 0)}
    {vread(0, 1)}
    v_max_f32_dpp v4, v4, v4 quad_perm:[1,0,3,2] row_mask:0xf bank_mask:0xf
    {vread(0, 2)}
    {vread(0, 3)}
    v_max_f32_dpp v4, v4, v4 quad_perm:[2,3,0,1] row_mask:0xf bank_mask:0xf
    v_mov_b32 v5, v4
    {vread(1, 0)}
    {vread(1, 1)}
    v_permlane16_swap_b32 v4, v5
    v_max_f32 v4, v4, v5
    v_mov_b32 v5, v4
    {vread(1, 2)}
    {vread(1, 3)}
    v_permlane32_swap_b32 v4, v5
    v_max_f32 v4, v4, v5
    v_mul_f32 v6, s46, v4""")
    for i in range(8):
        a(f"v_fma_f32 v{32+i}, v{32+i}, s46, -v6")
        if i == 0: a("ds_bpermute_b32 v45, v15, v6")
    for i in range(8):
        a(f"v_exp_f32 v{32+i}, v{32+i}\n{vread(2 + (i >> 2), i & 3)}")
    for i in range(4):
        a(f"v_cvt_pk_bf16_f32 v{40+i}, v{32+2*i}, v{33+2*i}")
    stamp()
    for t in range(4):
        for i in range(4):
            a(f"v_mov_b32_dpp v{48+4*t+i}, v{40+i} quad_perm:[{t},{t},{t},{t}] row_mask:0xf bank_mask:0xf")
            if t == 0 and i == 1: a("v_mfma_f32_16x16x32_bf16 v[68:71], v[40:43], v[64:67], 0")
        sk = lab("vs")
        a(f"s_cmpk_ge_u32 s53, {idx['V'] + 8*(t+1)}\ns_cbranch_scc1 {sk}")
        l = lab("wv")
        a(f"{l}:\nds_read_b32 v4, v3")
        for k in range(4): a(vread(t, k))
        tmo()
        a(f"""s_waitcnt lgkmcnt({lgk(4)})
        v_cmp_gt_u32 vcc, {idx['V'] + 8*(t+1)}, v4
        s_cbranch_vccnz {l}""")
        a(f"{sk}:\ns_waitcnt lgkmcnt(0)")
        for ntile in range(2):
            c = "0" if t == 0 else f"v[{32+4*ntile}:{35+4*ntile}]"
            a(f"v_mfma_f32_16x16x32_bf16 v[{32+4*ntile}:{35+4*ntile}], v[{48+4*t}:{51+4*t}], v[{72+8*t+4*ntile}:{75+8*t+4*ntile}], {c}")
        if t == 1:
            a("""v_pk_add_f32 v[68:69], v[68:69], v[70:71]
            v_add_f32 v68, v68, v69
            v_log_f32 v5, v68
            v_rcp_f32 v6, v68
            v_add_f32 v45, v45, v5
            v_lshrrev_b32 v45, v122, v45""")
            if numa: a(f"ds_read_b32 v7, v3 offset:{256+32}")
        if t == 2 and numa: a("v_mul_u32_u24 v7, v7, v14\nv_xor_b32 v113, v113, v7")
    a(f"""s_nop 6
    v_mul_f32 v32, v32, v6
    v_bfi_b32 v126, v19, v113, v32
    v_mul_f32 v36, v36, v6
    v_bfi_b32 v127, v19, v45, v36
    global_store_dwordx2 v46, v[126:127], s[28:29] {ast}""")
    stamp()
    event('opub')
    def ogather():
        if stamps: a("s_memrealtime s[94:95]")
        for i in range(4):
            a(f"global_load_dwordx4 v[{48+4*i}:{51+4*i}], v116, s[28:29] offset:{512*i} sc1")
        attempts(1)
    if late1:
        a(f"s_cmp_eq_u32 s30, {light}\ns_cbranch_scc1 L_nomlp1b")
        mlp1()
        a("L_nomlp1b:")
    a("; ---- gather the 32 chunk partials of head hq, weight them with exp2(lse - max)")
    if pace_o > idx['V'] + 32: wait_prog(pace_o)
    ogather()
    stamp()
    o2 = base['2'] - base['o']
    a(f"""s_mov_b32 s47, {KSW}
    s_mov_b32 s55, 0
    s_branch L_go1""")
    pad(5, "L_pad6", jump=False)
    a(f"""L_go:
    s_sub_u32 s47, s47, 1
    s_cbranch_scc0 L_go2
    s_mov_b32 s55, {DL}""")
    ohB()
    a("L_go2:\nv_xor_b32 v116, s55, v116")
    ogather()
    def CL(r, t): return f"v_and_b32 v{r}, v146, v{r}" if clean else ""
    a("L_go1:")
    tmo()
    a("s_waitcnt vmcnt(0)")
    if stamps: a("s_memrealtime s[96:97]")
    a(f"""v_xor_b32 v7, s42, v50
    v_xor_b32 v4, s40, v48
    v_bitop3_b32 v7, v7, v54, s42 bitop3:0xf6
    v_bitop3_b32 v4, v4, v52, s40 bitop3:0xf6
    v_bitop3_b32 v7, v7, v58, s42 bitop3:0xf6
    v_bitop3_b32 v4, v4, v56, s40 bitop3:0xf6
    v_bitop3_b32 v7, v7, v62, s42 bitop3:0xf6
    v_bitop3_b32 v4, v4, v60, s40 bitop3:0xf6
    v_and_b32 v6, 0xf0, v7
    v_and_or_b32 v4, v4, v19, v6
    v_cmp_ne_u32 vcc, 0, v4
    v_perm_b32 v40, v51, v49, v118
    v_perm_b32 v41, v55, v53, v118
    s_cbranch_vccnz L_go
    v_perm_b32 v42, v59, v57, v118
    v_perm_b32 v43, v63, v61, v118
    v_or_b32_dpp v40, v40, v40 quad_perm:[1,0,3,2] row_mask:0xf bank_mask:0xf
    v_or_b32_dpp v41, v41, v41 quad_perm:[1,0,3,2] row_mask:0xf bank_mask:0xf
    v_or_b32_dpp v42, v42, v42 quad_perm:[1,0,3,2] row_mask:0xf bank_mask:0xf
    v_or_b32_dpp v43, v43, v43 quad_perm:[1,0,3,2] row_mask:0xf bank_mask:0xf
    v_max_f32 v5, v40, v41
    v_perm_b32 v104, v54, v50, v147
    v_max3_f32 v5, v5, v42, v43
    v_and_b32 v7, 7, v7
    v_cmp_ne_u32 vcc, 0, v7
    v_max_f32_dpp v5, v5, v5 row_ror:8 row_mask:0xf bank_mask:0xf
    v_mov_b32 v6, v5
    {"v_and_b32 v48, v146, v48" if clean else "s_nop 0"}
    {"v_and_b32 v52, v146, v52" if clean else "s_nop 0"}
    v_permlane16_swap_b32 v5, v6
    v_max_f32 v5, v5, v6
    v_mov_b32 v6, v5
    {"v_and_b32 v56, v146, v56" if clean else "s_nop 0"}
    {"v_and_b32 v60, v146, v60" if clean else "s_nop 0"}
    v_permlane32_swap_b32 v5, v6
    v_max_f32 v5, v5, v6
    v_sub_f32 v40, v40, v5
    v_sub_f32 v41, v41, v5
    v_perm_b32 v105, v62, v58, v147
    v_exp_f32 v40, v40
    v_sub_f32 v42, v42, v5
    v_exp_f32 v41, v41
    v_sub_f32 v43, v43, v5
    v_exp_f32 v42, v42
    {CL(50, 96)}
    v_exp_f32 v43, v43
    {CL(54, 98)}
    {CL(58, 100)}
    {CL(62, 102)}
    v_pk_mul_f32 v[32:33], v[48:49], v[40:41] op_sel_hi:[1,0]
    v_pk_mul_f32 v[34:35], v[50:51], v[40:41] op_sel_hi:[1,0]""")
    sel = {1: ("v[40:41]", "op_sel:[0,1,0] op_sel_hi:[1,1,1]"), 2: ("v[42:43]", "op_sel_hi:[1,0,1]"), 3: ("v[42:43]", "op_sel:[0,1,0] op_sel_hi:[1,1,1]")}
    for i in range(1, 4):
        w_, m_ = sel[i]
        a(f"""v_pk_fma_f32 v[32:33], v[{48+4*i}:{49+4*i}], {w_}, v[32:33] {m_}
        v_pk_fma_f32 v[34:35], v[{50+4*i}:{51+4*i}], {w_}, v[34:35] {m_}""")
    a(f"""v_cvt_pk_bf16_f32 v4, v32, v34
    v_cvt_pk_bf16_f32 v5, v33, v35
    ds_write2_b32 v117, v4, v5 offset0:0 offset1:8""")
    stamp()
    event('ogot')
    a(f"""v_pk_add_f32 v[40:41], v[40:41], v[42:43]
    v_add_f32 v40, v40, v41
    s_cbranch_vccz L_coloc""")
    ohB()
    a(f"""L_coloc:
    s_waitcnt lgkmcnt(0)
    s_barrier""")
    stamp()
    for t in range(4):
        a(f"ds_read_b128 v[{128+4*t}:{131+4*t}], v119 offset:{64*t}")
        for rd in range(2):
            a(f"ds_read_b64_tr_b16 v[{72+4*t+2*rd}:{73+4*t+2*rd}], v25 offset:{t*4*ST + rd*512}")
        if t == 0: a("v_add_f32_dpp v40, v40, v40 row_ror:8 row_mask:0xf bank_mask:0xf\nv_mov_b32 v41, v40")
        if t == 1: a("v_permlane16_swap_b32 v40, v41\nv_add_f32 v40, v40, v41\nv_mov_b32 v41, v40")
        if t == 2: a("v_permlane32_swap_b32 v40, v41\nv_add_f32 v40, v40, v41\nv_rcp_f32 v40, v40")
    a(f"s_waitcnt lgkmcnt({lgk(9)})\nv_mfma_f32_16x16x32_bf16 v[32:35], v[128:131], v[72:75], 0")
    for t in range(2):
        a(f"ds_read_b128 v[{64+4*t}:{67+4*t}], v120 offset:{64*t}")
        for rd in range(2):
            a(f"ds_read_b64_tr_b16 v[{88+4*t+2*rd}:{89+4*t+2*rd}], v25 offset:{o2 + t*4*ST + rd*512}")
    for t in range(1, 4):
        c = "v[32:35]"
        a(f"s_waitcnt lgkmcnt({lgk(15-3*t)})\nv_mfma_f32_16x16x32_bf16 v[32:35], v[{128+4*t}:{131+4*t}], v[{72+4*t}:{75+4*t}], {c}")
    a(f"""s_waitcnt lgkmcnt(0)
    v_mfma_f32_16x16x32_bf16 v[36:39], v[64:67], v[88:91], 0
    v_mfma_f32_16x16x32_bf16 v[36:39], v[68:71], v[92:95], v[36:39]""")
    a(f"""s_nop 4
    v_pk_add_f32 v[32:33], v[32:33], v[34:35]
    v_add_f32 v4, v32, v33
    v_add_f32 v6, v32, v33
    s_cmp_lg_u32 s30, {light}
    s_cselect_b32 s38, -1, 0
    v_permlane16_swap_b32 v4, v6
    v_add_f32 v4, v4, v6
    s_mov_b64 exec, 0xffff
    v_mul_f32 v4, v4, v40
    v_and_b32 v5, s38, v36
    v_bfi_b32 v4, v19, v30, v4
    v_bfi_b32 v5, v19, v31, v5
    global_store_dwordx2 v121, v[4:5], s[28:29] {fst}
    {"global_store_dwordx2 v121, v[4:5], s[50:51] " + fst if numa else ""}
    s_mov_b64 exec, -1""")
    stamp()
    if numa and (oracle is None or t_wait):
        a(f"""s_cmp_lg_u32 s32, 0
        s_cbranch_scc1 L_fin
        s_and_b32 s38, s42, 8
        s_mul_i32 s38, s38, 0x101
        v_xor_b32 v104, s38, v104
        v_xor_b32 v105, s38, v105
        v_and_b32 v4, 8, v104
        v_and_b32 v5, 0x800, v104
        v_and_b32 v6, 8, v105
        v_and_b32 v7, 0x800, v105
        v_cmp_ne_u32 s[60:61], 0, v4
        v_cmp_ne_u32 s[52:53], 0, v5
        v_cmp_ne_u32 s[48:49], 0, v6
        v_cmp_ne_u32 vcc, 0, v7
        s_bcnt1_i32_b64 s38, s[60:61]
        s_bcnt1_i32_b64 s39, s[52:53]
        s_add_u32 s38, s38, s39
        s_bcnt1_i32_b64 s39, s[48:49]
        s_add_u32 s38, s38, s39
        s_bcnt1_i32_b64 s39, vcc
        s_add_u32 s38, s38, s39
        s_cmpk_gt_u32 s38, 128
        s_cselect_b32 s38, 8193, 1
        v_mov_b32 v4, s38
        ds_write_b32 v3, v4 offset:{256+36}""")
    a("s_branch L_fin")

    nst[0] = 0
    a("L_aux:")
    common()
    a(f"""v_mov_b32 v4, 0
    v_lshl_add_u32 v5, v2, 2, v3
    ds_write_b32 v5, v4
    ds_write_b32 v5, v4 offset:64
    s_cmp_ge_u32 s30, {max(light, 1)}
    s_cselect_b32 s38, 4, 0
    s_sub_u32 s38, s36, s38
    s_lshl_b32 s38, s38, 7
    v_lshl_add_u32 v6, v2, 1, s38
    s_lshl_b32 s48, s34, 3
    s_add_u32 s48, s48, s30
    s_lshl_b32 s48, s48, 2
    s_and_b32 s38, s31, 3
    s_add_u32 s48, s48, s38
    s_lshl_b32 s38, s48, 3
    v_lshrrev_b32 v20, 5, v2
    v_and_b32 v21, 1, v2
    v_lshlrev_b32 v4, 2, v20
    v_lshl_add_u32 v4, v21, 1, v4
    v_add_u32 v12, s38, v4
    s_waitcnt lgkmcnt(0)
    s_load_dword s37, s[28:29], 0
    s_cmp_eq_u32 s30, {light}
    s_cbranch_scc1 L_aux0
    global_load_ushort v8, v6, s[18:19]
    L_aux0:
    global_load_ushort v9, v12, s[4:5]
    global_load_ushort v10, v12, s[22:23]""")
    stamp()
    a(f"""s_barrier
    v_mov_b32 v5, 1
    v_mov_b32 v19, 0xff
    s_lshr_b32 s38, s48, 4
    s_lshl_b32 s38, s38, 15
    s_and_b32 s39, s48, 15
    s_lshl_b32 s39, s39, 5
    s_add_u32 s38, s38, s39
    s_add_u32 s38, s38, {FB}
    v_and_b32 v22, 15, v2
    v_bfe_u32 v23, v2, 4, 1
    v_lshlrev_b32 v17, 9, v22
    v_lshl_add_u32 v17, v23, 14, v17
    v_lshl_add_u32 v17, v20, 4, v17
    v_add_u32 v17, s38, v17
    v_cmp_eq_u32 s[46:47], 1, v21
    s_waitcnt lgkmcnt(0)
    s_add_u32 s37, s37, 1
    s_mul_i32 s40, s37, 0x9E3779B1
    v_mov_b32 v4, s40
    ds_write_b64 v3, v[4:5] offset:{256+48}
    s_lshr_b32 s41, s40, 8
    s_lshr_b32 s42, s40, 16
    s_lshr_b32 s43, s40, 24
    v_and_b32 v4, 3, v2
    v_lshlrev_b32 v4, 3, v4
    v_lshrrev_b32 v29, v4, s40""")
    stamp()
    def probe_store():
        a(f"""s_lshr_b32 s38, s2, 4
        s_lshl_b32 s38, s38, 14
        s_and_b32 s39, s2, 15
        s_lshl_b32 s39, s39, 9
        s_add_u32 s38, s38, s39
        s_add_u32 s38, s38, {PB}
        s_add_u32 s52, s28, s38
        s_addc_u32 s53, s29, 0""")
    def race():
        a("s_mov_b32 s44, s40\ns_mov_b32 s45, s40")
        for i in range(0, 2 * nrace, 2): a(f"s_mov_b64 s[{72+i}:{73+i}], s[44:45]")
        a("s_movk_i32 s39, 200")
        for i in range(nrace):
            for par in ((0, 1) if i in (0, 3) else (1, 0)):
                a(f"s_load_dword s{72 + nrace*par + i}, s[52:53], {8192*par + 128*i}")
        a("L_race:")
        for i in range(0, nrace, 2):
            a(f"""s_cmp_lg_u64 s[{72+i}:{73+i}], s[44:45]
            s_cbranch_scc1 L_near0""")
            if i + 2 >= nrace: a("s_sub_u32 s39, s39, 1\ns_cbranch_scc1 L_near0")
            a(f"s_cmp_lg_u64 s[{72+nrace+i}:{73+nrace+i}], s[44:45]")
            a("s_cbranch_scc1 L_near1" if i + 2 < nrace else "s_cbranch_scc0 L_race")
        a(f"""L_near1:
        {"s_mov_b32 s57, 1" if stamps else ""}
        v_mov_b32 v4, 8
        ds_write_b32 v3, v4 offset:{256+32}
        L_near0:
        s_waitcnt lgkmcnt(0)""")
    if oracle is not None:
        a(f"""s_getreg_b32 s38, hwreg(HW_REG_XCC_ID, 2, 1)
        s_xor_b32 s38, s38, {oracle}
        s_lshl_b32 s38, s38, 13
        v_add_u32 v17, s38, v17
        {"" if wpre else "global_load_dword v40, v17, s[28:29] sc1"}""")
        race_at = None
        if t_pre2: a("v_xor_b32 v18, 0x2000, v17\nglobal_load_dword v40, v18, s[28:29] sc1")
        if t_race:
            probe_store(); race_at = 'gh'
    elif numa:
        if not wpre: a("v_add_u32 v18, 8192, v17\nglobal_load_dword v40, v17, s[28:29] sc1\nglobal_load_dword v40, v18, s[28:29] sc1")
        probe_store()
    elif not wpre: a("global_load_dword v40, v17, s[28:29] sc1")
    if numa and race_at == 'T': race()
    if warm: a("s_branch L_pad3\nL_auxw:")
    stamp()
    if numa and race_at == 'walk': race()
    if extra_dirty:
        a(f"s_lshl_b32 s38, s2, 12\ns_add_u32 s38, s38, 0x400000\nv_lshl_add_u32 v16, v2, 4, s38")
        for i in range(extra_dirty):
            a(f"global_store_dwordx4 v16, v[32:35], s[28:29] offset:{1024*i}")
    def hloads():
        for p_ in range(8):
            a(f"global_load_dword v{32+p_}, v16, s[28:29] offset:{256*p_} sc1")
    a(f"""s_lshl_b32 s38, s36, 11
    s_add_u32 s38, s38, {HB}
    v_lshl_add_u32 v16, v2, 2, s38
    s_mov_b32 s49, {KSW}
    s_mov_b32 s55, 0""")
    wait_prog(pace_h)
    a(f"""s_cmp_eq_u32 s30, {light}
    s_cbranch_scc1 L_noh""")
    hloads()
    a("L_noh:")
    if numa and race_at == 'gh': race()
    a(f"""s_cmp_eq_u32 s30, {light}
    s_cbranch_scc1 L_aux1
    s_branch L_ghc
    L_gh:
    s_sub_u32 s49, s49, 1
    s_cselect_b32 s55, {DL}, s55
    v_xor_b32 v16, s55, v16""")
    hloads()
    a("L_ghc:")
    attempts(0)
    tmo()
    a(f"""s_waitcnt vmcnt(0)
    v_xor_b32 v4, v32, v29""")
    for p_ in range(1, 8):
        a(f"v_bitop3_b32 v4, v4, v{32+p_}, v29 bitop3:0xf6")
    C1 = 0xc0135761
    C2 = 0xbdd2d3e8
    a(f"""v_and_b32 v4, v19, v4
    v_cmp_ne_u32 vcc, 0, v4
    s_cbranch_vccnz L_gh""")
    if clean:
        for i in range(8): a(f"v_and_b32 v{32+i}, 0xffffff00, v{32+i}")
    a(f"""    v_pk_add_f32 v[32:33], v[32:33], v[34:35]
    v_pk_add_f32 v[36:37], v[36:37], v[38:39]
    v_pk_add_f32 v[32:33], v[32:33], v[36:37]
    v_add_f32 v32, v32, v33
    v_cvt_pk_bf16_f32 v32, v32, v32
    v_and_b32 v32, 0xffff0000, v32
    v_lshlrev_b32 v8, 16, v8
    v_add_f32 v32, v32, v8
    v_cvt_pk_bf16_f32 v32, v32, v32
    v_and_b32 v32, 0xffff0000, v32
    v_mul_f32 v33, v32, v32
    v_mov_b32 v34, {C1}
    v_fmac_f32 v34, {C2}, v33
    v_mul_f32 v33, v34, v32
    v_exp_f32 v33, v33
    v_lshlrev_b32 v5, 1, v2
    v_add_f32 v33, 1.0, v33
    v_rcp_f32 v33, v33
    v_add_u32 v5, {HL}, v5
    v_mul_f32 v32, v32, v33
    v_cvt_pk_bf16_f32 v32, v32, v32
    ds_write_b16 v5, v32
""")
    pad(6, "L_auxw")
    a("L_aux1:")
    stamp()
    if numa and race_at == 'h': race()
    if fpre_late:
        wait_prog(72)
        a("global_load_dword v40, v17, s[28:29] sc1")
    a(f"""s_waitcnt vmcnt(0) lgkmcnt(0)
    v_lshlrev_b32 v9, 16, v9
    v_lshlrev_b32 v10, 16, v10
    s_and_b32 s40, s40, 0xff
    s_and_b32 s41, s41, 0xff
    s_and_b32 s42, s42, 0xff
    s_barrier
    s_bitcmp1_b32 s31, 2
    s_cbranch_scc1 L_fin""")
    if numa and (oracle is None or t_wait):
        wait_flag1(36)
        if oracle is None: a("v_add_u32 v17, v17, v4\nv_add_u32 v17, -1, v17")
        if stamps: a("v_readfirstlane_b32 s59, v4")
    stamp()
    regs = [32 + 4 * i for i in range(nfin)]
    for r in regs[:-1]:
        a(f"global_load_dwordx4 v[{r}:{r+3}], v17, s[28:29] sc1")
    a("L_gf:")
    for k in range(nfin):
        r = regs[k]; rn = regs[(k - 1) % nfin]
        if stamps: a("s_memrealtime s[94:95]")
        a(f"global_load_dwordx4 v[{rn}:{rn+3}], v17, s[28:29] sc1")
        attempts(2)
        if k == 0: tmo()
        a(f"""s_waitcnt vmcnt({nfin-1})
        v_xor_b32 v{r}, s40, v{r}
        v_xor_b32 v{r+1}, s41, v{r+1}
        v_xor_b32 v{r+2}, s42, v{r+2}
        v_xor_b32 v{r+3}, s43, v{r+3}
        v_or3_b32 v4, v{r}, v{r+1}, v{r+2}
        v_bitop3_b32 v4, v4, v{r+3}, v19 bitop3:0xa8
        v_cmp_ne_u32 vcc, 0, v4""")
        for i in range(4):
            a(f"v_add_f32_dpp v{48+i}, v{r+i}, v{r+i} row_ror:1 row_mask:0xf bank_mask:0xf")
        a("s_cbranch_vccz L_gfok" if k < nfin - 1 else "s_cbranch_vccnz L_gf")
    a("L_gfok:")
    stamp()
    for d in (2, 4, 8):
        for i in range(4):
            a(f"v_add_f32_dpp v{48+i}, v{48+i}, v{48+i} row_ror:{d} row_mask:0xf bank_mask:0xf")
    for i in range(4):
        a(f"v_add_f32_dpp v{48+i}, v{48+i}, v{48+i} row_bcast:15 row_mask:0xa bank_mask:0xf")
    a(f"""v_cndmask_b32 v48, v48, v50, s[46:47]
    v_cndmask_b32 v49, v49, v51, s[46:47]
    v_cvt_pk_bf16_f32 v48, v48, v49
    v_and_b32 v49, 0xffff0000, v48
    v_add_f32 v49, v49, v10
    v_cvt_pk_bf16_f32 v49, v49, v49
    v_and_b32 v49, 0xffff0000, v49
    v_mul_f32 v50, 0xbfb8aa3b, v49
    v_exp_f32 v50, v50
    v_lshlrev_b32 v48, 16, v48
    v_add_f32 v50, 1.0, v50
    v_rcp_f32 v50, v50
    s_mov_b32 exec_lo, 0x00030000
    v_mul_f32 v49, v49, v50
    v_cvt_pk_bf16_f32 v49, v49, v49
    v_and_b32 v49, 0xffff0000, v49
    v_mul_f32 v48, v48, v49
    v_cvt_pk_bf16_f32 v48, v48, v48
    s_mov_b32 exec_hi, 0x00030000
    v_and_b32 v48, 0xffff0000, v48
    v_add_f32 v48, v48, v9
    v_cvt_pk_bf16_f32 v48, v48, v48
    @DIAG@
    global_store_short v12, v48, s[24:25] {outst}
    s_cmp_lg_u32 s2, 0
    s_cbranch_scc1 L_fin
    v_mov_b32 v4, 0
    v_mov_b32 v5, s37
    s_mov_b64 exec, 0x10000
    global_store_dword v4, v5, s[28:29]""")
    a("L_fin:")
    if stamps:
        a("s_memrealtime s[92:93]")
        a("s_mov_b64 exec, -1\ns_waitcnt lgkmcnt(0)\nv_mov_b32 v5, 0\nv_writelane_b32 v5, s62, 0")
        for i in range(15):
            a(f"v_writelane_b32 v5, s{64+2*i}, {i+1}")
        a(f"""v_writelane_b32 v5, s33, 17
        s_getreg_b32 s38, hwreg(HW_REG_XCC_ID)
        v_writelane_b32 v5, s38, 18
        v_writelane_b32 v5, s56, 19
        v_writelane_b32 v5, s57, 20
        v_writelane_b32 v5, s58, 21
        v_writelane_b32 v5, s59, 24
        v_writelane_b32 v5, s94, 22
        v_writelane_b32 v5, s96, 23
        s_lshl_b32 s38, s2, 10
        s_add_u32 s38, s38, {TS_OFF}
        v_lshrrev_b32 v1, 6, v0
        v_and_b32 v2, 63, v0
        v_lshlrev_b32 v4, 7, v1
        v_lshl_add_u32 v4, v2, 2, v4
        v_add_u32 v4, s38, v4
        s_mov_b64 exec, 0xffffffff
        global_store_dword v4, v5, s[28:29]""")
    a("L_exit:")
    dg = []
    if diag:
        dg = ["L_dg:", f"{diag[0]} s[62:63]", "s_waitcnt lgkmcnt(0)", "s_sub_u32 s62, s62, s60", f"s_cmp_lt_u32 s62, {diag[1]}", "s_cbranch_scc1 L_dg"]
    if evt:
        dg = ["s_mov_b64 s[64:65], exec", "s_mov_b64 exec, -1", f"ds_read_b32 v4, v3 offset:{256+40}", "s_waitcnt lgkmcnt(0)", "v_readfirstlane_b32 s60, v4", "s_mov_b64 exec, s[64:65]",
              "L_dg:", "s_memrealtime s[62:63]", "s_waitcnt lgkmcnt(0)", "s_sub_u32 s62, s62, s60", f"s_cmp_lt_u32 s62, {evt[1]}", "s_cbranch_scc1 L_dg"]
    i_ = L.index("@DIAG@"); L[i_:i_+1] = dg
    body = "\n".join(("" if x.endswith(":") or x.startswith(";") else "    ") + x for x in L)
    return f"""{HEADER}; @launch grid=(256,1,1) block=(384,1,1) lds={LDS_TOTAL}
; One launch, 256 workgroups (one per CU), 6 waves each. Workgroup b: h = b&7 (kv head), c = b>>3 (128-key chunk),
; hq = 4h + (c>>3), j = c&7.
;            bounded number of loads in flight) and reports its progress in an LDS word
; Hand-offs between workgroups go through d_ws. Every 8-byte unit carries tag bits derived from an epoch word that the
; the head report the same id, write-through copies are stored too and readers poll both copies after a number of
; failed polls, so the result does not depend on workgroup placement. The last hand-off (write-through) is stored twice, once per
.amdgcn_target "amdgcn-amd-amdhsa--gfx950"
.text
.globl {KN}_kernel
{["", ".p2align 13", ".p2align 13" + chr(10) + ".fill 0x700, 4, 0xbf810000"][lay]}
.p2align 8
.type {KN}_kernel,@function
{KN}_kernel:
{body}
    s_endpgm
.section .rodata,"a"
.p2align 6
.amdhsa_kernel {KN}_kernel
  .amdhsa_next_free_vgpr 152
  .amdhsa_next_free_sgpr 98
  .amdhsa_accum_offset 152
  .amdhsa_group_segment_fixed_size 0
  .amdhsa_kernarg_size 104
  .amdhsa_user_sgpr_count 2
  .amdhsa_user_sgpr_kernarg_segment_ptr 1
  .amdhsa_system_sgpr_workgroup_id_x 1
.end_amdhsa_kernel
"""
if __name__ == "__main__":
    import argparse, json
    ap = argparse.ArgumentParser()
    ap.add_argument("out"); ap.add_argument("--kw", default="{}")
    x = ap.parse_args()
    open(x.out, "w").write(gen(**json.loads(x.kw)))
```

```python
import sys
KN = "recurrent_scan__sliding_block_cached__mixer_channel_mlp__decode"
HEADER = open("cdna_kernels/%s.s.ref" % KN).read().split("; Override launch")[0]

ST = 1088
QB, HB, OB, FB = 0x10000, 0x20000, 0x40000, 0xC0000
PB = 0x1C0000
DL = 0x100000
TS_OFF = 0x8000000
C_ = [1, 2, 3, 4]
STAMPS = {'wq': (C_, 4), 'qgot': (C_, 7), 'smax': (C_, 9), 'opub': (C_, 10), 'all': ([0], 9), 'ogot': (C_, 12), 'hdone': ([5], 4), 'fpub': (C_, 14), 'fgot': ([5], 6)}
WAVE_GROUPS = {'loader': [0], 'comp': [1, 2, 3, 4], 'aux': [5]}

def gen(W=20, nt="nt", stamps=False, budget=1000000, pace_h=56, KSW=64, warm=True, qstag=12, nfin=2, extra_dirty=0, pace_o=104, noB=False, diag=None, rot=(3, 1), fpre=True, fst="sc1", opre=2, fpre_late=False, ast="", outst="", unq=2, late1=False, evt=None, light=7, numa=True, force=None, race_at='gh', oracle=None, vote=True, t_store=False, t_noqB=False, t_pre2=False, t_race=False, nrace=4, t_wait=False, redonly=False, wpre=True, clean=True, remap_test=None, lay=2, cprio=0, lprio=3):
    order = "qKV1o2" if late1 else "q1KVo2"
    Wd = {"1": 20, "K": 20, "V": 22, "o": 16, "2": 12}
    if isinstance(W, int): Wd = {k: W for k in Wd}
    elif W: Wd.update(W)
    pol = {t: nt for t in order} if isinstance(nt, str) else {t: nt.get(t, "") for t in order}
    L = []
    def a(s):
        for x in s.split("\n"):
            x = x.strip()
            if x: L.append(x)
    cnt = {"q": 16, "1": 8, "K": 32, "V": 32, "o": 16, "2": 8}
    idx = {}; p = 0
    for t in order:
        idx[t] = p; p += cnt[t]
    NL = p
    base = {t: (idx[t] + 1) * ST for t in order}
    END = (NL + 1) * ST
    PROG = END
    FLG = PROG + 256
    XN = FLG + 64
    YN = XN + 1024
    QL = YN + 1024
    SL = QL + 4 * 288
    AL = SL + 4 * 576
    HL = AL + 8 * 288
    LDS_TOTAL = HL + 128
    assert LDS_TOTAL <= 163840
    nst = [0]
    def stamp():
        if stamps:
            a(f"s_memrealtime s[{64+2*nst[0]}:{65+2*nst[0]}]")
        nst[0] += 1
        assert nst[0] <= 15
    def lgk(n): return 0 if stamps else n
    def event(name):
        if evt and evt[0] == name:
            a(f"""s_memrealtime s[62:63]
            v_mov_b32 v4, {FLG + 40}
            s_waitcnt lgkmcnt(0)
            v_mov_b32 v5, s62
            ds_max_u32 v4, v5
            s_waitcnt lgkmcnt(0)""")
    uid = [0]
    def lab(p):
        uid[0] += 1
        return f"L_{p}{uid[0]}"
    def tmo(padn=None):
        a("s_sub_u32 s33, s33, 1")
        if padn and warm: a(f"L_pad{padn}:")
        a("s_cbranch_scc1 L_fin")
    def pad(n, target, jump=True):
        if warm:
            if jump: a(f"s_branch L_po{n}")
            a(f"L_pad{n}:\ns_branch {target}")
            if jump: a(f"L_po{n}:")
    def wait_prog(th):
        l = lab("wp")
        a(f"{l}:\nds_read_b32 v4, v3")
        tmo()
        a(f"""s_waitcnt lgkmcnt(0)
        v_cmp_gt_u32 vcc, {th}, v4
        s_cbranch_vccnz {l}""")
    def wait_flags(off, padn=None):
        l = lab("wf")
        a(f"{l}:\nds_read_b128 v[4:7], v3 offset:{256+off}")
        tmo(padn)
        a(f"""s_waitcnt lgkmcnt(0)
        v_bitop3_b32 v4, v4, v5, v6 bitop3:0x80
        v_and_b32 v4, v4, v7
        v_cmp_eq_u32 vcc, 0, v4
        s_cbranch_vccnz {l}""")
    def wait_flag1(off):
        l = lab("w1")
        a(f"{l}:\nds_read_b32 v4, v3 offset:{256+off}")
        tmo()
        a(f"""s_waitcnt lgkmcnt(0)
        v_cmp_eq_u32 vcc, 0, v4
        s_cbranch_vccnz {l}""")
    def attempts(i):
        if stamps: a(f"s_add_u32 s{56+i}, s{56+i}, 1")

    if diag: a(f"{diag[0]} s[60:61]")
    if stamps: a("s_memrealtime s[62:63]")
    if remap_test:
        sh, mask = remap_test
        a(f"s_lshr_b32 s3, s2, {sh}\ns_and_b32 s3, s3, {mask}\ns_xor_b32 s2, s2, s3")
    a(f"""
    s_load_dwordx16 s[4:19], s[0:1], 0
    s_load_dwordx8 s[20:27], s[0:1], 64
    s_load_dwordx2 s[28:29], s[0:1], 96
    v_readfirstlane_b32 s32, v0
    s_lshr_b32 s31, s2, 3
    s_cmp_ge_u32 s31, 32
    s_cbranch_scc1 L_exit
    s_and_b32 s30, s2, 7
    s_lshr_b32 s34, s31, 3
    s_and_b32 s35, s31, 7
    s_lshr_b32 s32, s32, 6
""")
    if warm: a("s_cmp_eq_u32 s32, 1\ns_cbranch_scc1 L_pad1")
    a(f"s_cmp_eq_u32 s32, 5\ns_cbranch_scc1 L_aux\ns_cmp_lg_u32 s32, 0\ns_cbranch_scc1 L_comp")
    a(f"""
    v_lshrrev_b32 v4, 3, v0
    v_and_b32 v5, 7, v0
    v_and_b32 v6, 2, v4
    v_xor_b32 v5, v5, v6
    v_lshlrev_b32 v5, 4, v5
    s_lshl_b32 s37, s34, 20
    s_lshl_b32 s38, s30, 10
    s_lshl_b32 s39, s35, 7
    s_add_u32 s37, s37, s38
    s_add_u32 s37, s37, s39
    v_lshl_add_u32 v10, v4, 13, v5
    v_add_u32 v10, s37, v10
    s_movk_i32 s50, {ST}
    s_lshl_b32 s51, 1, 16
    s_mov_b32 m0, 0
    v_lshlrev_b32 v9, 4, v0
    s_setprio {lprio}
    s_waitcnt lgkmcnt(0)
    """)
    stamp()
    a("global_load_lds_dwordx4 v9, s[4:5]\ns_add_u32 m0, m0, s50\ns_nop 0")
    a("L_ldq:")
    for i in range(unq):
        a(f"""global_load_lds_dwordx4 v10, s[10:11] {pol['q']}
        s_add_u32 m0, m0, s50
        v_add_u32 v10, s51, v10""")
    a(f"""s_cmpk_lt_u32 m0, {17*ST}
    s_cbranch_scc1 L_ldq""")
    stamp()
    a(f"""s_lshl_b32 s36, s30, 2
    s_add_u32 s36, s36, s34
    s_cmp_ge_u32 s30, {max(light, 1)}""")
    if warm: a("s_branch L_po1\n.p2align 8,,64\nL_pad1:\ns_branch L_comp\nL_po1:")
    a(f"""s_cselect_b32 s46, 4, 0
    s_sub_u32 s46, s36, s46
    s_cmp_lg_u32 s30, {light}
    s_cselect_b64 s[48:49], -1, 1
    v_mov_b32 v3, {PROG}
    v_lshl_add_u32 v3, v0, 2, v3""")
    info = {"1": (11, 16), "K": (12, 6), "V": (13, 8), "o": (14, 12), "2": (15, 20)}
    setup = {
        "1": f"""s_mul_i32 s37, s35, 64*3584
        s_lshl_b32 s38, s46, 7
        s_add_u32 s37, s37, s38
        v_mul_u32_u24 v11, 3584, v4
        v_add3_u32 v11, v11, v5, s37
        s_movk_i32 s51, 28672""",
        "K": f"""s_lshl_b32 s37, s30, 23
        s_lshl_b32 s38, s31, 15
        s_add_u32 s37, s37, s38
        s_add_u32 s47, s37, 0x700000
        v_lshrrev_b32 v8, 4, v0
        v_and_b32 v9, 15, v0
        v_xor_b32 v6, v9, v8
        v_lshlrev_b32 v6, 4, v6
        v_lshl_add_u32 v12, v8, 8, v6
        s_mul_i32 s37, s31, {rot[0]}
        s_mul_i32 s38, s30, {rot[1]}
        s_add_u32 s37, s37, s38
        s_and_b32 s37, s37, 7
        s_lshl_b32 s37, s37, 12
        s_add_u32 s45, s47, s37
        v_add_u32 v12, s45, v12
        v_mov_b32 v16, 0x7fff
        s_movk_i32 s51, 1024""",
        "V": f"""v_lshlrev_b32 v6, 1, v8
        v_xor_b32 v6, v9, v6
        v_lshlrev_b32 v6, 4, v6
        v_lshl_add_u32 v13, v8, 8, v6
        v_add_u32 v13, s45, v13""",
        "o": f"""v_lshl_add_u32 v15, v4, 10, v5
        s_lshl_b32 s37, s36, 17
        s_add_u32 s37, s37, s39
        v_add_u32 v14, s37, v15
        s_movk_i32 s51, 8192""",
        "2": f"""s_lshl_b32 s37, s46, 16
        s_add_u32 s37, s37, s39
        v_add_u32 v15, s37, v15""",
    }
    for t in order[1:]:
        v, s = info[t]; w = Wd[t]
        r = (w - 1 - idx[t]) % 4
        first = idx[t] + r - w + 1
        a(setup[t])
        if t in "12": a("s_mov_b64 exec, s[48:49]")
        def one():
            a(f"""global_load_lds_dwordx4 v{v}, s[{s}:{s+1}] {pol[t]}
            s_add_u32 m0, m0, s50
            v_add_u32 v{v}, s51, v{v}""")
        nfree = 0
        if t == order[1]:
            nfree = min(8, max(0, w - 16)) // 4 * 4
            for i in range(nfree):
                one()
                if t in "KV" and i % 4 == 3: a(f"v_bfi_b32 v{v}, v16, v{v}, s47")
            a(f"s_waitcnt vmcnt({16 + nfree})"); stamp(); a("s_barrier")
        if nfree < cnt[t]:
            a(f"v_mov_b32 v7, {first + nfree}")
            l = lab("ld")
            a(f"{l}:")
            for i in range(4):
                a(f"s_waitcnt vmcnt({w-1})")
                if i == r: a("ds_max_i32 v3, v7")
                one()
            e = base[t] + cnt[t] * ST
            if t in "KV": a(f"v_bfi_b32 v{v}, v16, v{v}, s47")
            a(f"""v_add_u32 v7, 4, v7
            {'s_cmpk_lt_u32' if e < 65536 else 's_cmp_lt_u32'} m0, {e}
            s_cbranch_scc1 {l}""")
        if t in "12": a("s_mov_b64 exec, -1")
        stamp()
    for b in range(4, NL + 1, 4):
        if b > NL - Wd["2"] and (b <= max(idx['V'] + 32, idx['1'] + 8) or b in (NL, pace_o, pace_h)):
            a(f"v_mov_b32 v7, {b}\ns_waitcnt vmcnt({NL-b})\nds_max_i32 v3, v7")
    stamp()
    event("all")
    a("s_branch L_fin")

    def common():
        a(f"""v_and_b32 v2, 63, v0
        s_lshl_b32 s36, s30, 2
        s_add_u32 s36, s36, s34
        s_mov_b32 s33, {budget}
        v_mov_b32 v3, {PROG}
        """)
        if stamps: a("s_mov_b64 s[56:57], 0\ns_mov_b64 s[58:59], 0")
    nst[0] = 0
    a("L_comp:")
    if cprio: a(f"s_setprio {cprio}")
    common()
    a(f"""
    v_lshlrev_b32 v16, 4, v2
    s_sub_u32 s32, s32, 1
    v_and_b32 v20, 15, v2
    v_lshrrev_b32 v21, 4, v2
    v_lshrrev_b32 v22, 2, v20
    v_and_b32 v23, 3, v2
    s_lshl_b32 s38, s30, 13
    s_lshl_b32 s39, s34, 11
    s_add_u32 s38, s38, s39
    s_lshl_b32 s39, s35, 8
    s_lshl_b32 s44, s32, 6
    s_add_u32 s39, s39, s44
    s_add_u32 s38, s38, s39
    s_add_u32 s38, s38, {QB}
    v_lshl_add_u32 v12, v20, 2, s38
    s_lshl_b32 s38, s36, 11
    s_add_u32 s38, s38, s39
    s_add_u32 s38, s38, {HB}
    v_lshl_add_u32 v13, v20, 2, s38
    s_lshl_b32 s38, s30, 16
    s_lshl_b32 s39, s31, 9
    s_add_u32 s38, s38, s39
    s_lshl_b32 s45, s32, 7
    s_add_u32 s38, s38, s45
    s_add_u32 s38, s38, {OB}
    v_lshlrev_b32 v46, 14, v21
    v_lshl_add_u32 v46, v20, 3, v46
    v_add_u32 v46, s38, v46
    s_waitcnt lgkmcnt(0)
    global_load_dword v125, v12, s[28:29] sc1
    global_load_dword v125, v13, s[28:29] sc1
    {"global_load_dword v114, v46, s[28:29] sc1" if opre in (0, 3) else ""}
    """)
    a(f"""
    s_add_u32 s26, s28, {DL}
    s_addc_u32 s27, s29, 0
    s_lshl_b32 s38, s32, 1
    v_lshrrev_b32 v7, 1, v23
    v_add_u32 v4, s38, v7
    v_and_b32 v5, 2, v22
    v_xor_b32 v4, v4, v5
    v_lshlrev_b32 v4, 4, v4
    v_and_b32 v14, 1, v23
    v_lshl_add_u32 v5, v14, 3, v4
    v_lshl_add_u32 v5, v22, 7, v5
    v_mul_u32_u24 v6, {ST}, v21
    v_add_u32 v24, v5, v6
    v_add_u32 v25, {base['o']}, v24
    s_mul_i32 s38, s32, {8*ST}
    s_add_u32 s38, s38, {base['K']}
    v_xor_b32 v4, v21, v23
    v_lshlrev_b32 v4, 4, v4
    v_lshl_add_u32 v4, v23, 8, v4
    v_mul_u32_u24 v5, {ST}, v22
    v_add3_u32 v26, v4, v5, s38
    s_lshl_b32 s38, s32, 2
    v_add_u32 v4, s38, v7
    v_lshlrev_b32 v5, 1, v22
    v_xor_b32 v4, v4, v5
    v_lshlrev_b32 v4, 4, v4
    v_lshl_add_u32 v4, v14, 3, v4
    v_lshl_add_u32 v4, v22, 8, v4
    v_xor_b32 v5, 32, v4
    v_lshlrev_b32 v6, 1, v6
    v_add_u32 v6, {base['V']}, v6
    v_add_u32 v27, v4, v6
    v_add_u32 v28, v5, v6
    v_add_u32 v44, s38, v3""")
    a(f"""v_mov_b32 v19, 0xff
    v_mov_b32 v18, 0x3b000000
    v_mov_b32 v112, v16
    v_add_u32 v16, {XN}, v16
    v_lshlrev_b32 v15, 4, v21
    s_lshl_b32 s38, s34, 8
    s_add_u32 s38, s38, {XN}
    v_add_u32 v17, s38, v15""")
    stamp()
    a("s_barrier")
    stamp()
    a("ds_read_b128 v[8:11], v112\ns_waitcnt lgkmcnt(0)")
    for i in range(4):
        a(f"v_lshlrev_b32 v{32+2*i}, 16, v{8+i}\nv_and_b32 v{33+2*i}, 0xffff0000, v{8+i}")
    a("s_mov_b32 s55, 0\nL_ln:")
    a("""v_pk_mul_f32 v[40:41], v[32:33], v[32:33]
    v_pk_add_f32 v[4:5], v[32:33], v[34:35]
    v_pk_fma_f32 v[40:41], v[34:35], v[34:35], v[40:41]
    v_pk_add_f32 v[6:7], v[36:37], v[38:39]
    v_pk_fma_f32 v[40:41], v[36:37], v[36:37], v[40:41]
    v_pk_add_f32 v[4:5], v[4:5], v[6:7]
    v_pk_fma_f32 v[40:41], v[38:39], v[38:39], v[40:41]
    v_add_f32 v4, v4, v5
    v_add_f32 v5, v40, v41
    s_nop 0""")
    for d in ("row_shr:1", "row_shr:2", "row_shr:4", "row_shr:8"):
        a(f"""v_add_f32_dpp v4, v4, v4 {d} row_mask:0xf bank_mask:0xf bound_ctrl:1
        v_add_f32_dpp v5, v5, v5 {d} row_mask:0xf bank_mask:0xf bound_ctrl:1
        s_nop 0""")
    a(f"""v_add_f32_dpp v4, v4, v4 row_bcast:15 row_mask:0xa bank_mask:0xf
    v_add_f32_dpp v5, v5, v5 row_bcast:15 row_mask:0xa bank_mask:0xf
    s_nop 0
    v_add_f32_dpp v4, v4, v4 row_bcast:31 row_mask:0xc bank_mask:0xf
    v_add_f32_dpp v5, v5, v5 row_bcast:31 row_mask:0xc bank_mask:0xf
    s_nop 0
    v_readlane_b32 s38, v4, 63
    v_readlane_b32 s39, v5, 63
    s_nop 0
    v_mul_f32 v4, s38, v18
    v_mul_f32 v5, s39, v18
    v_fma_f32 v5, -v4, v4, v5
    v_max_f32 v5, 0, v5
    v_cvt_pk_bf16_f32 v4, v4, v5
    v_and_b32 v5, 0xffff0000, v4
    v_lshlrev_b32 v4, 16, v4
    v_add_f32 v5, 0x3727c5ac, v5
    v_cvt_pk_bf16_f32 v5, v5, v5
    v_and_b32 v5, 0xffff0000, v5
    v_sqrt_f32 v6, v5""")
    for i in range(4):
        a(f"v_pk_add_f32 v[{32+2*i}:{33+2*i}], v[{32+2*i}:{33+2*i}], v[4:5] op_sel_hi:[1,0] neg_lo:[0,1] neg_hi:[0,1]")
    a(f"""v_cvt_pk_bf16_f32 v6, v6, v6
    v_and_b32 v6, 0xffff0000, v6
    v_rcp_f32 v6, v6""")
    for i in range(4):
        a(f"v_cvt_pk_bf16_f32 v{40+i}, v{32+2*i}, v{33+2*i}")
    for i in range(4):
        a(f"v_lshlrev_b32 v{32+2*i}, 16, v{40+i}\nv_and_b32 v{33+2*i}, 0xffff0000, v{40+i}")
    for i in range(4):
        a(f"v_pk_mul_f32 v[{32+2*i}:{33+2*i}], v[{32+2*i}:{33+2*i}], v[6:7] op_sel_hi:[1,0]")
    for i in range(4):
        a(f"v_cvt_pk_bf16_f32 v{40+i}, v{32+2*i}, v{33+2*i}")
    a("""ds_write_b128 v16, v[40:43]
    s_cmp_lg_u32 s55, 0
    s_cbranch_scc1 L_ln2""")
    for t in range(4):
        a(f"ds_read_b128 v[{48+4*t}:{51+4*t}], v17 offset:{64*t}")
    for i in range(4):
        a(f"v_lshlrev_b32 v{32+2*i}, 16, v{40+i}\nv_and_b32 v{33+2*i}, 0xffff0000, v{40+i}")
    stamp()
    a(f"""s_lshl_b32 s38, s35, 7
    s_add_u32 s38, s38, {YN}
    v_add_u32 v17, s38, v15
    v_add_u32 v16, 1024, v16
    s_lshl_b32 s38, s30, 13
    s_lshl_b32 s39, s32, 9
    s_add_u32 s38, s38, s39
    s_add_u32 s38, s38, {QB}
    v_lshl_add_u32 v8, v2, 3, s38
    v_add_u32 v9, 4096, v8
    s_mul_i32 s39, s32, 288
    s_add_u32 s39, s39, {QL}
    v_lshl_add_u32 v10, v2, 2, s39
    v_mul_u32_u24 v11, 288, v23
    v_add_u32 v11, v11, v15
    v_add_u32 v11, {QL}, v11
    s_add_u32 s38, s45, {SL}
    v_mul_u32_u24 v47, 576, v23
    v_add3_u32 v47, v47, v15, s38
    v_mul_u32_u24 v115, 576, v22
    v_lshl_add_u32 v115, v23, 7, v115
    v_lshl_add_u32 v115, v21, 5, v115
    v_add_u32 v115, {SL}, v115
    s_lshl_b32 s38, s36, 14
    s_add_u32 s38, s38, s45
    s_add_u32 s38, s38, {OB}
    v_lshrrev_b32 v6, 3, v2
    v_and_b32 v5, 7, v2
    v_lshlrev_b32 v116, 11, v6
    v_lshl_add_u32 v116, v5, 4, v116
    v_add_u32 v116, s38, v116
    s_add_u32 s38, s44, {AL}
    v_mul_u32_u24 v117, 288, v6
    v_lshl_add_u32 v117, v5, 2, v117
    v_add_u32 v117, s38, v117
    v_mov_b32 v118, 0x0c0c0400
    v_mov_b32 v6, 0x04000c0c
    v_cmp_eq_u32 vcc, 1, v14
    v_mul_u32_u24 v119, 288, v5
    v_add_u32 v119, v119, v15
    v_cndmask_b32 v118, v118, v6, vcc
    v_add_u32 v119, {AL}, v119
    v_add_u32 v120, {HL}, v15
    s_lshl_b32 s38, s35, 15
    s_lshr_b32 s39, s36, 4
    s_lshl_b32 s39, s39, 14
    s_add_u32 s38, s38, s39
    s_and_b32 s39, s36, 15
    s_lshl_b32 s39, s39, 9
    s_add_u32 s38, s38, s39
    s_add_u32 s38, s38, s45
    s_add_u32 s38, s38, {FB}
    s_add_u32 s50, s28, 8192
    s_addc_u32 s51, s29, 0
    v_lshl_add_u32 v121, v20, 3, s38
    s_lshl_b32 s52, s32, 3
    s_add_u32 s52, s52, {idx['K'] + 8}""")
    l = lab("wt")
    a(f"{l}:\nds_read_b64 v[4:5], v3 offset:{256+48}")
    tmo()
    a(f"""s_waitcnt lgkmcnt(0)
    v_cmp_eq_u32 vcc, 0, v5
    s_cbranch_vccnz {l}
    v_lshlrev_b32 v122, 3, v23
    v_lshrrev_b32 v29, v122, v4
    v_lshlrev_b32 v5, 4, v14
    v_lshrrev_b32 v30, v5, v4
    v_lshrrev_b32 v31, 8, v30
    s_getreg_b32 s38, hwreg(HW_REG_XCC_ID, 0, 3)
    v_mul_u32_u24 v5, s38, v14
    v_xor_b32 v113, v30, v5
    v_cmp_eq_u32 vcc, 2, v23
    v_mul_u32_u24 v5, 7, v14
    v_mov_b32 v6, s38
    v_xor_b32 v144, v19, v5
    v_cndmask_b32 v6, 0, v6, vcc
    v_xor_b32 v145, v29, v6
    s_mov_b32 s54, 0
    v_not_b32 v146, v19
    v_and_b32 v5, 1, v22
    v_lshlrev_b32 v5, 3, v5
    v_lshrrev_b32 v148, v5, v30
    v_xor_b32 v6, v113, v30
    v_xor_b32 v148, v148, v6
    v_and_b32 v5, 2, v2
    v_lshlrev_b32 v5, 2, v5
    v_lshrrev_b32 v149, v5, v4
    v_lshrrev_b32 v150, 16, v149
    v_xor_b32 v150, s38, v150
    v_mov_b32 v147, 0x0c0c0400
    """)
    a("; ---- q partial: xn(128 rows) x wq tile")
    wait_prog(idx['q'] + 16)
    stamp()
    event('wq')
    for t in range(4):
        for rd in range(2):
            a(f"ds_read_b64_tr_b16 v[{72+4*t+2*rd}:{73+4*t+2*rd}], v24 offset:{base['q'] + t*4*ST + rd*512}")
    for t in range(4):
        c = "0" if t == 0 else "v[4:7]"
        a(f"s_waitcnt lgkmcnt({lgk(6-2*t)})\nv_mfma_f32_16x16x32_bf16 v[4:7], v[{48+4*t}:{51+4*t}], v[{72+4*t}:{75+4*t}], {c}")
    a(f"""s_mov_b64 exec, 0xffff
    s_mov_b32 s55, 1
    s_nop 5
    v_bfi_b32 v123, v19, v145, v4
    global_store_dword v12, v123, s[28:29] {ast}
    s_mov_b64 exec, -1""")
    stamp()
    def qissue(r):
        a(f"""global_load_dwordx2 v[{r}:{r+1}], v8, s[28:29] sc1
        global_load_dwordx2 v[{r+2}:{r+3}], v8, s[28:29] offset:2048 sc1
        global_load_dwordx2 v[{r+4}:{r+5}], v9, s[28:29] sc1
        global_load_dwordx2 v[{r+6}:{r+7}], v9, s[28:29] offset:2048 sc1""")
        attempts(0)
    def qcheck(r):
        a(f"v_xor_b32 v7, v{r}, v113\nv_xor_b32 v4, v{r+1}, v31")
        for i in range(1, 4):
            a(f"v_bitop3_b32 v7, v7, v{r+2*i}, v113 bitop3:0xf6\nv_bitop3_b32 v4, v4, v{r+2*i+1}, v31 bitop3:0xf6")
        a(f"""v_and_b32 v6, v144, v7
        v_and_or_b32 v4, v4, v19, v6
        v_cmp_ne_u32 vcc, 0, v4""")
        if clean:
            for i in range(8): a(f"v_and_b32 v{r+i}, v146, v{r+i}")
        a(f"""v_pk_add_f32 v[40:41], v[{r}:{r+1}], v[{r+2}:{r+3}]
        v_pk_add_f32 v[42:43], v[{r+4}:{r+5}], v[{r+6}:{r+7}]""")
    def qhB():
        a(f"""s_mov_b64 exec, 0xffff
        global_store_dword v12, v123, s[26:27] sc1
        {"" if late1 else "global_store_dword v13, v124, s[26:27] sc1"}
        s_mov_b64 exec, -1
        s_mov_b32 s54, 1""")
    def ohB():
        a("global_store_dwordx2 v46, v[126:127], s[26:27] sc1")
        if late1:
            a(f"""s_mov_b64 exec, 0xffff
            global_store_dword v13, v124, s[26:27] sc1
            s_mov_b64 exec, -1""")
    qissue(128)
    a(f"""s_cmp_lg_u32 s30, {light}
    s_cbranch_scc1 L_ln
    s_branch L_nomlp1""")
    pad(3, "L_pad4", jump=False)
    a(f"L_foreign:\nds_write_b32 v3, v5 offset:{256+44}\ns_branch L_own\nL_needB:")
    qhB()
    a("s_branch L_wk")
    def mlp1():
        a(f"""ds_read_b128 v[64:67], v17
        ds_read_b128 v[68:71], v17 offset:64""")
        wait_prog(idx['1'] + 8)
        vb, ob = (24, base['1']) if base['1'] + 8 * ST < 65536 else (112, 0)
        for t in range(2):
            for rd in range(2):
                a(f"ds_read_b64_tr_b16 v[{72+4*t+2*rd}:{73+4*t+2*rd}], v{vb} offset:{ob + t*4*ST + rd*512}")
        a(f"""s_waitcnt lgkmcnt(0)
        v_mfma_f32_16x16x32_bf16 v[4:7], v[64:67], v[72:75], 0
        v_mfma_f32_16x16x32_bf16 v[4:7], v[68:71], v[76:79], v[4:7]
        s_mov_b64 exec, 0xffff
        s_nop 6
        v_bfi_b32 v124, v19, v29, v4
        global_store_dword v13, v124, s[28:29] {ast}
        s_mov_b64 exec, -1""")
    a("L_ln2:")
    if not late1: mlp1()
    a(f"L_nomlp1:\nv_add_u32 v112, {base['1']}, v24")
    stamp()
    qissue(136)
    if opre == 1: a("global_load_dword v114, v46, s[28:29] sc1")
    a(f"""ds_read_b32 v4, v3
    s_mov_b32 s47, {KSW // 3}
    s_mov_b32 s55, 0
    s_waitcnt lgkmcnt(0)
    v_readfirstlane_b32 s53, v4
    s_add_u32 s53, s53, {qstag}
    s_min_u32 s53, s53, {NL}""")
    wait_prog("s53")
    a("; ---- gather q of head w (three attempts in flight)")
    a("L_gq:")
    qissue(104)
    tmo()
    a("s_waitcnt vmcnt(8)" if opre != 1 else "s_waitcnt vmcnt(8)")
    qcheck(128)
    a("s_cbranch_vccz L_gqok")
    a(f"""s_sub_u32 s47, s47, 1
    s_cbranch_scc0 L_gq2
    s_mov_b32 s55, {DL}
    v_mov_b32 v5, 1
    ds_write_b32 v3, v5 offset:{256+44}""")
    qhB()
    a("L_gq2:\nv_xor_b32 v8, s55, v8\nv_xor_b32 v9, s55, v9")
    qissue(128)
    a("s_waitcnt vmcnt(8)")
    qcheck(136)
    a("s_cbranch_vccz L_gqok")
    qissue(136)
    a("s_waitcnt vmcnt(8)")
    qcheck(104)
    a("s_cbranch_vccnz L_gq")
    a(f"""L_gqok:
    v_pk_add_f32 v[40:41], v[40:41], v[42:43]
    v_and_b32 v7, 7, v7
    v_mov_b32 v5, 1
    v_cmp_ne_u32 vcc, 0, v7
    v_cvt_pk_bf16_f32 v40, v40, v41
    ds_write_b32 v10, v40
    s_cbranch_vccnz L_foreign
    L_own:
    ds_write_b32 v44, v5 offset:256""")
    stamp()
    event('qgot')
    a(f"""L_wk:
    ds_read_b32 v40, v3
    ds_read_b128 v[4:7], v3 offset:256
    ds_read_b32 v41, v3 offset:{256+44}""")
    for t in range(4):
        a(f"ds_read_b128 v[{48+4*t}:{51+4*t}], v11 offset:{64*t}")
    tmo()
    a(f"""s_waitcnt lgkmcnt({lgk(4)})
    v_readfirstlane_b32 s38, v41
    v_bitop3_b32 v4, v4, v5, v6 bitop3:0x80
    v_cmp_gt_u32 s[60:61], s52, v40
    v_and_b32 v4, v4, v7
    s_min_u32 s38, s38, 1
    s_cmp_gt_u32 s38, s54
    s_cbranch_scc1 L_needB
    v_cmp_eq_u32 vcc, 0, v4
    s_or_b64 s[60:61], vcc, s[60:61]
    s_cbranch_scc1 L_wk""")
    for t in range(4):
        for u in range(2):
            r = 72 + 16*u + 4*t
            a(f"ds_read_b128 v[{r}:{r+3}], v26 offset:{u*4*ST + t*64}")
    for t in range(4):
        for u in range(2):
            c = "0" if t == 0 else f"v[{32+4*u}:{35+4*u}]"
            a(f"s_waitcnt lgkmcnt({lgk(7-2*t-u)})")
            a(f"v_mfma_f32_16x16x32_bf16 v[{32+4*u}:{35+4*u}], v[{72+16*u+4*t}:{75+16*u+4*t}], v[{48+4*t}:{51+4*t}], {c}")
    SC = 0x3e0293ee
    a(f"""s_mov_b32 exec_lo, 0x000f000f
    s_mov_b32 exec_hi, 0x000f000f
    v_mov_b32 v5, 1
    s_mov_b32 s46, {SC}
    s_nop 3
    ds_write_b128 v47, v[32:35]
    ds_write_b128 v47, v[36:39] offset:64
    ds_write_b32 v44, v5 offset:272
    s_mov_b64 exec, -1
    v_mov_b32 v64, 0x3f803f80
    v_mov_b32 v65, v64
    v_mov_b32 v66, v64
    v_mov_b32 v67, v64""")
    stamp()
    if opre in (2, 3): a("global_load_dword v114, v46, s[28:29] sc1")
    if wpre:
        a("global_load_dword v114, v121, s[28:29] sc1")
        if numa: a("global_load_dword v114, v121, s[50:51] sc1")
    pad(4, "L_pad5")
    def vread(t, k):
        ntile, rd = k >> 1, k & 1
        r = 72 + 8*t + 4*ntile + 2*rd
        return f"ds_read_b64_tr_b16 v[{r}:{r+1}], v{27+ntile} offset:{t*8*ST + rd*ST}"
    a("; ---- softmax over the 128 keys of the chunk, P x V")
    a(f"""L_ws:
    ds_read_b128 v[4:7], v3 offset:272
    ds_read_b32 v40, v3
    ds_read_b128 v[32:35], v115
    ds_read_b128 v[36:39], v115 offset:16""")
    tmo()
    a(f"""s_waitcnt lgkmcnt({lgk(2)})
    v_bitop3_b32 v4, v4, v5, v6 bitop3:0x80
    v_readfirstlane_b32 s53, v40
    v_and_b32 v4, v4, v7
    v_cmp_eq_u32 vcc, 0, v4
    s_cbranch_vccnz L_ws
    s_waitcnt lgkmcnt(0)
    v_max3_f32 v4, v32, v33, v34
    v_max3_f32 v5, v35, v36, v37
    v_max3_f32 v4, v4, v38, v39
    v_max_f32 v4, v4, v5
    {vread(0, 0)}
    {vread(0, 1)}
    v_max_f32_dpp v4, v4, v4 quad_perm:[1,0,3,2] row_mask:0xf bank_mask:0xf
    {vread(0, 2)}
    {vread(0, 3)}
    v_max_f32_dpp v4, v4, v4 quad_perm:[2,3,0,1] row_mask:0xf bank_mask:0xf
    v_mov_b32 v5, v4
    {vread(1, 0)}
    {vread(1, 1)}
    v_permlane16_swap_b32 v4, v5
    v_max_f32 v4, v4, v5
    v_mov_b32 v5, v4
    {vread(1, 2)}
    {vread(1, 3)}
    v_permlane32_swap_b32 v4, v5
    v_max_f32 v4, v4, v5
    v_mul_f32 v6, s46, v4""")
    for i in range(8):
        a(f"v_fma_f32 v{32+i}, v{32+i}, s46, -v6")
        if i == 0: a("ds_bpermute_b32 v45, v15, v6")
    for i in range(8):
        a(f"v_exp_f32 v{32+i}, v{32+i}\n{vread(2 + (i >> 2), i & 3)}")
    for i in range(4):
        a(f"v_cvt_pk_bf16_f32 v{40+i}, v{32+2*i}, v{33+2*i}")
    stamp()
    for t in range(4):
        for i in range(4):
            a(f"v_mov_b32_dpp v{48+4*t+i}, v{40+i} quad_perm:[{t},{t},{t},{t}] row_mask:0xf bank_mask:0xf")
            if t == 0 and i == 1: a("v_mfma_f32_16x16x32_bf16 v[68:71], v[40:43], v[64:67], 0")
        sk = lab("vs")
        a(f"s_cmpk_ge_u32 s53, {idx['V'] + 8*(t+1)}\ns_cbranch_scc1 {sk}")
        l = lab("wv")
        a(f"{l}:\nds_read_b32 v4, v3")
        for k in range(4): a(vread(t, k))
        tmo()
        a(f"""s_waitcnt lgkmcnt({lgk(4)})
        v_cmp_gt_u32 vcc, {idx['V'] + 8*(t+1)}, v4
        s_cbranch_vccnz {l}""")
        a(f"{sk}:\ns_waitcnt lgkmcnt(0)")
        for ntile in range(2):
            c = "0" if t == 0 else f"v[{32+4*ntile}:{35+4*ntile}]"
            a(f"v_mfma_f32_16x16x32_bf16 v[{32+4*ntile}:{35+4*ntile}], v[{48+4*t}:{51+4*t}], v[{72+8*t+4*ntile}:{75+8*t+4*ntile}], {c}")
        if t == 1:
            a("""v_pk_add_f32 v[68:69], v[68:69], v[70:71]
            v_add_f32 v68, v68, v69
            v_log_f32 v5, v68
            v_rcp_f32 v6, v68
            v_add_f32 v45, v45, v5
            v_lshrrev_b32 v45, v122, v45""")
            if numa: a(f"ds_read_b32 v7, v3 offset:{256+32}")
        if t == 2 and numa: a("v_mul_u32_u24 v7, v7, v14\nv_xor_b32 v148, v148, v7")
    a(f"""s_nop 6
    v_mul_f32 v32, v32, v6
    v_bfi_b32 v126, v19, v148, v32
    v_mul_f32 v36, v36, v6
    v_bfi_b32 v127, v19, v45, v36
    global_store_dwordx2 v46, v[126:127], s[28:29] {ast}""")
    stamp()
    event('opub')
    def ogather():
        if stamps: a("s_memrealtime s[94:95]")
        for i in range(4):
            a(f"global_load_dwordx4 v[{48+4*i}:{51+4*i}], v116, s[28:29] offset:{512*i} sc1")
        attempts(1)
    if late1:
        a(f"s_cmp_eq_u32 s30, {light}\ns_cbranch_scc1 L_nomlp1b")
        mlp1()
        a("L_nomlp1b:")
    a("; ---- gather the 32 chunk partials of head hq, weight them with exp2(lse - max)")
    if pace_o > idx['V'] + 32: wait_prog(pace_o)
    ogather()
    stamp()
    o2 = base['2'] - base['o']
    a(f"""s_mov_b32 s47, {KSW}
    s_mov_b32 s55, 0
    s_branch L_go1""")
    pad(5, "L_pad6", jump=False)
    a(f"""L_go:
    s_sub_u32 s47, s47, 1
    s_cbranch_scc0 L_go2
    s_mov_b32 s55, {DL}""")
    ohB()
    a("L_go2:\nv_xor_b32 v116, s55, v116")
    ogather()
    def CL(r, t): return f"v_and_b32 v{r}, v146, v{r}" if clean else ""
    a("L_go1:")
    tmo()
    a("s_waitcnt vmcnt(0)")
    if stamps: a("s_memrealtime s[96:97]")
    a(f"""v_xor_b32 v7, v150, v50
    v_xor_b32 v4, v149, v48
    v_bitop3_b32 v7, v7, v54, v150 bitop3:0xf6
    v_bitop3_b32 v4, v4, v52, v149 bitop3:0xf6
    v_bitop3_b32 v7, v7, v58, v150 bitop3:0xf6
    v_bitop3_b32 v4, v4, v56, v149 bitop3:0xf6
    v_bitop3_b32 v7, v7, v62, v150 bitop3:0xf6
    v_bitop3_b32 v4, v4, v60, v149 bitop3:0xf6
    v_and_b32 v6, 0xf0, v7
    v_and_or_b32 v4, v4, v19, v6
    v_cmp_ne_u32 vcc, 0, v4
    v_perm_b32 v40, v51, v49, v118
    v_perm_b32 v41, v55, v53, v118
    s_cbranch_vccnz L_go
    v_perm_b32 v42, v59, v57, v118
    v_perm_b32 v43, v63, v61, v118
    v_or_b32_dpp v40, v40, v40 quad_perm:[1,0,3,2] row_mask:0xf bank_mask:0xf
    v_or_b32_dpp v41, v41, v41 quad_perm:[1,0,3,2] row_mask:0xf bank_mask:0xf
    v_or_b32_dpp v42, v42, v42 quad_perm:[1,0,3,2] row_mask:0xf bank_mask:0xf
    v_or_b32_dpp v43, v43, v43 quad_perm:[1,0,3,2] row_mask:0xf bank_mask:0xf
    v_max_f32 v5, v40, v41
    v_perm_b32 v104, v54, v50, v147
    v_max3_f32 v5, v5, v42, v43
    v_and_b32 v7, 7, v7
    v_cmp_ne_u32 vcc, 0, v7
    v_max_f32_dpp v5, v5, v5 row_ror:8 row_mask:0xf bank_mask:0xf
    v_mov_b32 v6, v5
    {"v_and_b32 v48, v146, v48" if clean else "s_nop 0"}
    {"v_and_b32 v52, v146, v52" if clean else "s_nop 0"}
    v_permlane16_swap_b32 v5, v6
    v_max_f32 v5, v5, v6
    v_mov_b32 v6, v5
    {"v_and_b32 v56, v146, v56" if clean else "s_nop 0"}
    {"v_and_b32 v60, v146, v60" if clean else "s_nop 0"}
    v_permlane32_swap_b32 v5, v6
    v_max_f32 v5, v5, v6
    v_sub_f32 v40, v40, v5
    v_sub_f32 v41, v41, v5
    v_perm_b32 v105, v62, v58, v147
    v_exp_f32 v40, v40
    v_sub_f32 v42, v42, v5
    v_exp_f32 v41, v41
    v_sub_f32 v43, v43, v5
    v_exp_f32 v42, v42
    {CL(50, 96)}
    v_exp_f32 v43, v43
    {CL(54, 98)}
    {CL(58, 100)}
    {CL(62, 102)}
    v_pk_mul_f32 v[32:33], v[48:49], v[40:41] op_sel_hi:[1,0]
    v_pk_mul_f32 v[34:35], v[50:51], v[40:41] op_sel_hi:[1,0]""")
    sel = {1: ("v[40:41]", "op_sel:[0,1,0] op_sel_hi:[1,1,1]"), 2: ("v[42:43]", "op_sel_hi:[1,0,1]"), 3: ("v[42:43]", "op_sel:[0,1,0] op_sel_hi:[1,1,1]")}
    for i in range(1, 4):
        w_, m_ = sel[i]
        a(f"""v_pk_fma_f32 v[32:33], v[{48+4*i}:{49+4*i}], {w_}, v[32:33] {m_}
        v_pk_fma_f32 v[34:35], v[{50+4*i}:{51+4*i}], {w_}, v[34:35] {m_}""")
    a(f"""v_cvt_pk_bf16_f32 v4, v32, v34
    v_cvt_pk_bf16_f32 v5, v33, v35
    ds_write2_b32 v117, v4, v5 offset0:0 offset1:8""")
    stamp()
    event('ogot')
    a(f"""v_pk_add_f32 v[40:41], v[40:41], v[42:43]
    v_add_f32 v40, v40, v41
    s_cbranch_vccz L_coloc""")
    ohB()
    a(f"""L_coloc:
    s_waitcnt lgkmcnt(0)
    s_barrier""")
    stamp()
    for t in range(4):
        a(f"ds_read_b128 v[{128+4*t}:{131+4*t}], v119 offset:{64*t}")
        for rd in range(2):
            a(f"ds_read_b64_tr_b16 v[{72+4*t+2*rd}:{73+4*t+2*rd}], v25 offset:{t*4*ST + rd*512}")
        if t == 0: a("v_add_f32_dpp v40, v40, v40 row_ror:8 row_mask:0xf bank_mask:0xf\nv_mov_b32 v41, v40")
        if t == 1: a("v_permlane16_swap_b32 v40, v41\nv_add_f32 v40, v40, v41\nv_mov_b32 v41, v40")
        if t == 2: a("v_permlane32_swap_b32 v40, v41\nv_add_f32 v40, v40, v41\nv_rcp_f32 v40, v40")
    a(f"s_waitcnt lgkmcnt({lgk(9)})\nv_mfma_f32_16x16x32_bf16 v[32:35], v[128:131], v[72:75], 0")
    for t in range(2):
        a(f"ds_read_b128 v[{64+4*t}:{67+4*t}], v120 offset:{64*t}")
        for rd in range(2):
            a(f"ds_read_b64_tr_b16 v[{88+4*t+2*rd}:{89+4*t+2*rd}], v25 offset:{o2 + t*4*ST + rd*512}")
    for t in range(1, 4):
        c = "v[32:35]"
        a(f"s_waitcnt lgkmcnt({lgk(15-3*t)})\nv_mfma_f32_16x16x32_bf16 v[32:35], v[{128+4*t}:{131+4*t}], v[{72+4*t}:{75+4*t}], {c}")
    a(f"""s_waitcnt lgkmcnt(0)
    v_mfma_f32_16x16x32_bf16 v[36:39], v[64:67], v[88:91], 0
    v_mfma_f32_16x16x32_bf16 v[36:39], v[68:71], v[92:95], v[36:39]""")
    a(f"""s_nop 4
    v_pk_add_f32 v[32:33], v[32:33], v[34:35]
    v_add_f32 v4, v32, v33
    v_add_f32 v6, v32, v33
    s_cmp_lg_u32 s30, {light}
    s_cselect_b32 s38, -1, 0
    v_permlane16_swap_b32 v4, v6
    v_add_f32 v4, v4, v6
    s_mov_b64 exec, 0xffff
    v_mul_f32 v4, v4, v40
    v_and_b32 v5, s38, v36
    v_bfi_b32 v4, v19, v30, v4
    v_bfi_b32 v5, v19, v31, v5
    global_store_dwordx2 v121, v[4:5], s[28:29] {fst}
    {"global_store_dwordx2 v121, v[4:5], s[50:51] " + fst if numa else ""}
    s_mov_b64 exec, -1""")
    stamp()
    if numa and (oracle is None or t_wait):
        a(f"""s_cmp_lg_u32 s32, 0
        s_cbranch_scc1 L_fin
        v_and_b32 v4, 8, v150
        v_lshl_or_b32 v4, v4, 8, v4
        v_xor_b32 v104, v4, v104
        v_xor_b32 v105, v4, v105
        v_and_b32 v4, 8, v104
        v_and_b32 v5, 0x800, v104
        v_and_b32 v6, 8, v105
        v_and_b32 v7, 0x800, v105
        v_cmp_ne_u32 s[60:61], 0, v4
        v_cmp_ne_u32 s[52:53], 0, v5
        v_cmp_ne_u32 s[48:49], 0, v6
        v_cmp_ne_u32 vcc, 0, v7
        s_bcnt1_i32_b64 s38, s[60:61]
        s_bcnt1_i32_b64 s39, s[52:53]
        s_add_u32 s38, s38, s39
        s_bcnt1_i32_b64 s39, s[48:49]
        s_add_u32 s38, s38, s39
        s_bcnt1_i32_b64 s39, vcc
        s_add_u32 s38, s38, s39
        s_cmpk_gt_u32 s38, 128
        s_cselect_b32 s38, 8193, 1
        v_mov_b32 v4, s38
        ds_write_b32 v3, v4 offset:{256+36}""")
    a("s_branch L_fin")

    nst[0] = 0
    a("L_aux:")
    common()
    a(f"""v_mov_b32 v4, 0
    v_lshl_add_u32 v5, v2, 2, v3
    ds_write_b32 v5, v4
    ds_write_b32 v5, v4 offset:64
    s_cmp_ge_u32 s30, {max(light, 1)}
    s_cselect_b32 s38, 4, 0
    s_sub_u32 s38, s36, s38
    s_lshl_b32 s38, s38, 7
    v_lshl_add_u32 v6, v2, 1, s38
    s_lshl_b32 s48, s34, 3
    s_add_u32 s48, s48, s30
    s_lshl_b32 s48, s48, 2
    s_and_b32 s38, s31, 3
    s_add_u32 s48, s48, s38
    s_lshl_b32 s38, s48, 3
    v_lshrrev_b32 v20, 5, v2
    v_and_b32 v21, 1, v2
    v_lshlrev_b32 v4, 2, v20
    v_lshl_add_u32 v4, v21, 1, v4
    v_add_u32 v12, s38, v4
    s_waitcnt lgkmcnt(0)
    s_load_dword s37, s[28:29], 0
    s_cmp_eq_u32 s30, {light}
    s_cbranch_scc1 L_aux0
    global_load_ushort v8, v6, s[18:19]
    L_aux0:
    global_load_ushort v9, v12, s[4:5]
    global_load_ushort v10, v12, s[22:23]""")
    stamp()
    a(f"""s_barrier
    v_mov_b32 v5, 1
    v_mov_b32 v19, 0xff
    s_lshr_b32 s38, s48, 4
    s_lshl_b32 s38, s38, 15
    s_and_b32 s39, s48, 15
    s_lshl_b32 s39, s39, 5
    s_add_u32 s38, s38, s39
    s_add_u32 s38, s38, {FB}
    v_and_b32 v22, 15, v2
    v_bfe_u32 v23, v2, 4, 1
    v_lshlrev_b32 v17, 9, v22
    v_lshl_add_u32 v17, v23, 14, v17
    v_lshl_add_u32 v17, v20, 4, v17
    v_add_u32 v17, s38, v17
    v_cmp_eq_u32 s[46:47], 1, v21
    s_waitcnt lgkmcnt(0)
    s_add_u32 s37, s37, 1
    s_mul_i32 s40, s37, 0x9E3779B1
    v_mov_b32 v4, s40
    ds_write_b64 v3, v[4:5] offset:{256+48}
    s_lshr_b32 s41, s40, 8
    s_lshr_b32 s42, s40, 16
    s_lshr_b32 s43, s40, 24
    v_and_b32 v4, 3, v2
    v_lshlrev_b32 v4, 3, v4
    v_lshrrev_b32 v29, v4, s40""")
    stamp()
    def probe_store():
        a(f"""s_lshr_b32 s38, s2, 4
        s_lshl_b32 s38, s38, 14
        s_and_b32 s39, s2, 15
        s_lshl_b32 s39, s39, 9
        s_add_u32 s38, s38, s39
        s_add_u32 s38, s38, {PB}
        s_add_u32 s52, s28, s38
        s_addc_u32 s53, s29, 0""")
    def race():
        a("s_mov_b32 s44, s40\ns_mov_b32 s45, s40")
        for i in range(0, 2 * nrace, 2): a(f"s_mov_b64 s[{72+i}:{73+i}], s[44:45]")
        a("s_movk_i32 s39, 200")
        for i in range(nrace):
            for par in ((0, 1) if i in (0, 3) else (1, 0)):
                a(f"s_load_dword s{72 + nrace*par + i}, s[52:53], {8192*par + 128*i}")
        a("L_race:")
        for i in range(0, nrace, 2):
            a(f"""s_cmp_lg_u64 s[{72+i}:{73+i}], s[44:45]
            s_cbranch_scc1 L_near0""")
            if i + 2 >= nrace: a("s_sub_u32 s39, s39, 1\ns_cbranch_scc1 L_near0")
            a(f"s_cmp_lg_u64 s[{72+nrace+i}:{73+nrace+i}], s[44:45]")
            a("s_cbranch_scc1 L_near1" if i + 2 < nrace else "s_cbranch_scc0 L_race")
        a(f"""L_near1:
        {"s_mov_b32 s57, 1" if stamps else ""}
        v_mov_b32 v4, 8
        ds_write_b32 v3, v4 offset:{256+32}
        L_near0:
        s_waitcnt lgkmcnt(0)""")
    if oracle is not None:
        a(f"""s_getreg_b32 s38, hwreg(HW_REG_XCC_ID, 2, 1)
        s_xor_b32 s38, s38, {oracle}
        s_lshl_b32 s38, s38, 13
        v_add_u32 v17, s38, v17
        {"" if wpre else "global_load_dword v40, v17, s[28:29] sc1"}""")
        race_at = None
        if t_pre2: a("v_xor_b32 v18, 0x2000, v17\nglobal_load_dword v40, v18, s[28:29] sc1")
        if t_race:
            probe_store(); race_at = 'gh'
    elif numa:
        if not wpre: a("v_add_u32 v18, 8192, v17\nglobal_load_dword v40, v17, s[28:29] sc1\nglobal_load_dword v40, v18, s[28:29] sc1")
        probe_store()
    elif not wpre: a("global_load_dword v40, v17, s[28:29] sc1")
    if numa and race_at == 'T': race()
    if warm: a("s_branch L_pad3\nL_auxw:")
    stamp()
    if numa and race_at == 'walk': race()
    if extra_dirty:
        a(f"s_lshl_b32 s38, s2, 12\ns_add_u32 s38, s38, 0x400000\nv_lshl_add_u32 v16, v2, 4, s38")
        for i in range(extra_dirty):
            a(f"global_store_dwordx4 v16, v[32:35], s[28:29] offset:{1024*i}")
    def hloads():
        for p_ in range(8):
            a(f"global_load_dword v{32+p_}, v16, s[28:29] offset:{256*p_} sc1")
    a(f"""s_lshl_b32 s38, s36, 11
    s_add_u32 s38, s38, {HB}
    v_lshl_add_u32 v16, v2, 2, s38
    s_mov_b32 s49, {KSW}
    s_mov_b32 s55, 0""")
    wait_prog(pace_h)
    a(f"""s_cmp_eq_u32 s30, {light}
    s_cbranch_scc1 L_noh""")
    hloads()
    a("L_noh:")
    if numa and race_at == 'gh': race()
    a(f"""s_cmp_eq_u32 s30, {light}
    s_cbranch_scc1 L_aux1
    s_branch L_ghc
    L_gh:
    s_sub_u32 s49, s49, 1
    s_cselect_b32 s55, {DL}, s55
    v_xor_b32 v16, s55, v16""")
    hloads()
    a("L_ghc:")
    attempts(0)
    tmo()
    a(f"""s_waitcnt vmcnt(0)
    v_xor_b32 v4, v32, v29""")
    for p_ in range(1, 8):
        a(f"v_bitop3_b32 v4, v4, v{32+p_}, v29 bitop3:0xf6")
    C1 = 0xc0135761
    C2 = 0xbdd2d3e8
    a(f"""v_and_b32 v4, v19, v4
    v_cmp_ne_u32 vcc, 0, v4
    s_cbranch_vccnz L_gh""")
    if clean:
        for i in range(8): a(f"v_and_b32 v{32+i}, 0xffffff00, v{32+i}")
    a(f"""    v_pk_add_f32 v[32:33], v[32:33], v[34:35]
    v_pk_add_f32 v[36:37], v[36:37], v[38:39]
    v_pk_add_f32 v[32:33], v[32:33], v[36:37]
    v_add_f32 v32, v32, v33
    v_cvt_pk_bf16_f32 v32, v32, v32
    v_and_b32 v32, 0xffff0000, v32
    v_lshlrev_b32 v8, 16, v8
    v_add_f32 v32, v32, v8
    v_cvt_pk_bf16_f32 v32, v32, v32
    v_and_b32 v32, 0xffff0000, v32
    v_mul_f32 v33, v32, v32
    v_mov_b32 v34, {C1}
    v_fmac_f32 v34, {C2}, v33
    v_mul_f32 v33, v34, v32
    v_exp_f32 v33, v33
    v_lshlrev_b32 v5, 1, v2
    v_add_f32 v33, 1.0, v33
    v_rcp_f32 v33, v33
    v_add_u32 v5, {HL}, v5
    v_mul_f32 v32, v32, v33
    v_cvt_pk_bf16_f32 v32, v32, v32
    ds_write_b16 v5, v32
""")
    pad(6, "L_auxw")
    a("L_aux1:")
    stamp()
    if numa and race_at == 'h': race()
    if fpre_late:
        wait_prog(72)
        a("global_load_dword v40, v17, s[28:29] sc1")
    a(f"""s_waitcnt vmcnt(0) lgkmcnt(0)
    v_lshlrev_b32 v9, 16, v9
    v_lshlrev_b32 v10, 16, v10
    s_and_b32 s40, s40, 0xff
    s_and_b32 s41, s41, 0xff
    s_and_b32 s42, s42, 0xff
    s_barrier
    s_bitcmp1_b32 s31, 2
    s_cbranch_scc1 L_fin""")
    if numa and (oracle is None or t_wait):
        wait_flag1(36)
        if oracle is None: a("v_add_u32 v17, v17, v4\nv_add_u32 v17, -1, v17")
        if stamps: a("v_readfirstlane_b32 s59, v4")
    stamp()
    regs = [32 + 4 * i for i in range(nfin)]
    for r in regs[:-1]:
        a(f"global_load_dwordx4 v[{r}:{r+3}], v17, s[28:29] sc1")
    a("L_gf:")
    for k in range(nfin):
        r = regs[k]; rn = regs[(k - 1) % nfin]
        if stamps: a("s_memrealtime s[94:95]")
        a(f"global_load_dwordx4 v[{rn}:{rn+3}], v17, s[28:29] sc1")
        attempts(2)
        if k == 0: tmo()
        a(f"""s_waitcnt vmcnt({nfin-1})
        v_xor_b32 v{r}, s40, v{r}
        v_xor_b32 v{r+1}, s41, v{r+1}
        v_xor_b32 v{r+2}, s42, v{r+2}
        v_xor_b32 v{r+3}, s43, v{r+3}
        v_or3_b32 v4, v{r}, v{r+1}, v{r+2}
        v_bitop3_b32 v4, v4, v{r+3}, v19 bitop3:0xa8
        v_cmp_ne_u32 vcc, 0, v4""")
        for i in range(4):
            a(f"v_add_f32_dpp v{48+i}, v{r+i}, v{r+i} row_ror:1 row_mask:0xf bank_mask:0xf")
        a("s_cbranch_vccz L_gfok" if k < nfin - 1 else "s_cbranch_vccnz L_gf")
    a("L_gfok:")
    stamp()
    for d in (2, 4, 8):
        for i in range(4):
            a(f"v_add_f32_dpp v{48+i}, v{48+i}, v{48+i} row_ror:{d} row_mask:0xf bank_mask:0xf")
    for i in range(4):
        a(f"v_add_f32_dpp v{48+i}, v{48+i}, v{48+i} row_bcast:15 row_mask:0xa bank_mask:0xf")
    a(f"""v_cndmask_b32 v48, v48, v50, s[46:47]
    v_cndmask_b32 v49, v49, v51, s[46:47]
    v_cvt_pk_bf16_f32 v48, v48, v49
    v_and_b32 v49, 0xffff0000, v48
    v_add_f32 v49, v49, v10
    v_cvt_pk_bf16_f32 v49, v49, v49
    v_and_b32 v49, 0xffff0000, v49
    v_mul_f32 v50, 0xbfb8aa3b, v49
    v_exp_f32 v50, v50
    v_lshlrev_b32 v48, 16, v48
    v_add_f32 v50, 1.0, v50
    v_rcp_f32 v50, v50
    s_mov_b32 exec_lo, 0x00030000
    v_mul_f32 v49, v49, v50
    v_cvt_pk_bf16_f32 v49, v49, v49
    v_and_b32 v49, 0xffff0000, v49
    v_mul_f32 v48, v48, v49
    v_cvt_pk_bf16_f32 v48, v48, v48
    s_mov_b32 exec_hi, 0x00030000
    v_and_b32 v48, 0xffff0000, v48
    v_add_f32 v48, v48, v9
    v_cvt_pk_bf16_f32 v48, v48, v48
    @DIAG@
    global_store_short v12, v48, s[24:25] {outst}
    s_cmp_lg_u32 s2, 0
    s_cbranch_scc1 L_fin
    v_mov_b32 v4, 0
    v_mov_b32 v5, s37
    s_mov_b64 exec, 0x10000
    global_store_dword v4, v5, s[28:29]""")
    a("L_fin:")
    if stamps:
        a("s_memrealtime s[92:93]")
        a("s_mov_b64 exec, -1\ns_waitcnt lgkmcnt(0)\nv_mov_b32 v5, 0\nv_writelane_b32 v5, s62, 0")
        for i in range(15):
            a(f"v_writelane_b32 v5, s{64+2*i}, {i+1}")
        a(f"""v_writelane_b32 v5, s33, 17
        s_getreg_b32 s38, hwreg(HW_REG_XCC_ID)
        v_writelane_b32 v5, s38, 18
        v_writelane_b32 v5, s56, 19
        v_writelane_b32 v5, s57, 20
        v_writelane_b32 v5, s58, 21
        v_writelane_b32 v5, s59, 24
        v_writelane_b32 v5, s94, 22
        v_writelane_b32 v5, s96, 23
        s_lshl_b32 s38, s2, 10
        s_add_u32 s38, s38, {TS_OFF}
        v_lshrrev_b32 v1, 6, v0
        v_and_b32 v2, 63, v0
        v_lshlrev_b32 v4, 7, v1
        v_lshl_add_u32 v4, v2, 2, v4
        v_add_u32 v4, s38, v4
        s_mov_b64 exec, 0xffffffff
        global_store_dword v4, v5, s[28:29]""")
    a("L_exit:")
    dg = []
    if diag:
        dg = ["L_dg:", f"{diag[0]} s[62:63]", "s_waitcnt lgkmcnt(0)", "s_sub_u32 s62, s62, s60", f"s_cmp_lt_u32 s62, {diag[1]}", "s_cbranch_scc1 L_dg"]
    if evt:
        dg = ["s_mov_b64 s[64:65], exec", "s_mov_b64 exec, -1", f"ds_read_b32 v4, v3 offset:{256+40}", "s_waitcnt lgkmcnt(0)", "v_readfirstlane_b32 s60, v4", "s_mov_b64 exec, s[64:65]",
              "L_dg:", "s_memrealtime s[62:63]", "s_waitcnt lgkmcnt(0)", "s_sub_u32 s62, s62, s60", f"s_cmp_lt_u32 s62, {evt[1]}", "s_cbranch_scc1 L_dg"]
    i_ = L.index("@DIAG@"); L[i_:i_+1] = dg
    body = "\n".join(("" if x.endswith(":") or x.startswith(";") else "    ") + x for x in L)
    return f"""{HEADER}; @launch grid=(256,1,1) block=(384,1,1) lds={LDS_TOTAL}
; One launch, 256 workgroups (one per CU), 6 waves each. Workgroup b: h = b&7 (kv head), c = b>>3 (128-key chunk),
; hq = 4h + (c>>3), j = c&7.
;            bounded number of loads in flight) and reports its progress in an LDS word
; Hand-offs between workgroups go through d_ws. Every 8-byte unit carries tag bits derived from an epoch word that the
; the head report the same id, write-through copies are stored too and readers poll both copies after a number of
; failed polls, so the result does not depend on workgroup placement. The last hand-off (write-through) is stored twice, once per
.amdgcn_target "amdgcn-amd-amdhsa--gfx950"
.text
.globl {KN}_kernel
{["", ".p2align 13", ".p2align 13" + chr(10) + ".fill 0x700, 4, 0xbf810000"][lay]}
.p2align 8
.type {KN}_kernel,@function
{KN}_kernel:
{body}
    s_endpgm
.section .rodata,"a"
.p2align 6
.amdhsa_kernel {KN}_kernel
  .amdhsa_next_free_vgpr 152
  .amdhsa_next_free_sgpr 98
  .amdhsa_accum_offset 152
  .amdhsa_group_segment_fixed_size 0
  .amdhsa_kernarg_size 104
  .amdhsa_user_sgpr_count 2
  .amdhsa_user_sgpr_kernarg_segment_ptr 1
  .amdhsa_system_sgpr_workgroup_id_x 1
.end_amdhsa_kernel
"""
if __name__ == "__main__":
    import argparse, json
    ap = argparse.ArgumentParser()
    ap.add_argument("out"); ap.add_argument("--kw", default="{}")
    x = ap.parse_args()
    open(x.out, "w").write(gen(**json.loads(x.kw)))
```
